```python
import torch

def _softmax(x, axis=-1):
    return torch.softmax(x, dim=axis)
def _gelu(x):
    return torch.nn.functional.gelu(x, approximate="tanh")
def _silu(x):
    return torch.nn.functional.silu(x)
def _sigmoid(x):
    return torch.sigmoid(x)
def _layernorm(x, axis=-1, eps=1e-5):
    m = x.mean(dim=axis, keepdim=True)
    v = x.var(dim=axis, keepdim=True, unbiased=False)
    return (x - m) / torch.sqrt(v + eps)
def _scatter_add(tgt, idx, src, axis=0):
    return tgt.clone().index_add_(axis, idx, src)
def _segment_sum(src, seg, n):
    out = torch.zeros((n,) + src.shape[1:], dtype=src.dtype)
    return out.index_add_(0, seg, src)
def _pad(x, pw):
    flat = tuple(v for pair in reversed(pw) for v in pair)
    return torch.nn.functional.pad(x, flat)

kernel_name = 'interleave_layers__sliding_block_cached__sliding_block_cached__decode'

def setup_inputs():

    _w = (lambda a: (lambda t: t.to(torch.bfloat16) if t.is_floating_point() else t)(torch.as_tensor(a)))
    def _A_setup():
        B, Sq, D = 2, 1, 512
        Hq, Hkv, Sk, Dh = 32, 32, 8192, 128
        assert Hq % Hkv == 0, (Hq, Hkv)
        return {
            "x": _w((lambda *s: torch.randn(*s, dtype=torch.bfloat16) * 0.1)(B, Sq, D)),
            "k_cache": _w((lambda *s: torch.randn(*s, dtype=torch.bfloat16) * 0.8)(B, Hkv, Sk, Dh)),
            "v_cache": _w((lambda *s: torch.randn(*s, dtype=torch.bfloat16) * 3.2)(B, Hkv, Sk, Dh)),
            "wq": _w((lambda *s: torch.randn(*s, dtype=torch.bfloat16) * 0.8)(D, Hq * Dh) * (D ** -0.5)),
            "wo": _w((lambda *s: torch.randn(*s, dtype=torch.bfloat16) * 3.2)(Hq * Dh, D) * ((Hq * Dh) ** -0.5)),
        }
    _A_in = _A_setup()

    def _B_setup():
        B, Sq, D = 2, 1, 512
        Hq, Hkv, Sk, Dh = 32, 32, 8192, 128
        assert Hq % Hkv == 0, (Hq, Hkv)
        return {
            "x": _w((lambda *s: torch.randn(*s, dtype=torch.bfloat16) * 0.1)(B, Sq, D)),
            "k_cache": _w((lambda *s: torch.randn(*s, dtype=torch.bfloat16) * 1.6)(B, Hkv, Sk, Dh)),
            "v_cache": _w((lambda *s: torch.randn(*s, dtype=torch.bfloat16) * 1.6)(B, Hkv, Sk, Dh)),
            "wq": _w((lambda *s: torch.randn(*s, dtype=torch.bfloat16) * 1.6)(D, Hq * Dh) * (D ** -0.5)),
            "wo": _w((lambda *s: torch.randn(*s, dtype=torch.bfloat16) * 1.6)(Hq * Dh, D) * ((Hq * Dh) ** -0.5)),
        }
    _B_in = _B_setup()

    return {
        "A_x": _A_in["x"],
        "A_k_cache": _A_in["k_cache"],
        "A_v_cache": _A_in["v_cache"],
        "A_wq": _A_in["wq"],
        "A_wo": _A_in["wo"],
        "B_x": _B_in["x"],
        "B_k_cache": _B_in["k_cache"],
        "B_v_cache": _B_in["v_cache"],
        "B_wq": _B_in["wq"],
        "B_wo": _B_in["wo"],
    }

def reference(A_x, A_k_cache, A_v_cache, A_wq, A_wo, B_x, B_k_cache, B_v_cache, B_wq, B_wo):
    def _A_ref(x, k_cache, v_cache, wq, wo):
        B, Sq, D = x.shape
        Hq, Dh = 32, 128
        Hkv, Sk = k_cache.shape[1], k_cache.shape[2]
        W = min(4096, max(256, Sk // 4))
        rep = Hq // Hkv
        q = (lambda x, *d: x.permute(*d))((x @ wq).reshape(B, Sq, Hq, Dh), 0, 2, 1, 3)
        k = (lambda x, n, axis: torch.repeat_interleave(x, n, dim=axis))(k_cache[:, :, Sk - W:, :], rep, axis=1)
        v = (lambda x, n, axis: torch.repeat_interleave(x, n, dim=axis))(v_cache[:, :, Sk - W:, :], rep, axis=1)
        scores = torch.einsum("bhqd,bhkd->bhqk", q, k) * (Dh ** -0.5)
        p = _softmax(scores, axis=-1)
        o = torch.einsum("bhqk,bhkd->bhqd", p, v)
        return (lambda x, *d: x.permute(*d))(o, 0, 2, 1, 3).reshape(B, Sq, Hq * Dh) @ wo

    def _B_ref(x, k_cache, v_cache, wq, wo):
        B, Sq, D = x.shape
        Hq, Dh = 32, 128
        Hkv, Sk = k_cache.shape[1], k_cache.shape[2]
        W = min(4096, max(256, Sk // 4))
        rep = Hq // Hkv
        q = (lambda x, *d: x.permute(*d))((x @ wq).reshape(B, Sq, Hq, Dh), 0, 2, 1, 3)
        k = (lambda x, n, axis: torch.repeat_interleave(x, n, dim=axis))(k_cache[:, :, Sk - W:, :], rep, axis=1)
        v = (lambda x, n, axis: torch.repeat_interleave(x, n, dim=axis))(v_cache[:, :, Sk - W:, :], rep, axis=1)
        scores = torch.einsum("bhqd,bhkd->bhqk", q, k) * (Dh ** -0.5)
        p = _softmax(scores, axis=-1)
        o = torch.einsum("bhqk,bhkd->bhqd", p, v)
        return (lambda x, *d: x.permute(*d))(o, 0, 2, 1, 3).reshape(B, Sq, Hq * Dh) @ wo

    x = A_x
    x = x + _A_ref(_layernorm(x, axis=-1), A_k_cache, A_v_cache, A_wq, A_wo)
    x = x + _B_ref(_layernorm(x, axis=-1), B_k_cache, B_v_cache, B_wq, B_wo)
    x = x + _A_ref(_layernorm(x, axis=-1), A_k_cache, A_v_cache, A_wq, A_wo)
    x = x + _B_ref(_layernorm(x, axis=-1), B_k_cache, B_v_cache, B_wq, B_wo)
    return x
```

```python
import re

REG_RE = re.compile(r'(?<![\w.])([vas])(?:(\d+)|\[(\d+):(\d+)\])(?![\w])')
TRANS = ("v_exp_f32", "v_log_f32", "v_rcp_f32", "v_rsq_f32", "v_sqrt_f32", "v_sin_f32", "v_cos_f32", "v_rcp_iflag_f32")

def regs_of(tok):
    tok = tok.strip()
    out = []
    neg = tok.lstrip('-')
    if neg.startswith('abs(') : neg = neg[4:-1]
    if neg.startswith('|'): neg = neg.strip('|')
    if neg in ("vcc", "vcc_lo", "vcc_hi"): return [("s", "vcc")]
    if neg in ("exec", "exec_lo", "exec_hi"): return [("s", "exec")]
    if neg == "m0": return [("s", "m0")]
    m = REG_RE.fullmatch(neg)
    if m:
        k = m.group(1)
        if m.group(2) is not None: return [(k, int(m.group(2)))]
        return [(k, i) for i in range(int(m.group(3)), int(m.group(4)) + 1)]
    return out

class Ins:
    __slots__ = ("text", "op", "kind", "w", "r", "passes", "dpp", "trans", "storedata", "srcc", "states")
    def __init__(self, text):
        self.text = text
        t = text.split(";")[0].strip()
        parts = t.split(None, 1)
        op = parts[0]; self.op = op
        rest = parts[1] if len(parts) > 1 else ""
        ops = []; depth = 0; cur = ""
        for ch in rest:
            if ch == '[': depth += 1
            if ch == ']': depth -= 1
            if ch == ',' and depth == 0: ops.append(cur.strip()); cur = ""
            else: cur += ch
        if cur.strip(): ops.append(cur.strip())
        mods = ""
        if ops:
            sp = ops[-1].split(None, 1)
            ops[-1] = sp[0]
            if len(sp) > 1: mods = sp[1]
        self.w = set(); self.r = set(); self.passes = 0; self.dpp = False; self.trans = False
        self.storedata = set(); self.srcc = set(); self.states = 1
        R = [regs_of(o) for o in ops]
        def allr(lst):
            s = set()
            for x in lst: s.update(x)
            return s
        if op == "s_nop":
            self.kind = "nop"; self.states = int(ops[0], 0) + 1
        elif op.startswith("v_mfma"):
            self.kind = "mfma"
            self.passes = 2 if "4x4x4" in op else (4 if "16x16x32" in op else (8 if "32x32x16" in op else None))
            assert self.passes, op
            self.w = set(R[0]); self.r = allr(R[1:]); self.srcc = set(R[3])
        elif op.startswith("v_"):
            self.kind = "valu"
            self.trans = op.replace("_e32", "").replace("_e64", "") in TRANS
            self.dpp = ("quad_perm" in mods or "row_" in mods or "_dpp" in op)
            if op.startswith("v_cmp"):
                self.w = set(R[0]); self.r = allr(R[1:])
                if op.startswith("v_cmpx"): self.w.add(("s", "exec"))
            elif op.startswith("v_permlane") and "swap" in op:
                self.w = allr(R[:2]); self.r = allr(R[:2])
            elif op.startswith("v_readfirstlane") or op.startswith("v_readlane"):
                self.w = set(R[0]); self.r = allr(R[1:])
            else:
                self.w = set(R[0]); self.r = allr(R[1:])
                if op.startswith(("v_fmac", "v_mac", "v_dot2c", "v_writelane")) or self.dpp: self.r.update(R[0])
                if op.startswith(("v_add_co", "v_sub_co", "v_addc_co", "v_subb_co")):
                    self.w.update(R[1]);
                if op.startswith("v_cndmask") and len(ops) == 3: self.r.add(("s", "vcc"))
        elif op.startswith("ds_"):
            self.kind = "ds"
            if op.startswith(("ds_read", "ds_bpermute", "ds_permute", "ds_swizzle")):
                self.w = set(R[0]); self.r = allr(R[1:])
            else:
                self.r = allr(R)
        elif op.startswith(("buffer_", "global_")):
            self.kind = "vmem"
            islds = " lds" in (" " + mods) or mods.startswith("lds")
            if op.startswith("buffer_load") or op.startswith("global_load"):
                if islds: self.r = allr(R); self.r.add(("s", "m0lds"))
                else: self.w = set(R[0]); self.r = allr(R[1:])
            elif op in ("buffer_inv", "buffer_wbl2"):
                pass
            else:
                self.r = allr(R)
                if op.startswith("buffer_store") and ("x4" in op or "x3" in op): self.storedata = set(R[0])
                if op.startswith("global_store") and ("x4" in op or "x3" in op): self.storedata = set(R[1])
                if "atomic" in op and " sc0" in (" " + mods): self.w = set(R[0])
        elif op.startswith("s_"):
            self.kind = "salu"
            if op.startswith(("s_cmp", "s_cbranch", "s_branch", "s_waitcnt", "s_barrier", "s_endpgm", "s_sleep", "s_setprio", "s_bitcmp")):
                self.r = allr(R)
            else:
                self.w = set(R[0]) if R else set(); self.r = allr(R[1:])
                if "saveexec" in op: self.w.add(("s", "exec")); self.r.add(("s", "exec"))
        else:
            raise ValueError("unknown instr: " + text)

def need_states(prev, cur):
    n = 0
    vw = {x for x in prev.w if x[0] in "va"}
    sw = {x for x in prev.w if x[0] == "s"}
    if prev.kind == "mfma":
        ov_r = vw & cur.r; ov_w = vw & cur.w
        if cur.kind == "mfma":
            if vw & cur.srcc:
                if vw == cur.srcc and prev.passes == cur.passes: n = max(n, 2 if prev.passes == 2 else 0)
                else: n = max(n, {2: 4, 4: 6, 8: 10}[prev.passes])
            if vw & (cur.r - cur.srcc) or (vw & cur.srcc & (cur.r - cur.srcc)):
                n = max(n, {2: 5, 4: 8, 8: 12}[prev.passes])
        elif ov_r or ov_w:
            n = max(n, {2: 5, 4: 8, 8: 12}[prev.passes])
        if cur.kind == "valu" and (prev.srcc & cur.w):
            n = max(n, {2: 1, 4: 3, 8: 7}[prev.passes])
    if prev.kind == "valu":
        if cur.kind == "mfma" and (vw & cur.r): n = max(n, 2)
        if cur.kind == "valu":
            if cur.dpp and (vw & cur.r): n = max(n, 2)
            if cur.op.startswith("v_permlane") and (vw & cur.r): n = max(n, 2)
            if prev.trans and (vw & cur.r): n = max(n, 1)
            if cur.op.startswith(("v_readfirstlane", "v_readlane")) and (vw & cur.r): n = max(n, 1)
            if sw & cur.r:
                n = max(n, 4 if cur.op.startswith(("v_readlane", "v_writelane")) else 2)
            if ("s", "exec") in prev.w and cur.dpp: n = max(n, 5)
        if cur.kind == "vmem" and (sw & cur.r): n = max(n, 5)
        if cur.kind == "mfma" and ("s", "exec") in prev.w: n = max(n, 4)
    if prev.kind == "salu" and ("s", "m0") in prev.w and ("s", "m0lds") in cur.r: n = max(n, 1)
    if prev.storedata and (prev.storedata & cur.w):
        n = max(n, 2 if cur.kind == "valu" else 1)
    return n

class Stream:
    def __init__(self):
        self.lines = []
        self.hists = [[]]
        self.snap = {}
    @property
    def hist(self): return self.hists[0]
    @hist.setter
    def hist(self, h): self.hists = [list(h)]
    def raw(self, s): self.lines.append(s)
    def label(self, name):
        self.lines.append(name + ":")
        for h in self.snap.get(name, []):
            self.hists.append(list(h))
    def ins(self, text):
        c = Ins(text)
        if c.kind != "nop":
            need = 0
            for hist in self.hists:
                dist = 0
                for p in reversed(hist):
                    req = need_states(p, c)
                    if req - dist > need: need = req - dist
                    dist += p.states
                    if dist >= 16: break
            while need > 0:
                k = min(need, 8)
                self.lines.append(f"s_nop {k-1}")
                n = Ins(f"s_nop {k-1}")
                for h in self.hists: h.append(n)
                need -= k
        self.lines.append(text)
        for h in self.hists: h.append(c)
        newh = []
        for i, h in enumerate(self.hists):
            if len(h) > 40: del h[:-24]
            newh.append(h)
        if len(newh) > 1:
            keep = [newh[0]]
            for h in newh[1:]:
                if len(h) >= 20 and len(newh[0]) >= 20 and all(a is b for a, b in zip(h[-20:], newh[0][-20:])): continue
                keep.append(h)
            newh = keep
        self.hists = newh
        if c.op.startswith(("s_cbranch", "s_branch")):
            tgt = text.split()[1]
            self.snap.setdefault(tgt, []).extend([list(h[-24:]) for h in self.hists])
```

```python
import struct, sys
from emit import Stream, Ins

KNAME = "interleave_layers__sliding_block_cached__sliding_block_cached__decode_kernel"

def f2u(x): return struct.unpack("<I", struct.pack("<f", x))[0]

LAYER_STRIDE = 0x30000
QS_OFF, XS_OFF, YS_OFF, OS_OFF, LSE_OFF = 0x0, 0x4000, 0x8000, 0x10000, 0x20000
SLOT_BYTES = 4 * LAYER_STRIDE
PROF_OFF = 0x100000
WAVE_BLK = 39936
W_OFF = {("q", "A"): 0, ("o", "A"): 4096, ("q", "B"): 8192, ("o", "B"): 12288}
VL_OFF = {"A": 16384, "B": 26624}
STG_OFF = 36864
KST_OFF = VL_OFF["B"]
COMMON = 4 * WAVE_BLK
OB, QB, SB, MB, YB = COMMON + 0, COMMON + 2048, COMMON + 2816, COMMON + 2880, COMMON + 2944
LDS_BYTES = 163840
NVREG = 22
NVLDS = 32 - NVREG
sWG, sV, sPass, sLay, sFast, sT = 2, 3, 4, 5, 6, 7
SRD = {"KA": 8, "VA": 12, "KB": 16, "VB": 20, "WqA": 24, "WoA": 28, "WqB": 32, "WoB": 36, "WS": 40, "XSRC": 44, "XDST": 48}
sDBG = 52
sOUT = 54
sG, sR, sH, sJ8 = 56, 57, 58, 59
sQpub, sQpoll, sOpub, sLpub, sOpoll, sLpoll, sYpub, sYpoll = 60, 61, 62, 63, 64, 65, 66, 67
mNot2, mJ3, mJ04 = 68, 70, 72
sWB, sCnt, sT2, sT3 = 74, 75, 76, 77
sWqB0, sWoB0 = 78, 79
sC = 80
sXS = 81
sStampPair = 82
sXcc = 84
sWSlo, sWShi = 86, 87
PTR = 88
vLane, vL16, vL8w, vTrLo, vTrHi, vXoff, vQoff, vOoff, vLoff, vXpub, vQpub, vL4 = range(12)
vXold = 12
vVswz, vWoffQ, vWoffO = 16, 17, 18
vStD, vStA = 19, 20
T0 = 24
KBASE = {"A": 0, "B": 128}
VBASE = {"A": 80, "B": 168}
SCR = 72

def vr(a, n=1): return f"v{a}" if n == 1 else f"v[{a}:{a+n-1}]"
def ar(a, n=1): return f"a{a}" if n == 1 else f"a[{a}:{a+n-1}]"
def sr(a, n=1): return f"s{a}" if n == 1 else f"s[{a}:{a+n-1}]"

class Gen:
    def __init__(self, cfg):
        self.cfg = cfg
        self.main = Stream(); self.ool = Stream(); self.ool.snap = self.main.snap
        self.cur = self.main
        self.vmq = []
        self.nlab = 0
        self.items = []
        self.next_item = 0
        self.k_relayout_done = {"A": 0, "B": 0}
        self.nstamp = 0
        self.profile = cfg.get("profile", False)
        self.kvflags = cfg.get("kvflags", "nt")
        self.wflags = cfg.get("wflags", "")
    def I(self, t):
        for line in t.split("\n"):
            line = line.strip()
            if line: self.cur.ins(line)
    def label(self, n): self.cur.label(n)
    def newlab(self, p):
        self.nlab += 1
        return f"{p}_{self.nlab}"
    def vm(self, tag, t):
        self.I(t); self.vmq.append(tag)
    def need(self, tag):
        idx = [i for i, x in enumerate(self.vmq) if x == tag]
        if not idx: return
        n = len(self.vmq) - 1 - idx[-1]
        assert n <= 63
        self.I(f"s_waitcnt vmcnt({n})")
        self.vmq = self.vmq[idx[-1] + 1:]
    def drain(self):
        self.I("s_waitcnt vmcnt(0)"); self.vmq = []
    def stamp(self, name):
        if not self.profile: return
        i = self.nstamp; self.nstamp += 1
        self.stamp_names.append(name)
        self.I(f"s_memtime {sr(sStampPair,2)}")
        self.I("s_waitcnt lgkmcnt(0)")
        self.I(f"v_mov_b32 {vr(vStD)}, {sr(sStampPair)}")
        self.I(f"s_lshl_b32 {sr(sT3)}, {sr(sPass)}, 8")
        self.I(f"s_mov_b64 exec, 1")
        self.I(f"buffer_store_dword {vr(vStD)}, {vr(vStA)}, {sr(SRD['WS'],4)}, {sr(sT3)} offen offset:{i*4}")
        self.I(f"s_mov_b64 exec, -1")
    def ool_begin(self):
        assert self.cur is self.main
        self.ool.hists = [list(h) for h in self.main.hists]
        self.cur = self.ool
    def ool_end(self):
        self.cur = self.main
    def p1_site(self, fn):
        lo = self.newlab("P1"); lb = self.newlab("P1B")
        self.I(f"s_cmp_eq_u32 {sr(sPass)}, 0")
        self.I(f"s_cbranch_scc1 {lo}")
        self.ool_begin()
        self.label(lo)
        fn()
        self.I("s_nop 7")
        self.I(f"s_branch {lb}")
        self.ool_end()
        self.label(lb)
    def build_items(self):
        it = []
        it += [("W", "q", "A", k) for k in range(4)]
        it += [("K", "A", n) for n in range(32)]
        it += [("V", "A", n) for n in range(32)]
        it += [("W", "o", "A", k) for k in range(4)]
        it += [("W", "q", "B", k) for k in range(4)]
        it += [("K", "B", n) for n in range(32)]
        it += [("V", "B", n) for n in range(32)]
        it += [("W", "o", "B", k) for k in range(4)]
        self.items = it
    def issue(self, cnt):
        for _ in range(cnt):
            if self.next_item >= len(self.items): return
            it = self.items[self.next_item]; self.next_item += 1
            if it[0] == "K":
                _, T, n = it
                d = KBASE[T] + 4 * n
                self.I(f"s_mov_b32 {sr(sT)}, {n*4096}")
                self.vm(it, f"buffer_load_dwordx4 {ar(d,4)}, {vr(vL16)}, {sr(SRD['K'+T],4)}, {sr(sT)} offen {self.kvflags}")
            elif it[0] == "V":
                _, T, n = it
                self.I(f"s_mov_b32 {sr(sT)}, {n*4096}")
                if n < NVREG:
                    d = VBASE[T] + 4 * n
                    self.vm(it, f"buffer_load_dwordx4 {vr(d,4)}, {vr(vL16)}, {sr(SRD['V'+T],4)}, {sr(sT)} offen {self.kvflags}")
                else:
                    if T == "B": assert self.k_relayout_done["B"] == 4, "VB LDS DMA before KB relayout finished"
                    if T == "A": pass
                    self.I(f"s_add_u32 m0, {sr(sWB)}, {VL_OFF[T] + (n-NVREG)*1024}")
                    self.vm(it, f"buffer_load_dwordx4 {vr(vVswz)}, {sr(SRD['V'+T],4)}, {sr(sT)} offen {self.kvflags} lds")
            else:
                _, m, T, k = it
                base = sWqB0 if m == "q" else sWoB0
                step = 32 * (8192 if m == "q" else 1024)
                self.I(f"s_add_u32 {sr(sT)}, {sr(base)}, {k*step}")
                self.I(f"s_add_u32 m0, {sr(sWB)}, {W_OFF[(m,T)] + k*1024}")
                voff = vWoffQ if m == "q" else vWoffO
                self.vm(it, f"buffer_load_dwordx4 {vr(voff)}, {sr(SRD['W'+m+T],4)}, {sr(sT)} offen {self.wflags} lds")
    def k_relayout(self, T, tile):
        b = KBASE[T] + 32 * tile
        w0, r0, t0, t1 = SCR, SCR + 1, SCR + 2, SCR + 3
        self.I(f"v_lshrrev_b32 {vr(t0)}, 4, {vr(vLane)}")
        self.I(f"v_and_b32 {vr(t1)}, 15, {vr(vLane)}")
        self.I(f"v_xor_b32 {vr(t1)}, {vr(t1)}, {vr(t0)}")
        self.I(f"v_lshlrev_b32 {vr(t1)}, 4, {vr(t1)}")
        self.I(f"v_lshl_add_u32 {vr(w0)}, {vr(t0)}, 8, {vr(t1)}")
        self.I(f"s_add_u32 {sr(sT)}, {sr(sWB)}, {KST_OFF}")
        self.I(f"v_add_u32 {vr(w0)}, {sr(sT)}, {vr(w0)}")
        self.I(f"v_and_b32 {vr(t0)}, 31, {vr(vLane)}")
        self.I(f"v_lshrrev_b32 {vr(t1)}, 5, {vr(vLane)}")
        self.I(f"v_lshlrev_b32 {vr(t1)}, 3, {vr(t1)}")
        self.I(f"v_and_b32 {vr(r0)}, 15, {vr(vLane)}")
        self.I(f"v_xor_b32 {vr(r0)}, {vr(r0)}, {vr(t1)}")
        self.I(f"v_lshlrev_b32 {vr(r0)}, 4, {vr(r0)}")
        self.I(f"v_lshl_add_u32 {vr(r0)}, {vr(t0)}, 8, {vr(r0)}")
        self.I(f"v_add_u32 {vr(r0)}, {sr(sT)}, {vr(r0)}")
        for i in range(8):
            m = i & 3
            a = w0
            if m:
                a = t0 if (i & 1) else t1
                self.I(f"v_xor_b32 {vr(a)}, {m<<6}, {vr(w0)}")
            self.I(f"ds_write_b128 {vr(a)}, {ar(b+4*i,4)} offset:{i*1024}")
        self.I("s_waitcnt lgkmcnt(0)")
        for cc in range(8):
            a = r0
            if cc:
                a = t0 if (cc & 1) else t1
                self.I(f"v_xor_b32 {vr(a)}, {cc<<4}, {vr(r0)}")
            self.I(f"ds_read_b128 {ar(b+4*cc,4)}, {vr(a)}")
        self.I("s_waitcnt lgkmcnt(0)")
        self.k_relayout_done[T] += 1
    def v_relayout(self, T, pieces):
        w0 = SCR
        self.I(f"s_add_u32 {sr(sT)}, {sr(sWB)}, {STG_OFF}")
        self.I(f"v_add_u32 {vr(w0)}, {sr(sT)}, {vr(vVswz)}")
        for g0 in range(0, len(pieces), 3):
            grp = pieces[g0:g0+3]
            for s, n in enumerate(grp):
                d = VBASE[T] + 4 * n
                self.I(f"ds_write_b128 {vr(w0)}, {vr(d,4)} offset:{s*1024}")
            self.I("s_waitcnt lgkmcnt(0)")
            for s, n in enumerate(grp):
                d = VBASE[T] + 4 * n
                self.I(f"ds_read_b64_tr_b16 {vr(d,2)}, {vr(vTrLo)} offset:{STG_OFF + s*1024}")
                self.I(f"ds_read_b64_tr_b16 {vr(d+2,2)}, {vr(vTrHi)} offset:{STG_OFF + s*1024}")
            self.I("s_waitcnt lgkmcnt(0)")
    def hop(self, name, issue_fn, check_fn, p1_fn, pre_wait=None):
        lo, chk, ok, rt = self.newlab("HO"), self.newlab("HC"), self.newlab("HK"), self.newlab("HR")
        issue_fn(True)
        if pre_wait: pre_wait()
        self.I(f"s_cmp_eq_u32 {sr(sPass)}, 0")
        self.I(f"s_cbranch_scc1 {lo}")
        vmq_main = list(self.vmq)
        self.ool_begin()
        self.label(lo)
        p1_fn(lambda: issue_fn(True))
        self.I("s_nop 7")
        self.I(f"s_branch {chk}")
        self.ool_end()
        self.I("s_waitcnt vmcnt(0)")
        self.label(chk)
        check_fn()
        self.I(f"s_cbranch_vccnz {rt}")
        self.label(ok)
        self.ool_begin()
        self.label(rt)
        self.I(f"s_mov_b32 {sr(sCnt)}, 0")
        lp = self.newlab("HL")
        self.label(lp)
        issue_fn(False)
        self.I("s_waitcnt vmcnt(0)")
        check_fn()
        dn = self.newlab("HD")
        self.I(f"s_cbranch_vccz {dn}")
        self.I(f"s_add_u32 {sr(sCnt)}, {sr(sCnt)}, 1")
        self.I(f"s_cmp_lt_u32 {sr(sCnt)}, {self.cfg.get('spin', 40000)}")
        self.I(f"s_cbranch_scc1 {lp}")
        self.label(dn)
        self.I("s_nop 7")
        self.I(f"s_branch {ok}")
        self.ool_end()

    def prologue(self):
        I = self.I
        I(f"s_cmp_ge_u32 {sr(sWG)}, 256")
        I("s_cbranch_scc1 L_END")
        I(f"s_load_dwordx8 s[88:95], s[0:1], 0")
        I(f"s_load_dwordx2 s[96:97], s[0:1], 32")
        I(f"s_load_dwordx2 s[98:99], s[0:1], 96")
        I(f"s_load_dwordx4 s[16:19], s[0:1], 48")
        I(f"s_load_dwordx4 s[32:35], s[0:1], 64")
        I(f"s_load_dwordx4 s[52:55], s[0:1], 80")
        I(f"v_lshrrev_b32 v1, 6, v0")
        I(f"v_and_b32 v0, 63, v0")
        I(f"v_readfirstlane_b32 {sr(sV)}, v1")
        I(f"s_and_b32 {sr(sG)}, {sr(sWG)}, 7")
        I(f"s_lshr_b32 {sr(sR)}, {sr(sWG)}, 3")
        I(f"s_lshr_b32 {sr(sT)}, {sr(sR)}, 3")
        I(f"s_lshl_b32 {sr(sH)}, {sr(sG)}, 2")
        I(f"s_add_u32 {sr(sH)}, {sr(sH)}, {sr(sT)}")
        I(f"s_and_b32 {sr(sJ8)}, {sr(sR)}, 7")
        I(f"v_lshlrev_b32 {vr(vL16)}, 4, {vr(vLane)}")
        I(f"s_lshr_b32 {sr(sT)}, {sr(sJ8)}, 2")
        I(f"s_lshl_b32 {sr(sT)}, {sr(sT)}, 5")
        I(f"s_add_u32 {sr(sT)}, {sr(sT)}, {sr(sH)}")
        I(f"s_lshl_b32 {sr(sT)}, {sr(sT)}, 21")
        I(f"s_and_b32 {sr(sT2)}, {sr(sJ8)}, 3")
        I(f"s_lshl_b32 {sr(sT2)}, {sr(sT2)}, 17")
        I(f"s_add_u32 {sr(sT)}, {sr(sT)}, {sr(sT2)}")
        I(f"s_add_u32 {sr(sT)}, {sr(sT)}, {6144*256}")
        I(f"s_lshl_b32 {sr(sT2)}, {sr(sV)}, 10")
        I(f"s_add_u32 {sr(sT3)}, {sr(sT)}, {sr(sT2)}")
        I(f"s_mul_i32 {sr(sWB)}, {sr(sV)}, {WAVE_BLK}")
        I(f"v_lshrrev_b32 v24, 1, {vr(vLane)}")
        I(f"v_bfe_u32 v25, v24, 2, 2")
        I(f"v_lshlrev_b32 v25, 3, v25")
        I(f"v_lshrrev_b32 v26, 4, v24")
        I(f"v_lshl_add_u32 v25, v26, 2, v25")
        I(f"v_and_b32 v26, 3, v24")
        I(f"v_add_u32 v25, v25, v26")
        I(f"v_and_b32 v26, 1, {vr(vLane)}")
        I(f"v_lshlrev_b32 v26, 4, v26")
        I(f"v_lshl_add_u32 {vr(vWoffQ)}, v25, 13, v26")
        I(f"v_lshl_add_u32 {vr(vWoffO)}, v25, 10, v26")
        I(f"s_lshl_b32 {sr(sWqB0)}, {sr(sV)}, 20")
        I(f"s_lshl_b32 {sr(sWoB0)}, {sr(sV)}, 17")
        I("s_waitcnt lgkmcnt(0)")
        I(f"s_mov_b32 {sr(sWSlo)}, s98"); I(f"s_mov_b32 {sr(sWShi)}, s99")
        I(f"s_mov_b32 s40, s98"); I(f"s_mov_b32 s41, s99"); I(f"s_mov_b32 s42, {PROF_OFF + 0x100000}"); I("s_mov_b32 s43, 0x20000")
        KVN = 128 * 1024
        I(f"s_add_u32 s8, s90, {sr(sT3)}"); I("s_addc_u32 s9, s91, 0"); I(f"s_mov_b32 s10, {KVN}"); I("s_mov_b32 s11, 0x20000")
        I(f"s_lshl_b32 {sr(sT)}, {sr(sH)}, 8"); I(f"s_lshl_b32 {sr(sT2)}, {sr(sJ8)}, 5"); I(f"s_add_u32 {sr(sT)}, {sr(sT)}, {sr(sT2)}")
        I(f"s_add_u32 s24, s94, {sr(sT)}"); I("s_addc_u32 s25, s95, 0"); I(f"s_sub_u32 s26, {512*8192}, {sr(sT)}"); I("s_mov_b32 s27, 0x20000")
        I(f"s_mov_b32 s100, {sr(sT)}")
        I(f"s_getreg_b32 {sr(sXcc)}, hwreg(HW_REG_XCC_ID, 0, 4)")
        I(f"s_and_b32 {sr(sXcc)}, {sr(sXcc)}, 7")
        lskip = self.newlab("NOCLR")
        I(f"s_cmp_lg_u32 {sr(sV)}, 3"); I(f"s_cbranch_scc1 {lskip}")
        I("v_mov_b32 v28, -1"); I("v_mov_b32 v29, -1"); I("v_mov_b32 v30, -1"); I("v_mov_b32 v31, -1")
        I(f"s_mul_i32 {sr(sT)}, {sr(sWG)}, {SLOT_BYTES//256}")
        for o in range(0, SLOT_BYTES // 256, 1024):
            I(f"buffer_store_dwordx4 v[28:31], {vr(vL16)}, s[40:43], {sr(sT)} offen offset:{o} sc1")
        I(f"s_lshl_b32 {sr(sT)}, {sr(sXcc)}, 3")
        I(f"s_lshl_b64 s[76:77], 1, {sr(sT)}")
        I("v_mov_b32 v28, s76"); I("v_mov_b32 v29, s77")
        I(f"s_lshr_b32 {sr(sT)}, {sr(sG)}, 1"); I(f"s_lshl_b32 {sr(sT)}, {sr(sT)}, 6")
        I(f"s_and_b32 s76, {sr(sG)}, 1"); I("s_lshl_b32 s76, s76, 3"); I(f"s_add_u32 {sr(sT)}, {sr(sT)}, s76")
        I(f"v_mov_b32 v30, {sr(sT)}")
        I("s_waitcnt vmcnt(0)")
        I("s_mov_b64 exec, 1")
        I("global_atomic_add_x2 v30, v[28:29], s[54:55]")
        I("s_mov_b64 exec, -1")
        self.label(lskip)
        I(f"s_lshr_b32 {sr(sT)}, {sr(sJ8)}, 2"); I(f"s_lshl_b32 {sr(sT)}, {sr(sT)}, 5"); I(f"s_add_u32 {sr(sT)}, {sr(sT)}, {sr(sH)}")
        I(f"s_lshl_b32 {sr(sT)}, {sr(sT)}, 21")
        I(f"s_and_b32 {sr(sT2)}, {sr(sJ8)}, 3"); I(f"s_lshl_b32 {sr(sT2)}, {sr(sT2)}, 17"); I(f"s_add_u32 {sr(sT)}, {sr(sT)}, {sr(sT2)}")
        I(f"s_add_u32 {sr(sT)}, {sr(sT)}, {6144*256}")
        I(f"s_lshl_b32 {sr(sT2)}, {sr(sV)}, 10")
        I(f"s_add_u32 {sr(sT3)}, {sr(sT)}, {sr(sT2)}")
        self.issue(4 + self.cfg.get("pro_k", 8))
        I(f"s_add_u32 s12, s92, {sr(sT3)}"); I("s_addc_u32 s13, s93, 0"); I(f"s_mov_b32 s14, {KVN}"); I("s_mov_b32 s15, 0x20000")
        I(f"s_mov_b32 s76, s18"); I(f"s_mov_b32 s22, s19")
        I(f"s_add_u32 s20, s76, {sr(sT3)}"); I("s_addc_u32 s21, s22, 0"); I(f"s_mov_b32 s22, {KVN}"); I("s_mov_b32 s23, 0x20000")
        I(f"s_add_u32 s16, s16, {sr(sT3)}"); I("s_addc_u32 s17, s17, 0"); I(f"s_mov_b32 s18, {KVN}"); I("s_mov_b32 s19, 0x20000")
        I(f"s_lshl_b32 {sr(sT)}, {sr(sG)}, 19"); I(f"s_lshl_b32 {sr(sT2)}, {sr(sR)}, 5"); I(f"s_add_u32 {sr(sT)}, {sr(sT)}, {sr(sT2)}")
        I(f"s_add_u32 s28, s96, {sr(sT)}"); I("s_addc_u32 s29, s97, 0"); I(f"s_sub_u32 s30, {4096*1024}, {sr(sT)}"); I("s_mov_b32 s31, 0x20000")
        I(f"s_add_u32 s36, s34, {sr(sT)}"); I("s_addc_u32 s37, s35, 0"); I(f"s_sub_u32 s38, {4096*1024}, {sr(sT)}"); I("s_mov_b32 s39, 0x20000")
        I(f"s_add_u32 s32, s32, s100"); I("s_addc_u32 s33, s33, 0"); I(f"s_sub_u32 s34, {512*8192}, s100"); I("s_mov_b32 s35, 0x20000")
        I("s_mov_b32 s44, s88"); I("s_mov_b32 s45, s89"); I("s_mov_b32 s46, 2048"); I("s_mov_b32 s47, 0x20000")
        I("s_mov_b32 s76, s52"); I("s_mov_b32 s77, s53"); I("s_mov_b32 s52, s54"); I("s_mov_b32 s53, s55"); I("s_mov_b32 s54, s76"); I("s_mov_b32 s55, s77")
        I("s_mov_b32 s51, 0x20000"); I("s_mov_b32 s48, s98"); I("s_mov_b32 s49, s99"); I("s_mov_b32 s50, 0")
        for (m, val) in ((mNot2, 0xFFFBFFFB), (mJ3, 0x00070007), (mJ04, 0x00110011)):
            I(f"s_mov_b32 {sr(m)}, {val:#x}"); I(f"s_mov_b32 {sr(m+1)}, {val:#x}")
        I(f"s_mov_b32 {sr(sC)}, {f2u(128**-0.5 * 1.4426950408889634):#x}")
        I(f"s_mov_b32 {sr(sPass)}, 0"); I(f"s_mov_b32 {sr(sLay)}, 0"); I(f"s_mov_b32 {sr(sFast)}, 0")
        I(f"s_lshl_b32 {sr(sQpub)}, {sr(sH)}, 9")
        I(f"s_lshr_b32 {sr(sT)}, {sr(sJ8)}, 2"); I(f"s_lshl_b32 {sr(sT)}, {sr(sT)}, 8")
        I(f"s_add_u32 {sr(sQpoll)}, {sr(sQpub)}, {sr(sT)}")
        I(f"s_lshl_b32 {sr(sT)}, {sr(sG)}, 5"); I(f"s_add_u32 {sr(sT2)}, {sr(sT)}, {sr(sR)}")
        I(f"s_lshl_b32 {sr(sOpub)}, {sr(sT2)}, 8"); I(f"s_add_u32 {sr(sOpub)}, {sr(sOpub)}, {OS_OFF}")
        I(f"s_lshl_b32 {sr(sLpub)}, {sr(sT2)}, 2"); I(f"s_add_u32 {sr(sLpub)}, {sr(sLpub)}, {LSE_OFF}")
        I(f"s_lshl_b32 {sr(sT2)}, {sr(sV)}, 3"); I(f"s_add_u32 {sr(sT2)}, {sr(sT2)}, {sr(sT)}")
        I(f"s_lshl_b32 {sr(sOpoll)}, {sr(sT2)}, 8"); I(f"s_add_u32 {sr(sOpoll)}, {sr(sOpoll)}, {OS_OFF}")
        I(f"s_lshl_b32 {sr(sLpoll)}, {sr(sT2)}, 2"); I(f"s_add_u32 {sr(sLpoll)}, {sr(sLpoll)}, {LSE_OFF}")
        I(f"s_lshl_b32 {sr(sYpoll)}, {sr(sR)}, 10"); I(f"s_add_u32 {sr(sYpoll)}, {sr(sYpoll)}, {YS_OFF}")
        I(f"s_lshl_b32 {sr(sT)}, {sr(sG)}, 7"); I(f"s_add_u32 {sr(sYpub)}, {sr(sYpoll)}, {sr(sT)}")
        I(f"s_lshl_b32 {sr(sXS)}, {sr(sG)}, 11"); I(f"s_add_u32 {sr(sXS)}, {sr(sXS)}, {XS_OFF}")
        I(f"v_lshlrev_b32 {vr(vL4)}, 2, {vr(vLane)}")
        I(f"v_lshlrev_b32 {vr(vL8w)}, 3, {vr(vLane)}"); I(f"v_add_u32 {vr(vL8w)}, {sr(sWB)}, {vr(vL8w)}")
        I(f"v_lshrrev_b32 v24, 4, {vr(vLane)}")
        I(f"v_and_b32 v25, 15, {vr(vLane)}")
        I("v_lshlrev_b32 v26, 2, v24"); I("v_xor_b32 v26, v26, v25"); I("v_lshlrev_b32 v26, 4, v26")
        I(f"v_lshl_add_u32 {vr(vVswz)}, v24, 8, v26")
        I(f"v_bfe_u32 v26, {vr(vLane)}, 2, 2")
        I(f"v_bfe_u32 v27, {vr(vLane)}, 1, 1")
        I("v_lshl_add_u32 v27, v24, 1, v27")
        I("v_lshlrev_b32 v28, 2, v26"); I("v_xor_b32 v27, v27, v28"); I("v_lshlrev_b32 v27, 4, v27")
        I("v_lshl_add_u32 v27, v26, 8, v27")
        I(f"v_and_b32 v28, 1, {vr(vLane)}"); I("v_lshl_add_u32 v27, v28, 3, v27")
        I(f"v_add_u32 {vr(vTrLo)}, {sr(sWB)}, v27")
        I(f"v_xor_b32 {vr(vTrHi)}, 0x80, {vr(vTrLo)}")
        I("v_and_b32 v26, 1, v25"); I("v_lshlrev_b32 v26, 10, v26"); I("v_lshl_add_u32 v26, v24, 4, v26")
        I(f"s_lshl_b32 {sr(sT)}, {sr(sV)}, 8"); I(f"v_add_u32 {vr(vXoff)}, {sr(sT)}, v26")
        I(f"v_lshrrev_b32 v26, 2, {vr(vLane)}"); I(f"v_lshlrev_b32 {vr(vQoff)}, 4, v26")
        I("v_and_b32 v26, 7, v25"); I(f"v_lshlrev_b32 {vr(vLoff)}, 2, v26")
        I("v_lshlrev_b32 v26, 8, v26"); I(f"v_lshl_add_u32 {vr(vOoff)}, v24, 4, v26")
        I(f"v_bfe_u32 v26, {vr(vLane)}, 2, 1"); I("v_lshlrev_b32 v26, 10, v26")
        I(f"v_and_b32 v27, 3, {vr(vLane)}"); I("v_lshl_add_u32 v26, v27, 3, v26")
        I(f"s_lshl_b32 {sr(sT)}, {sr(sR)}, 5"); I(f"v_add_u32 {vr(vXpub)}, {sr(sT)}, v26")
        I("v_and_b32 v26, 1, v24"); I("v_lshlrev_b32 v26, 8, v26"); I("v_lshl_add_u32 v26, v25, 1, v26")
        I(f"s_lshl_b32 {sr(sT)}, {sr(sJ8)}, 5"); I(f"v_add_u32 {vr(vQpub)}, {sr(sT)}, v26")
        if self.profile:
            I(f"s_lshl_b32 {sr(sT)}, {sr(sWG)}, 2"); I(f"s_add_u32 {sr(sT)}, {sr(sT)}, {sr(sV)}"); I(f"s_lshl_b32 {sr(sT)}, {sr(sT)}, 10")
            I(f"s_add_u32 {sr(sT)}, {sr(sT)}, {PROF_OFF}"); I(f"v_mov_b32 {vr(vStA)}, {sr(sT)}")
            I(f"s_memrealtime {sr(sStampPair,2)}"); I("s_waitcnt lgkmcnt(0)")
            I(f"v_mov_b32 {vr(vStD)}, {sr(sStampPair)}")
            I("s_mov_b64 exec, 1")
            I(f"buffer_store_dword {vr(vStD)}, {vr(vStA)}, {sr(SRD['WS'],4)}, 0 offen offset:1020")
            I("s_mov_b64 exec, -1")
        self.vm("xold", f"buffer_load_dwordx2 v[{vXold}:{vXold+1}], {vr(vXpub)}, s[44:47], 0 offen")
        self.xold_unpacked = False

    def pub(self, text_fn):
        lf, le = self.newlab("PF"), self.newlab("PE")
        self.I(f"s_cmp_lg_u32 {sr(sFast)}, 0")
        self.I(f"s_cbranch_scc1 {lf}")
        self.I(text_fn("sc1"))
        self.I(f"s_branch {le}")
        self.label(lf)
        self.I(text_fn(""))
        self.label(le)

    def layer(self, T, plan):
        I = self.I
        last = (T == "B")
        X, W, DQ, DS = 24, 40, 56, 60
        self.stamp(f"{T}:start")
        self.p1_site(lambda: plan("D0"))
        for k in range(4):
            for t in range(2):
                I(f"ds_read_b64_tr_b16 {vr(W+4*k+2*t,2)}, {vr(vL8w)} offset:{W_OFF[('q',T)] + k*1024 + t*512}")
        for i in range(16): I(f"v_mov_b32 {vr(X+i)}, 0x3f803f80")
        I(f"v_and_b32 v66, 15, {vr(vLane)}")
        I(f"v_lshrrev_b32 v67, 4, {vr(vLane)}")
        I(f"v_lshlrev_b32 v64, 6, v66"); I(f"v_lshl_add_u32 v64, v67, 4, v64")
        I(f"s_mul_i32 {sr(sT)}, {sr(sV)}, 192"); I(f"s_add_u32 {sr(sT)}, {sr(sT)}, {QB}"); I(f"v_add_u32 v64, {sr(sT)}, v64")
        I(f"s_lshl_b32 {sr(sT)}, {sr(sV)}, 4"); I(f"s_add_u32 {sr(sT)}, {sr(sT)}, {SB}")
        I(f"v_lshlrev_b32 v65, 3, {vr(vLane)}"); I(f"v_add_u32 v65, {sr(sT)}, v65")
        I(f"v_add_u32 v68, {QB}, {vr(vL4)}")
        I(f"v_lshlrev_b32 v66, 2, v66"); I(f"v_add_u32 v66, {QB+128}, v66")
        I(f"v_and_b32 v67, 1, v67"); I(f"v_lshlrev_b32 v67, 3, v67"); I(f"v_add_u32 v67, {SB}, v67")
        def d_issue(track):
            I(f"s_mov_b64 exec, {sr(mNot2,2)}")
            for k in range(4):
                t = f"buffer_load_dwordx4 {vr(X+4*k,4)}, {vr(vXoff)}, {sr(SRD['XSRC'],4)}, 0 offen offset:{64*k} sc1"
                if track: self.vm("pollD", t)
                else: I(t)
            I("s_mov_b64 exec, -1")
        def chk16(base, extra=None, ta=69, tb=70):
            def f():
                a, b = vr(ta), vr(tb)
                I(f"v_max3_u32 {a}, {vr(base)}, {vr(base+1)}, {vr(base+2)}")
                I(f"v_max3_u32 {b}, {vr(base+3)}, {vr(base+4)}, {vr(base+5)}")
                I(f"v_max3_u32 {a}, {a}, {vr(base+6)}, {vr(base+7)}")
                I(f"v_max3_u32 {b}, {b}, {vr(base+8)}, {vr(base+9)}")
                I(f"v_max3_u32 {a}, {a}, {vr(base+10)}, {vr(base+11)}")
                I(f"v_max3_u32 {b}, {b}, {vr(base+12)}, {vr(base+13)}")
                I(f"v_max3_u32 {a}, {a}, {vr(base+14)}, {vr(base+15)}")
                if extra is not None: I(f"v_max3_u32 {a}, {a}, {b}, {vr(extra)}")
                else: I(f"v_max_u32 {a}, {a}, {b}")
                I(f"v_cmp_eq_u32 vcc, -1, {a}")
            return f
        self.hop("D", d_issue, chk16(X), lambda iss: plan("D", iss))
        self.stamp(f"{T}:Dok")
        I("s_waitcnt lgkmcnt(0)")
        for k in range(4):
            c = "0" if k == 0 else vr(DQ, 4)
            I(f"v_mfma_f32_16x16x32_bf16 {vr(DQ,4)}, {vr(W+4*k,4)}, {vr(X+4*k,4)}, {c}")
            c = "0" if k == 0 else vr(DS, 4)
            I(f"v_mfma_f32_16x16x32_bf16 {vr(DS,4)}, {vr(X+4*k,4)}, {vr(X+4*k,4)}, {c}")
        I(f"v_cmp_eq_u32 vcc, 1, {vr(vLane)}")
        I(f"s_mov_b64 exec, {sr(mJ3,2)}")
        I(f"ds_write_b128 v64, {vr(DQ,4)}")
        I("s_mov_b64 exec, 3")
        I(f"v_cndmask_b32 {vr(DS+1)}, {vr(DS)}, {vr(DS+1)}, vcc")
        I(f"ds_write_b64 v65, v[{DS+1}:{DS+2}]") if (DS + 1) % 2 == 0 else None
        if (DS + 1) % 2 != 0:
            I(f"v_mov_b32 {vr(DS)}, {vr(DS+1)}"); I(f"v_mov_b32 {vr(DS+1)}, {vr(DS+2)}")
            I(f"ds_write_b64 v65, v[{DS}:{DS+1}]")
        I("s_mov_b64 exec, -1")
        I("s_waitcnt lgkmcnt(0)")
        I("s_barrier")
        self.stamp(f"{T}:Qbar")
        lf = self.newlab("FQ")
        I(f"s_cmp_lg_u32 {sr(sV)}, 0"); I(f"s_cbranch_scc1 {lf}")
        I("ds_read2_b32 v[24:25], v68 offset0:0 offset1:48")
        I("ds_read2_b32 v[26:27], v68 offset0:96 offset1:144")
        I("ds_read2_b32 v[28:29], v66 offset0:0 offset1:48")
        I("ds_read2_b32 v[30:31], v66 offset0:96 offset1:144")
        for w in range(4): I(f"ds_read_b64 v[{32+2*w}:{33+2*w}], v67 offset:{16*w}")
        I("s_waitcnt lgkmcnt(0)")
        I("v_add_f32 v33, v33, v35"); I("v_add_f32 v37, v37, v39"); I("v_add_f32 v32, v32, v34"); I("v_add_f32 v36, v36, v38")
        I("v_add_f32 v24, v24, v25"); I("v_add_f32 v26, v26, v27"); I("v_add_f32 v28, v28, v29"); I("v_add_f32 v30, v30, v31")
        I("v_add_f32 v33, v33, v37"); I("v_add_f32 v32, v32, v36"); I("v_add_f32 v24, v24, v26"); I("v_add_f32 v28, v28, v30")
        I(f"v_mul_f32 v33, {f2u(1/512):#x}, v33")
        I(f"v_mul_f32 v32, {f2u(1/512):#x}, v32")
        I("v_fma_f32 v32, -v33, v33, v32")
        I("v_max_f32 v32, 0, v32")
        I(f"v_add_f32 v32, {f2u(1e-5):#x}, v32")
        I("v_rsq_f32 v32, v32")
        I("v_fma_f32 v24, -v33, v28, v24")
        I("v_mul_f32 v24, v24, v32")
        I("v_mov_b32_dpp v25, v24 quad_perm:[1,1,3,3] row_mask:0xf bank_mask:0xf")
        I("v_cvt_pk_bf16_f32 v24, v24, v25")
        I("s_mov_b64 exec, 0x55555555")
        self.pub(lambda fl: f"buffer_store_dword v24, {vr(vQpub)}, {sr(SRD['WS'],4)}, {sr(sQpub)} offen {fl}")
        I("s_mov_b64 exec, -1")
        self.label(lf)
        self.stamp(f"{T}:Qpub")
        Q = 76
        def a_issue(track):
            t = f"buffer_load_dwordx4 {vr(Q,4)}, {vr(vQoff)}, {sr(SRD['WS'],4)}, {sr(sQpoll)} offen sc1"
            if track: self.vm("pollA", t)
            else: I(t)
        def a_check():
            I(f"v_max3_u32 v69, {vr(Q)}, {vr(Q+1)}, {vr(Q+2)}")
            I(f"v_max_u32 v69, v69, {vr(Q+3)}")
            I("v_cmp_eq_u32 vcc, -1, v69")
        self.hop("A", a_issue, a_check, lambda iss: plan("A", iss))
        self.stamp(f"{T}:Aok")
        S = 24
        kb = KBASE[T]
        for cc in range(8):
            for u in range(2):
                for tl in range(4):
                    c = "0" if (cc == 0 and u == 0) else vr(S+4*tl, 4)
                    I(f"v_mfma_f32_4x4x4_16b_bf16 {vr(S+4*tl,4)}, {vr(Q+2*u,2)}, {ar(kb+32*tl+4*cc+2*u,2)}, {c} cbsz:3 abid:{cc}")
        VT = 40
        def vtemp_reads():
            for n in range(NVLDS):
                I(f"ds_read_b64_tr_b16 {vr(VT+4*n,2)}, {vr(vTrLo)} offset:{VL_OFF[T] + n*1024}")
                I(f"ds_read_b64_tr_b16 {vr(VT+4*n+2,2)}, {vr(vTrHi)} offset:{VL_OFF[T] + n*1024}")
        vtemp_reads()
        I(f"v_permlane32_swap_b32 {vr(S)}, {vr(S+4)}")
        I(f"v_permlane32_swap_b32 {vr(S+8)}, {vr(S+12)}")
        I(f"v_add_f32 {vr(S)}, {vr(S)}, {vr(S+4)}")
        I(f"v_add_f32 {vr(S+8)}, {vr(S+8)}, {vr(S+12)}")
        M_, TM = 25, 26
        I(f"v_max_f32 {vr(M_)}, {vr(S)}, {vr(S+8)}")
        for rr in (8, 4, 2, 1):
            I(f"v_max_f32_dpp {vr(M_)}, {vr(M_)}, {vr(M_)} row_ror:{rr} row_mask:0xf bank_mask:0xf")
        I(f"v_mov_b32 {vr(TM)}, {vr(M_)}"); I(f"v_permlane16_swap_b32 {vr(M_)}, {vr(TM)}"); I(f"v_max_f32 {vr(M_)}, {vr(M_)}, {vr(TM)}")
        I(f"v_mov_b32 {vr(TM)}, {vr(M_)}"); I(f"v_permlane32_swap_b32 {vr(M_)}, {vr(TM)}"); I(f"v_max_f32 {vr(M_)}, {vr(M_)}, {vr(TM)}")
        I(f"v_mul_f32 {vr(M_)}, {sr(sC)}, {vr(M_)}")
        I(f"v_fma_f32 {vr(S)}, {vr(S)}, {sr(sC)}, -{vr(M_)}")
        I(f"v_fma_f32 {vr(S+8)}, {vr(S+8)}, {sr(sC)}, -{vr(M_)}")
        I(f"v_exp_f32 {vr(S)}, {vr(S)}")
        I(f"v_exp_f32 {vr(S+8)}, {vr(S+8)}")
        P0, P1 = 34, 38
        I(f"v_mov_b32_dpp {vr(TM)}, {vr(S)} quad_perm:[1,1,3,3] row_mask:0xf bank_mask:0xf")
        I(f"v_mov_b32_dpp v27, {vr(S+8)} quad_perm:[1,1,3,3] row_mask:0xf bank_mask:0xf")
        I(f"v_cvt_pk_bf16_f32 {vr(P0)}, {vr(S)}, {vr(TM)}")
        I(f"v_cvt_pk_bf16_f32 {vr(P1)}, {vr(S+8)}, v27")
        I(f"v_mov_b32_dpp {vr(P0+1)}, {vr(P0)} quad_perm:[2,2,2,2] row_mask:0xf bank_mask:0xf")
        I(f"v_mov_b32_dpp {vr(P1+1)}, {vr(P1)} quad_perm:[2,2,2,2] row_mask:0xf bank_mask:0xf")
        I(f"v_add_f32 v33, {vr(S)}, {vr(S+8)}")
        self.stamp(f"{T}:SM")
        def pv_p1():
            I("s_waitcnt lgkmcnt(0)")
            plan("PV")
            vtemp_reads()
        self.p1_site(pv_p1)
        self.stamp(f"{T}:Vok")
        OL, OH = 28, 24
        I(f"v_mov_b32 v36, {vr(M_)}")
        lsum = [f"v_add_f32_dpp v33, v33, v33 row_ror:{rr} row_mask:0xf bank_mask:0xf" for rr in (8, 4, 2, 1)]
        lsum += ["v_mov_b32 v37, v33", "v_permlane16_swap_b32 v33, v37", "v_add_f32 v33, v33, v37",
                 "v_mov_b32 v37, v33", "v_permlane32_swap_b32 v33, v37", "v_add_f32 v37, v33, v37"]
        order = list(range(NVREG)) + list(range(NVREG, 32))
        cnt = 0
        first = True
        for n in order:
            J, b = n >> 4, n & 15
            Pp = P0 if J == 0 else P1
            src = VBASE[T] + 4 * n if n < NVREG else VT + 4 * (n - NVREG)
            if n == NVREG: I("s_waitcnt lgkmcnt(0)")
            c = "0" if first else vr(OL, 4)
            I(f"v_mfma_f32_4x4x4_16b_bf16 {vr(OL,4)}, {vr(Pp,2)}, {vr(src,2)}, {c} cbsz:4 abid:{b}")
            c = "0" if first else vr(OH, 4)
            I(f"v_mfma_f32_4x4x4_16b_bf16 {vr(OH,4)}, {vr(Pp,2)}, {vr(src+2,2)}, {c} cbsz:4 abid:{b}")
            first = False
            if cnt % 2 == 0 and lsum and n >= 1:
                I(lsum.pop(0))
            else:
                I("s_nop 0")
            cnt += 1
        assert not lsum
        I(f"s_lshl_b32 {sr(sT)}, {sr(sV)}, 9"); I(f"s_add_u32 {sr(sT)}, {sr(sT)}, {OB}"); I(f"v_add_u32 v40, {sr(sT)}, {vr(vL4)}")
        I(f"s_lshl_b32 {sr(sT)}, {sr(sV)}, 3"); I(f"s_add_u32 {sr(sT)}, {sr(sT)}, {MB}"); I(f"v_mov_b32 v41, {sr(sT)}")
        I(f"v_lshlrev_b32 v42, 3, {vr(vLane)}"); I(f"v_add_u32 v42, {OB}, v42"); I(f"v_mov_b32 v43, {MB}")
        I(f"ds_write_b32 v40, {vr(OL)}")
        I(f"ds_write_b32 v40, {vr(OH)} offset:256")
        I("s_mov_b64 exec, 1")
        I("ds_write_b64 v41, v[36:37]")
        I("s_mov_b64 exec, -1")
        self.stamp(f"{T}:PV")
        self.p1_site(lambda: plan("B0"))
        W2 = 56
        for k in range(4):
            for t in range(2):
                I(f"ds_read_b64_tr_b16 {vr(W2+4*k+2*t,2)}, {vr(vL8w)} offset:{W_OFF[('o',T)] + k*1024 + t*512}")
        I("s_waitcnt lgkmcnt(0)")
        I("s_barrier")
        self.stamp(f"{T}:Obar")
        lc = self.newlab("CB")
        I(f"s_cmp_lg_u32 {sr(sV)}, 0"); I(f"s_cbranch_scc1 {lc}")
        I("ds_read_b128 v[24:27], v43"); I("ds_read_b128 v[28:31], v43 offset:16")
        for w in range(4): I(f"ds_read_b64 v[{32+2*w}:{33+2*w}], v42 offset:{512*w}")
        I("s_waitcnt lgkmcnt(4)")
        I("v_max3_f32 v44, v24, v26, v28"); I("v_max_f32 v44, v44, v30")
        I("v_sub_f32 v24, v24, v44"); I("v_sub_f32 v26, v26, v44"); I("v_sub_f32 v28, v28, v44"); I("v_sub_f32 v30, v30, v44")
        I("v_exp_f32 v24, v24"); I("v_exp_f32 v26, v26"); I("v_exp_f32 v28, v28"); I("v_exp_f32 v30, v30")
        I("v_mul_f32 v45, v24, v25"); I("v_fmac_f32 v45, v26, v27"); I("v_fmac_f32 v45, v28, v29"); I("v_fmac_f32 v45, v30, v31")
        I("v_rcp_f32 v46, v45"); I("v_log_f32 v47, v45")
        I("s_waitcnt lgkmcnt(0)")
        I("v_mul_f32 v48, v24, v32"); I("v_mul_f32 v49, v24, v33")
        I("v_fmac_f32 v48, v26, v34"); I("v_fmac_f32 v49, v26, v35")
        I("v_fmac_f32 v48, v28, v36"); I("v_fmac_f32 v49, v28, v37")
        I("v_fmac_f32 v48, v30, v38"); I("v_fmac_f32 v49, v30, v39")
        I("v_mul_f32 v48, v48, v46"); I("v_mul_f32 v49, v49, v46")
        I("v_cvt_pk_bf16_f32 v48, v48, v49")
        I("v_add_f32 v47, v47, v44")
        self.pub(lambda fl: f"buffer_store_dword v48, {vr(vL4)}, {sr(SRD['WS'],4)}, {sr(sOpub)} offen {fl}")
        I("s_mov_b64 exec, 1")
        I("v_mov_b32 v50, 0")
        self.pub(lambda fl: f"buffer_store_dword v47, v50, {sr(SRD['WS'],4)}, {sr(sLpub)} offen {fl}")
        I("s_mov_b64 exec, -1")
        self.label(lc)
        self.stamp(f"{T}:Opub")
        O_, LS = 24, 40
        I(f"v_lshrrev_b32 v46, 4, {vr(vLane)}"); I(f"v_bfe_u32 v47, {vr(vLane)}, 2, 1")
        I(f"v_lshlrev_b32 v47, 6, v47"); I(f"v_lshl_add_u32 v44, v46, 4, v47")
        I(f"s_lshl_b32 {sr(sT)}, {sr(sV)}, 7"); I(f"s_add_u32 {sr(sT)}, {sr(sT)}, {YB}"); I(f"v_add_u32 v44, {sr(sT)}, v44")
        I(f"v_add_u32 v45, {YB}, {vr(vL16)}")
        def b_issue(track):
            for k in range(4):
                t = f"buffer_load_dwordx4 {vr(O_+4*k,4)}, {vr(vOoff)}, {sr(SRD['WS'],4)}, {sr(sOpoll)} offen offset:{64*k} sc1"
                if track: self.vm("pollB", t)
                else: I(t)
            t = f"buffer_load_dword {vr(LS)}, {vr(vLoff)}, {sr(SRD['WS'],4)}, {sr(sLpoll)} offen sc1"
            if track: self.vm("pollB", t)
            else: I(t)
        self.hop("B", b_issue, chk16(O_, LS, 46, 47), lambda iss: plan("B", iss))
        self.stamp(f"{T}:Bok")
        DY = 48
        for k in range(4):
            c = "0" if k == 0 else vr(DY, 4)
            I(f"v_mfma_f32_16x16x32_bf16 {vr(DY,4)}, {vr(W2+4*k,4)}, {vr(O_+4*k,4)}, {c}")
        I(f"v_mov_b32_dpp v41, {vr(LS)} quad_perm:[1,0,3,2] row_mask:0xf bank_mask:0xf")
        I(f"v_max_f32 v41, v41, {vr(LS)}")
        I(f"v_mov_b32_dpp v42, v41 quad_perm:[2,3,0,1] row_mask:0xf bank_mask:0xf")
        I(f"v_max_f32 v41, v41, v42")
        I(f"v_sub_f32 v41, {vr(LS)}, v41")
        I(f"v_exp_f32 v41, v41")
        I(f"v_add_f32_dpp v42, v41, v41 quad_perm:[1,0,3,2] row_mask:0xf bank_mask:0xf")
        I(f"v_add_f32_dpp v42, v42, v42 quad_perm:[2,3,0,1] row_mask:0xf bank_mask:0xf")
        I(f"v_rcp_f32 v42, v42")
        I(f"v_mul_f32 v41, v41, v42")
        for i in range(4): I(f"v_mul_f32 {vr(DY+i)}, {vr(DY+i)}, v41")
        for i in range(4): I(f"v_add_f32_dpp {vr(DY+i)}, {vr(DY+i)}, {vr(DY+i)} quad_perm:[1,0,3,2] row_mask:0xf bank_mask:0xf")
        for i in range(4): I(f"v_add_f32_dpp {vr(DY+i)}, {vr(DY+i)}, {vr(DY+i)} quad_perm:[2,3,0,1] row_mask:0xf bank_mask:0xf")
        I(f"s_mov_b64 exec, {sr(mJ04,2)}")
        I(f"ds_write_b128 v44, {vr(DY,4)}")
        I("s_mov_b64 exec, -1")
        I("s_waitcnt lgkmcnt(0)")
        I("s_barrier")
        self.stamp(f"{T}:Ybar")
        I(f"s_add_u32 {sr(sT)}, {sr(sLay)}, {sr(sXS)}")
        I(f"s_add_u32 s44, {sr(sWSlo)}, {sr(sT)}"); I(f"s_addc_u32 s45, {sr(sWShi)}, 0")
        I("s_mov_b32 s48, s44"); I("s_mov_b32 s49, s45"); I("s_mov_b32 s50, 2048")
        if last:
            I(f"s_cmp_eq_u32 {sr(sPass)}, 1")
            I(f"s_cselect_b32 s48, {sr(sOUT)}, s48"); I(f"s_cselect_b32 s49, {sr(sOUT+1)}, s49")
            I(f"s_cselect_b32 {sr(sT)}, {sr(sG)}, 0")
            I(f"s_cmp_eq_u32 {sr(sT)}, 0")
            I("s_cselect_b32 s50, 2048, 0")
        lx = self.newlab("CX");
        lnz = self.newlab("CNZ")
        I(f"s_cmp_lg_u32 {sr(sV)}, 0"); I(f"s_cbranch_scc1 {lnz}")
        for w in range(4): I(f"ds_read_b128 v[{24+4*w}:{27+4*w}], v45 offset:{128*w}")
        I("s_waitcnt lgkmcnt(0)")
        for i in range(4): I(f"v_add_f32 v{24+i}, v{24+i}, v{28+i}")
        for i in range(4): I(f"v_add_f32 v{32+i}, v{32+i}, v{36+i}")
        for i in range(4): I(f"v_add_f32 v{24+i}, v{24+i}, v{32+i}")
        I("s_mov_b64 exec, 0xff")
        I(f"buffer_store_dwordx4 v[24:27], {vr(vL16)}, {sr(SRD['WS'],4)}, {sr(sYpub)} offen sc1")
        I("s_mov_b64 exec, -1")
        self.stamp(f"{T}:Ypub")
        Y = 28
        def c_issue(track):
            t = f"buffer_load_dwordx4 {vr(Y,4)}, {vr(vL16)}, {sr(SRD['WS'],4)}, {sr(sYpoll)} offen sc1"
            if track: self.vm("pollC", t)
            else: I(t)
        def c_check():
            I(f"v_max3_u32 v69, {vr(Y)}, {vr(Y+1)}, {vr(Y+2)}")
            I(f"v_max_u32 v69, v69, {vr(Y+3)}")
            I("v_cmp_eq_u32 vcc, -1, v69")
        vmq_before = list(self.vmq); ni_before = self.next_item; kr_before = dict(self.k_relayout_done)
        self.hop("C", c_issue, c_check, lambda iss: plan("C", iss))
        self.stamp(f"{T}:Cok")
        for i in range(4): I(f"v_add_f32_dpp {vr(Y+i)}, {vr(Y+i)}, {vr(Y+i)} row_ror:8 row_mask:0xf bank_mask:0xf")
        for i in range(4): I(f"v_mov_b32 v{32+i}, {vr(Y+i)}")
        for i in range(4): I(f"v_permlane16_swap_b32 {vr(Y+i)}, v{32+i}")
        for i in range(4): I(f"v_add_f32 {vr(Y+i)}, {vr(Y+i)}, v{32+i}")
        for i in range(4): I(f"v_mov_b32 v{32+i}, {vr(Y+i)}")
        for i in range(4): I(f"v_permlane32_swap_b32 {vr(Y+i)}, v{32+i}")
        for i in range(4): I(f"v_add_f32 {vr(Y+i)}, {vr(Y+i)}, v{32+i}")
        I(f"v_cvt_pk_bf16_f32 v32, {vr(Y)}, {vr(Y+1)}"); I(f"v_cvt_pk_bf16_f32 v33, {vr(Y+2)}, {vr(Y+3)}")
        I("v_lshlrev_b32 v34, 16, v32"); I("v_and_b32 v35, 0xffff0000, v32"); I("v_lshlrev_b32 v36, 16, v33"); I("v_and_b32 v37, 0xffff0000, v33")
        for i in range(4): I(f"v_add_f32 v{34+i}, v{34+i}, {vr(vXold+i)}")
        I("v_cvt_pk_bf16_f32 v32, v34, v35"); I("v_cvt_pk_bf16_f32 v33, v36, v37")
        I("s_mov_b64 exec, 0xff")
        self.pub(lambda fl: f"buffer_store_dwordx2 v[32:33], {vr(vXpub)}, {sr(SRD['XDST'],4)}, 0 offen {fl}")
        I("s_mov_b64 exec, -1")
        I(f"v_lshlrev_b32 {vr(vXold)}, 16, v32"); I(f"v_and_b32 {vr(vXold+1)}, 0xffff0000, v32")
        I(f"v_lshlrev_b32 {vr(vXold+2)}, 16, v33"); I(f"v_and_b32 {vr(vXold+3)}, 0xffff0000, v33")
        self.stamp(f"{T}:Xpub")
        I(f"s_branch {lx}")
        vmq_after = list(self.vmq); ni_after = self.next_item; kr_after = dict(self.k_relayout_done)
        self.label(lnz)
        self.vmq = vmq_before; self.next_item = ni_before; self.k_relayout_done = kr_before
        self.p1_site(lambda: plan("C", None))
        assert self.next_item == ni_after and self.k_relayout_done == kr_after
        self.label(lx)
        for s_ in (sLay, sQpub, sQpoll, sOpub, sLpub, sOpoll, sLpoll, sYpub, sYpoll):
            I(f"s_add_u32 {sr(s_)}, {sr(s_)}, {LAYER_STRIDE}")

    def build(self, plan_factory):
        self.stamp_names = []
        self.build_items()
        self.prologue()
        plan = plan_factory(self)
        self.label("L_LOOP")
        self.layer("A", lambda site, iss=None: plan("A", site, iss))
        self.layer("B", lambda site, iss=None: plan("B", site, iss))
        assert self.next_item == len(self.items), (self.next_item, len(self.items))
        self.I(f"s_add_u32 {sr(sPass)}, {sr(sPass)}, 1")
        self.I(f"s_cmp_lt_u32 {sr(sPass)}, 2")
        self.I("s_cbranch_scc1 L_LOOP")
        self.stamp("end")
        self.label("L_END")
        self.I("s_endpgm")
        hdr = []
        hdr.append(f"; @launch grid=(256,1,1) block=(256,1,1) lds={LDS_BYTES}")
        hdr.append('.amdgcn_target "amdgcn-amd-amdhsa--gfx950"')
        hdr += [".text", f".globl {KNAME}", ".p2align 8", f".type {KNAME},@function", f"{KNAME}:"]
        tail = ['.section .rodata,"a"', ".p2align 6", f".amdhsa_kernel {KNAME}",
                "  .amdhsa_next_free_vgpr 512", "  .amdhsa_next_free_sgpr 102", "  .amdhsa_accum_offset 256",
                "  .amdhsa_group_segment_fixed_size 0", "  .amdhsa_kernarg_size 104", "  .amdhsa_user_sgpr_count 2",
                "  .amdhsa_user_sgpr_kernarg_segment_ptr 1", "  .amdhsa_system_sgpr_workgroup_id_x 1",
                "  .amdhsa_float_denorm_mode_32 3", ".end_amdhsa_kernel"]
        return "\n".join(hdr + self.main.lines + self.ool.lines + tail) + "\n"


def startup_check(G):
    I = G.I
    l = G.newlab("SC"); lp = G.newlab("SCL"); dn = G.newlab("SCD")
    I(f"s_cmp_lg_u32 {sr(sV)}, 0"); I(f"s_cbranch_scc1 {l}")
    I(f"v_lshrrev_b32 v72, 1, {vr(vLane)}"); I("v_lshlrev_b32 v72, 6, v72")
    I(f"v_and_b32 v73, 1, {vr(vLane)}"); I("v_lshl_add_u32 v72, v73, 3, v72")
    I(f"s_mov_b32 {sr(sCnt)}, 0")
    I("s_mov_b64 exec, 0xff")
    G.label(lp)
    I(f"global_load_dwordx2 v[74:75], v72, {sr(sDBG,2)} sc1")
    I("s_waitcnt vmcnt(0)")
    I("v_sad_u8 v73, v74, 0, 0"); I("v_sad_u8 v73, v75, 0, v73")
    I("v_cmp_ne_u32 vcc, 32, v73")
    I(f"s_cbranch_vccz {dn}")
    I(f"s_add_u32 {sr(sCnt)}, {sr(sCnt)}, 1")
    I(f"s_cmp_lt_u32 {sr(sCnt)}, {G.cfg.get('spin', 40000)}")
    I(f"s_cbranch_scc1 {lp}")
    G.label(dn)
    I(f"v_readlane_b32 {sr(sT2)}, v74, {sr(sG)}")
    I(f"v_readlane_b32 {sr(sT3)}, v75, {sr(sG)}")
    I("s_mov_b64 exec, -1")
    I(f"s_lshl_b32 {sr(sT)}, {sr(sXcc)}, 3")
    I(f"s_lshr_b64 s[{sT2}:{sT3}], s[{sT2}:{sT3}], {sr(sT)}")
    I(f"s_and_b32 {sr(sT2)}, {sr(sT2)}, 0xff")
    I(f"s_cmp_eq_u32 {sr(sT2)}, 32")
    I(f"s_cselect_b32 {sr(sFast)}, {0 if G.cfg.get('force_slow') else 1}, 0")
    G.label(l)

def make_plan(G):
    cfg = G.cfg
    def plan(T, site, iss=None):
        I = G.I
        if T == "A":
            if site == "D0":
                G.need(("W", "q", "A", 3))
            elif site == "D":
                G.issue(8)
                G.need("pollD")
                G.need("xold")
                I(f"v_and_b32 {vr(vXold+3)}, 0xffff0000, {vr(vXold+1)}"); I(f"v_lshlrev_b32 {vr(vXold+2)}, 16, {vr(vXold+1)}")
                I(f"v_and_b32 {vr(vXold+1)}, 0xffff0000, {vr(vXold)}"); I(f"v_lshlrev_b32 {vr(vXold)}, 16, {vr(vXold)}")
                startup_check(G)
            elif site == "A":
                G.issue(8)
                G.need(("K", "A", 7)); G.k_relayout("A", 0)
                G.need(("K", "A", 15)); G.issue(8)
                G.k_relayout("A", 1)
                G.need(("K", "A", 23))
                iss()
                G.issue(8)
                G.k_relayout("A", 2)
                G.need("pollA")
                G.k_relayout("A", 3)
                G.issue(8)
            elif site == "PV":
                G.need(("V", "A", 7)); G.issue(8)
                G.v_relayout("A", list(range(0, 8)))
                G.need(("V", "A", 15)); G.issue(8)
                G.v_relayout("A", list(range(8, 16)))
                G.need(("V", "A", 21)); G.issue(4)
                G.v_relayout("A", list(range(16, 22)))
                G.need(("V", "A", 27)); G.issue(4)
                G.need(("V", "A", 31)); G.issue(4)
            elif site == "B0":
                G.need(("W", "o", "A", 3))
                G.issue(4)
            elif site == "B":
                G.need(("W", "q", "B", 3)); G.issue(4)
                G.need(("K", "B", 3))
                iss(); G.issue(4)
                G.need("pollB")
            elif site == "C":
                G.need(("K", "B", 7)); G.issue(4)
                G.k_relayout("B", 0)
                G.need(("K", "B", 11)); G.issue(4)
                if iss: iss()
                G.issue(4)
                if iss: G.need("pollC")
                else: G.need(("K", "B", 19))
        else:
            if site == "D0":
                G.need(("K", "B", 15)); G.k_relayout("B", 1)
                G.issue(4)
            elif site == "D":
                G.need(("K", "B", 23)); G.issue(4)
                iss()
                G.k_relayout("B", 2)
                G.issue(4)
                G.need("pollD")
            elif site == "A":
                G.need(("K", "B", 31)); G.issue(4)
                G.k_relayout("B", 3)
                iss(); G.issue(4)
                G.need("pollA")
                G.issue(4)
            elif site == "PV":
                G.need(("V", "B", 7)); G.issue(4)
                G.v_relayout("B", list(range(0, 8)))
                G.need(("V", "B", 15)); G.issue(8)
                G.v_relayout("B", list(range(8, 16)))
                G.need(("V", "B", 21)); G.issue(4)
                G.v_relayout("B", list(range(16, 22)))
                G.need(("V", "B", 31))
            elif site == "B0":
                G.need(("W", "o", "B", 3))
            elif site == "B":
                G.need("pollB")
            elif site == "C":
                if iss: G.need("pollC")
    return plan

def generate(cfg):
    G = Gen(cfg)
    txt = G.build(make_plan)
    return txt, G

if __name__ == "__main__":
    import json
    cfg = json.loads(sys.argv[2]) if len(sys.argv) > 2 else {}
    txt, G = generate(cfg)
    open(sys.argv[1], "w").write(txt)
    if cfg.get("profile"):
        json.dump(G.stamp_names, open(sys.argv[1] + ".stamps.json", "w"))
    print("lines", txt.count("\n"), "bytes", len(txt))
```

```python
import struct, sys, json
from emit import Stream, Ins

KNAME = "interleave_layers__sliding_block_cached__sliding_block_cached__decode_kernel"
def f2u(x): return struct.unpack("<I", struct.pack("<f", x))[0]

LAYER_STRIDE = 0x40000
QS_OFF, XS_OFF, LSE_OFF, OS_OFF, YS_OFF = 0x0, 0x4000, 0x8000, 0x10000, 0x20000
SLOT_BYTES = 4 * LAYER_STRIDE
PROF_OFF = 0x100000
WAVE_BLK = 31744
WQ_OFF = {"A": 0, "B": 4096}
VL_OFF = {"A": 8192, "B": 18432}
STG_OFF = 28672
KST_OFF = VL_OFF["B"]
WO_BASE = 4 * WAVE_BLK
WO_OFF = {"A": 0, "B": 16384}
COMMON = WO_BASE + 32768
OB, QB, SB, MB = COMMON + 0, COMMON + 2048, COMMON + 2816, COMMON + 2880
LDS_BYTES = 163840
NVREG = 22
NVLDS = 32 - NVREG
sWG, sV, sPass, sLay, sFast, sT = 2, 3, 4, 5, 6, 7
SRD = {"KA": 8, "VA": 12, "KB": 16, "VB": 20, "WqA": 24, "WoA": 28, "WqB": 32, "WoB": 36, "WS": 40, "XSRC": 44, "XDST": 48}
sDBG, sOUT = 52, 54
sG, sR, sH, sJ8 = 56, 57, 58, 59
sQpub, sQpoll, sOpub, sLpub, sOpoll, sLpoll, sYpub, sYpoll = 60, 61, 62, 63, 64, 65, 66, 67
mJ2, mJ3, mJ04 = 68, 70, 72
mJ8 = 100
sWB, sCnt, sT2, sT3 = 74, 75, 76, 77
sWqB0, sWoB0 = 78, 79
sC, sXS, sWoM0, sKV = 80, 81, 82, 83
sXcc, sWcol = 84, 85
sWSlo, sWShi = 86, 87
vLane, vL16, vL8w, vTrLo, vTrHi, vXoff, vQoff, vOoff, vLoff, vXpub, vQpub, vL4 = range(12)
vXold = 12
vVswz, vWoffQ, vWoffO = 16, 17, 18
vStD, vStA = 19, 20
vWoRd, vYpub, vOpub = 21, 22, 23
vOutPub = 19
KBASE = {"A": 0, "B": 128}
VBASE = {"A": 80, "B": 168}
SCR = 72

def vr(a, n=1): return f"v{a}" if n == 1 else f"v[{a}:{a+n-1}]"
def ar(a, n=1): return f"a{a}" if n == 1 else f"a[{a}:{a+n-1}]"
def sr(a, n=1): return f"s{a}" if n == 1 else f"s[{a}:{a+n-1}]"

class Gen:
    def __init__(self, cfg):
        self.cfg = cfg
        self.main = Stream(); self.ool = Stream(); self.ool.snap = self.main.snap
        self.cur = self.main
        self.vmq = []
        self.nlab = 0
        self.items = []; self.next_item = 0
        self.kdone = {"A": 0, "B": 0}
        self.vdone = {"A": 0, "B": 0}
        self.profile = cfg.get("profile", False)
        self.kvflags = cfg.get("kvflags", "nt")
        self.wqflags = cfg.get("wqflags", "")
        self.woflags = cfg.get("woflags", "nt")
        self.depth = cfg.get("depth", 8)
    def I(self, t):
        for line in t.split("\n"):
            line = line.strip()
            if line: self.cur.ins(line)
    def label(self, n): self.cur.label(n)
    def newlab(self, p):
        self.nlab += 1
        return f"{p}_{self.nlab}"
    def vm(self, tag, t):
        self.I(t); self.vmq.append(tag)
    def need(self, tag):
        idx = [i for i, x in enumerate(self.vmq) if x == tag]
        if not idx: return
        n = len(self.vmq) - 1 - idx[-1]
        assert n <= 63
        self.I(f"s_waitcnt vmcnt({n})")
        self.vmq = self.vmq[idx[-1] + 1:]
    def wait_out(self, n):
        if len(self.vmq) > n:
            self.I(f"s_waitcnt vmcnt({n})")
            self.vmq = self.vmq[len(self.vmq) - n:] if n else []
    def issued(self, item): return item in self.items[:self.next_item]
    def landed(self, item): return self.issued(item) and item not in self.vmq
    def state(self): return (list(self.vmq), self.next_item, dict(self.kdone), dict(self.vdone))
    def set_state(self, s): self.vmq, self.next_item, self.kdone, self.vdone = list(s[0]), s[1], dict(s[2]), dict(s[3])
    def stamp(self, key):
        if not self.profile: return
        sel = self.cfg.get("stamps", [])
        if key in sel:
            k = sel.index(key)
            self.I(f"s_memtime s[{88+2*k}:{89+2*k}]")
    def flush_stamps(self, T):
        if not self.profile: return
        sel = self.cfg.get("stamps", [])
        self.I("s_waitcnt lgkmcnt(0)")
        for k in range(len(sel)):
            self.I(f"v_writelane_b32 {vr(vStD)}, s{88+2*k}, {k}")
        self.I(f"s_lshl_b32 {sr(sT3)}, {sr(sPass)}, 6")
        if T == "B": self.I(f"s_add_u32 {sr(sT3)}, {sr(sT3)}, 32")
        self.I("s_mov_b64 exec, 0x7f")
        self.I(f"buffer_store_dword {vr(vStD)}, {vr(vStA)}, {sr(SRD['WS'],4)}, {sr(sT3)} offen")
        self.I("s_mov_b64 exec, -1")
    def ool_begin(self):
        assert self.cur is self.main
        self.ool.hists = [list(h) for h in self.main.hists]
        self.cur = self.ool
    def ool_end(self): self.cur = self.main
    def p1_site(self, fn):
        lo = self.newlab("P1"); lb = self.newlab("P1B")
        self.I(f"s_cmp_eq_u32 {sr(sPass)}, 0")
        self.I(f"s_cbranch_scc1 {lo}")
        self.ool_begin(); self.label(lo)
        fn()
        self.I("s_nop 7"); self.I(f"s_branch {lb}")
        self.ool_end(); self.label(lb)
    def build_items(self):
        def inter(main, extra, first, every):
            out = []; ex = list(extra); pos = first
            for i, x in enumerate(main):
                if ex and i == pos:
                    out.append(ex.pop(0)); pos += every
                out.append(x)
            return out + ex
        c = self.cfg
        KV = lambda k, T: [(k, T, n) for n in range(32)]
        W = lambda m, T: [("W", m, T, k) for k in range(4)]
        it = []
        it += inter(KV("K", "A"), W("q", "A"), c.get("wqa_first", 0), c.get("wqa_every", 0) or 0) if c.get("wqa_every", 0) else W("q", "A") + KV("K", "A")
        it += inter(inter(KV("V", "A"), W("q", "B"), c.get("wqb_first", 1), c.get("wqb_every", 3)), W("o", "A"), c.get("woa_first", 16), c.get("woa_every", 4))
        it += KV("K", "B")
        it += inter(KV("V", "B"), W("o", "B"), c.get("wob_first", 4), c.get("wob_every", 4))
        self.items = it
    def emit_item(self, it):
        if it[0] == "K":
            _, T, n = it
            self.I(f"s_mov_b32 {sr(sT)}, {n*4096}")
            self.vm(it, f"buffer_load_dwordx4 {ar(KBASE[T]+4*n,4)}, {vr(vL16)}, {sr(SRD['K'+T],4)}, {sr(sT)} offen {self.kvflags}")
        elif it[0] == "V":
            _, T, n = it
            self.I(f"s_mov_b32 {sr(sT)}, {n*4096}")
            if n < NVREG:
                self.vm(it, f"buffer_load_dwordx4 {vr(VBASE[T]+4*n,4)}, {vr(vL16)}, {sr(SRD['V'+T],4)}, {sr(sT)} offen {self.kvflags}")
            else:
                if T == "B": assert self.kdone["B"] == 4, "VB LDS DMA before KB relayout finished"
                self.I(f"s_add_u32 m0, {sr(sWB)}, {VL_OFF[T] + (n-NVREG)*1024}")
                self.vm(it, f"buffer_load_dwordx4 {vr(vVswz)}, {sr(SRD['V'+T],4)}, {sr(sT)} offen {self.kvflags} lds")
        else:
            _, m, T, k = it
            if m == "q":
                self.I(f"s_add_u32 {sr(sT)}, {sr(sWqB0)}, {k*32*8192}")
                self.I(f"s_add_u32 m0, {sr(sWB)}, {WQ_OFF[T] + k*1024}")
                self.vm(it, f"buffer_load_dwordx4 {vr(vWoffQ)}, {sr(SRD['Wq'+T],4)}, {sr(sT)} offen {self.wqflags} lds")
            else:
                self.I(f"s_add_u32 {sr(sT)}, {sr(sWoB0)}, {k*8*1024}")
                self.I(f"s_add_u32 m0, {sr(sWoM0)}, {WO_OFF[T] + k*1024}")
                self.vm(it, f"buffer_load_dwordx4 {vr(vWoffO)}, {sr(SRD['Wo'+T],4)}, {sr(sT)} offen {self.woflags} lds")
    def can_issue(self, it):
        if it[0] == "V" and it[1] == "B" and it[2] >= NVREG: return self.kdone["B"] == 4
        return True
    def issue(self, cnt):
        out = []
        for _ in range(cnt):
            if self.next_item >= len(self.items): break
            it = self.items[self.next_item]
            if not self.can_issue(it): break
            self.next_item += 1
            self.emit_item(it); out.append(it)
        return out
    def relayout_ready(self, allow=("K", "V")):
        prog = True
        while prog:
            prog = False
            for T in "AB":
                if "K" in allow and self.kdone[T] < 4:
                    t = self.kdone[T]
                    if all(self.landed(("K", T, 8*t+i)) for i in range(8)):
                        self.k_relayout(T, t); prog = True
                if "V" in allow and self.vdone[T] < NVREG:
                    n0 = self.vdone[T]; grp = list(range(n0, min(n0 + 3, NVREG)))
                    if all(self.landed(("V", T, n)) for n in grp):
                        self.v_relayout(T, grp); prog = True
    def step(self, chunk=4, depth=None, allow=("K", "V")):
        depth = depth or self.depth
        self.wait_out(max(depth - chunk, 0))
        self.issue(chunk)
        self.relayout_ready(allow)
    def bg(self, n, chunk=4, depth=None, allow=("K", "V")):
        for _ in range(n): self.step(chunk, depth, allow)
    def bg_until(self, cond, chunk=4, depth=None, allow=("K", "V")):
        guard = 0
        while not cond():
            if self.next_item >= len(self.items) or not self.can_issue(self.items[self.next_item]):
                assert self.vmq, "bg_until stuck"
                self.wait_out(max(len(self.vmq) - chunk, 0)); self.relayout_ready(allow)
            else:
                self.step(chunk, depth, allow)
            guard += 1; assert guard < 200
    def k_relayout(self, T, tile):
        b = KBASE[T] + 32 * tile
        w0, r0, t0, t1 = SCR, SCR + 1, SCR + 2, SCR + 3
        I = self.I
        I(f"v_lshrrev_b32 {vr(t0)}, 4, {vr(vLane)}")
        I(f"v_and_b32 {vr(t1)}, 15, {vr(vLane)}")
        I(f"v_xor_b32 {vr(t1)}, {vr(t1)}, {vr(t0)}")
        I(f"v_lshlrev_b32 {vr(t1)}, 4, {vr(t1)}")
        I(f"v_lshl_add_u32 {vr(w0)}, {vr(t0)}, 8, {vr(t1)}")
        I(f"s_add_u32 {sr(sT)}, {sr(sWB)}, {KST_OFF}")
        I(f"v_add_u32 {vr(w0)}, {sr(sT)}, {vr(w0)}")
        I(f"v_and_b32 {vr(t0)}, 31, {vr(vLane)}")
        I(f"v_lshrrev_b32 {vr(t1)}, 5, {vr(vLane)}")
        I(f"v_lshlrev_b32 {vr(t1)}, 3, {vr(t1)}")
        I(f"v_and_b32 {vr(r0)}, 15, {vr(vLane)}")
        I(f"v_xor_b32 {vr(r0)}, {vr(r0)}, {vr(t1)}")
        I(f"v_lshlrev_b32 {vr(r0)}, 4, {vr(r0)}")
        I(f"v_lshl_add_u32 {vr(r0)}, {vr(t0)}, 8, {vr(r0)}")
        I(f"v_add_u32 {vr(r0)}, {sr(sT)}, {vr(r0)}")
        for i in range(8):
            m = i & 3; a = w0
            if m:
                a = t0 if (i & 1) else t1
                I(f"v_xor_b32 {vr(a)}, {m<<6}, {vr(w0)}")
            I(f"ds_write_b128 {vr(a)}, {ar(b+4*i,4)} offset:{i*1024}")
        I("s_waitcnt lgkmcnt(0)")
        for cc in range(8):
            a = r0
            if cc:
                a = t0 if (cc & 1) else t1
                I(f"v_xor_b32 {vr(a)}, {cc<<4}, {vr(r0)}")
            I(f"ds_read_b128 {ar(b+4*cc,4)}, {vr(a)}")
        I("s_waitcnt lgkmcnt(0)")
        self.kdone[T] += 1
    def v_relayout(self, T, grp):
        w0 = SCR; I = self.I
        I(f"s_add_u32 {sr(sT)}, {sr(sWB)}, {STG_OFF}")
        I(f"v_add_u32 {vr(w0)}, {sr(sT)}, {vr(vVswz)}")
        for s, n in enumerate(grp):
            I(f"ds_write_b128 {vr(w0)}, {vr(VBASE[T]+4*n,4)} offset:{s*1024}")
        I("s_waitcnt lgkmcnt(0)")
        for s, n in enumerate(grp):
            d = VBASE[T] + 4 * n
            I(f"ds_read_b64_tr_b16 {vr(d,2)}, {vr(vTrLo)} offset:{STG_OFF + s*1024}")
            I(f"ds_read_b64_tr_b16 {vr(d+2,2)}, {vr(vTrHi)} offset:{STG_OFF + s*1024}")
        I("s_waitcnt lgkmcnt(0)")
        self.vdone[T] += len(grp)
    def attempts(self, tag, iss, check, n, chunk):
        rest = [self.newlab("RS") for _ in range(n + 1)]
        chunks = []
        for k in range(n):
            iss()
            c = self.issue(chunk); chunks.append(c)
            self.need(tag)
            if k < n - 1:
                check()
                self.I(f"s_cbranch_scc0 {rest[k+1]}")
        self.I(f"s_branch {rest[n]}")
        save = self.state()
        for k in range(1, n):
            self.label(rest[k])
            for it in chunks[k]: self.emit_item(it)
        self.label(rest[n])
        self.set_state(save)
        self.vmq = [it for c in chunks for it in c]
    def hop(self, issue_fn, check_fn, p1_fn):
        lo, chk, ok, rt = self.newlab("HO"), self.newlab("HC"), self.newlab("HK"), self.newlab("HR")
        issue_fn(True)
        self.I(f"s_cmp_eq_u32 {sr(sPass)}, 0")
        self.I(f"s_cbranch_scc1 {lo}")
        self.ool_begin(); self.label(lo)
        p1_fn(lambda: issue_fn(True), check_fn)
        self.I("s_nop 7"); self.I(f"s_branch {chk}")
        self.ool_end()
        self.I("s_waitcnt vmcnt(0)")
        self.label(chk)
        check_fn()
        self.I(f"s_cbranch_scc1 {rt}")
        self.label(ok)
        self.ool_begin(); self.label(rt)
        self.I(f"s_mov_b32 {sr(sCnt)}, 0")
        lp = self.newlab("HL"); dn = self.newlab("HD")
        self.label(lp)
        issue_fn(False)
        self.I("s_waitcnt vmcnt(0)")
        check_fn()
        self.I(f"s_cbranch_scc0 {dn}")
        self.I(f"s_add_u32 {sr(sCnt)}, {sr(sCnt)}, 1")
        self.I(f"s_cmp_lt_u32 {sr(sCnt)}, {self.cfg.get('spin', 40000)}")
        self.I(f"s_cbranch_scc1 {lp}")
        self.label(dn)
        self.I("s_nop 7"); self.I(f"s_branch {ok}")
        self.ool_end()
    def pub(self, text_fn):
        lf, le = self.newlab("PF"), self.newlab("PE")
        self.I(f"s_cmp_lg_u32 {sr(sFast)}, 0")
        self.I(f"s_cbranch_scc1 {lf}")
        self.I(text_fn("sc1"))
        self.I(f"s_branch {le}")
        self.label(lf)
        self.I(text_fn(""))
        self.label(le)

    def kv_off(self):
        I = self.I
        I(f"s_lshr_b32 {sr(sT)}, {sr(sJ8)}, 2"); I(f"s_lshl_b32 {sr(sT)}, {sr(sT)}, 5"); I(f"s_add_u32 {sr(sT)}, {sr(sT)}, {sr(sH)}")
        I(f"s_lshl_b32 {sr(sT)}, {sr(sT)}, 21")
        I(f"s_and_b32 {sr(sT2)}, {sr(sJ8)}, 3"); I(f"s_lshl_b32 {sr(sT2)}, {sr(sT2)}, 17"); I(f"s_add_u32 {sr(sT)}, {sr(sT)}, {sr(sT2)}")
        I(f"s_lshl_b32 {sr(sT2)}, {sr(sV)}, 10"); I(f"s_add_u32 {sr(sT)}, {sr(sT)}, {sr(sT2)}")
        I(f"s_add_u32 {sr(sKV)}, {sr(sT)}, {6144*256}")
    def prologue(self):
        I = self.I
        KVN = 128 * 1024
        I(f"s_cmp_ge_u32 {sr(sWG)}, 256")
        I("s_cbranch_scc1 L_END")
        I("s_load_dwordx8 s[88:95], s[0:1], 0")
        I("s_load_dwordx2 s[96:97], s[0:1], 32")
        I("s_load_dwordx2 s[98:99], s[0:1], 96")
        I("s_load_dwordx4 s[16:19], s[0:1], 48")
        I("s_load_dwordx4 s[32:35], s[0:1], 64")
        I("s_load_dwordx4 s[52:55], s[0:1], 80")
        I("v_lshrrev_b32 v1, 6, v0")
        I("v_and_b32 v0, 63, v0")
        I(f"v_readfirstlane_b32 {sr(sV)}, v1")
        I(f"s_and_b32 {sr(sG)}, {sr(sWG)}, 7")
        I(f"s_lshr_b32 {sr(sR)}, {sr(sWG)}, 3")
        I(f"s_lshr_b32 {sr(sT)}, {sr(sR)}, 3")
        I(f"s_lshl_b32 {sr(sH)}, {sr(sG)}, 2")
        I(f"s_add_u32 {sr(sH)}, {sr(sH)}, {sr(sT)}")
        I(f"s_and_b32 {sr(sJ8)}, {sr(sR)}, 7")
        I(f"v_lshlrev_b32 {vr(vL16)}, 4, {vr(vLane)}")
        self.kv_off()
        I(f"s_mul_i32 {sr(sWB)}, {sr(sV)}, {WAVE_BLK}")
        I(f"v_lshrrev_b32 v24, 1, {vr(vLane)}")
        I("v_bfe_u32 v25, v24, 2, 2"); I("v_lshlrev_b32 v25, 3, v25")
        I("v_lshrrev_b32 v26, 4, v24"); I("v_lshl_add_u32 v25, v26, 2, v25")
        I("v_and_b32 v26, 3, v24"); I("v_add_u32 v25, v25, v26")
        I(f"v_and_b32 v26, 1, {vr(vLane)}"); I("v_lshlrev_b32 v26, 4, v26")
        I(f"v_lshl_add_u32 {vr(vWoffQ)}, v25, 13, v26")
        I(f"s_lshl_b32 {sr(sWqB0)}, {sr(sV)}, 20")
        I(f"s_lshl_b32 {sr(sWcol)}, {sr(sH)}, 8"); I(f"s_lshl_b32 {sr(sT2)}, {sr(sJ8)}, 5"); I(f"s_add_u32 {sr(sWcol)}, {sr(sWcol)}, {sr(sT2)}")
        I(f"s_getreg_b32 {sr(sXcc)}, hwreg(HW_REG_XCC_ID, 0, 4)")
        I(f"s_and_b32 {sr(sXcc)}, {sr(sXcc)}, 7")
        I("s_waitcnt lgkmcnt(0)")
        I(f"s_add_u32 s8, s90, {sr(sKV)}"); I("s_addc_u32 s9, s91, 0"); I(f"s_mov_b32 s10, {KVN}"); I("s_mov_b32 s11, 0x20000")
        I(f"s_add_u32 s24, s94, {sr(sWcol)}"); I("s_addc_u32 s25, s95, 0"); I(f"s_sub_u32 s26, {512*8192}, {sr(sWcol)}"); I("s_mov_b32 s27, 0x20000")
        I("s_mov_b32 s40, s98"); I("s_mov_b32 s41, s99"); I(f"s_mov_b32 s42, {PROF_OFF + 0x100000}"); I("s_mov_b32 s43, 0x20000")
        lskip = self.newlab("NOCLR")
        I(f"s_cmp_lg_u32 {sr(sV)}, 3"); I(f"s_cbranch_scc1 {lskip}")
        I("v_mov_b32 v28, -1"); I("v_mov_b32 v29, -1"); I("v_mov_b32 v30, -1"); I("v_mov_b32 v31, -1")
        I(f"s_mul_i32 {sr(sT)}, {sr(sWG)}, {SLOT_BYTES//256}")
        for o in range(0, SLOT_BYTES // 256, 1024):
            I(f"buffer_store_dwordx4 v[28:31], {vr(vL16)}, s[40:43], {sr(sT)} offen offset:{o} sc1")
        I(f"s_lshl_b32 {sr(sT)}, {sr(sXcc)}, 3")
        I(f"s_lshl_b64 s[76:77], 1, {sr(sT)}")
        I("v_mov_b32 v28, s76"); I("v_mov_b32 v29, s77")
        I(f"s_lshr_b32 {sr(sT)}, {sr(sG)}, 1"); I(f"s_lshl_b32 {sr(sT)}, {sr(sT)}, 6")
        I(f"s_and_b32 s76, {sr(sG)}, 1"); I("s_lshl_b32 s76, s76, 3"); I(f"s_add_u32 {sr(sT)}, {sr(sT)}, s76")
        I(f"v_mov_b32 v30, {sr(sT)}")
        I("s_waitcnt vmcnt(0)")
        I("s_mov_b64 exec, 1")
        I("global_atomic_add_x2 v30, v[28:29], s[54:55]")
        I("s_mov_b64 exec, -1")
        self.label(lskip)
        self.issue(self.cfg.get("pro_n", 16))
        I(f"s_mov_b32 {sr(sWSlo)}, s98"); I(f"s_mov_b32 {sr(sWShi)}, s99")
        I(f"s_add_u32 s12, s92, {sr(sKV)}"); I("s_addc_u32 s13, s93, 0"); I(f"s_mov_b32 s14, {KVN}"); I("s_mov_b32 s15, 0x20000")
        I(f"s_add_u32 s20, s18, {sr(sKV)}"); I("s_addc_u32 s21, s19, 0"); I(f"s_mov_b32 s22, {KVN}"); I("s_mov_b32 s23, 0x20000")
        I(f"s_add_u32 s16, s16, {sr(sKV)}"); I("s_addc_u32 s17, s17, 0"); I(f"s_mov_b32 s18, {KVN}"); I("s_mov_b32 s19, 0x20000")
        I(f"s_lshl_b32 {sr(sT)}, {sr(sH)}, 17"); I(f"s_lshl_b32 {sr(sT2)}, {sr(sJ8)}, 7"); I(f"s_add_u32 {sr(sT)}, {sr(sT)}, {sr(sT2)}")
        I(f"s_add_u32 s28, s96, {sr(sT)}"); I("s_addc_u32 s29, s97, 0"); I(f"s_sub_u32 s30, {4096*1024}, {sr(sT)}"); I("s_mov_b32 s31, 0x20000")
        I(f"s_add_u32 s36, s34, {sr(sT)}"); I("s_addc_u32 s37, s35, 0"); I(f"s_sub_u32 s38, {4096*1024}, {sr(sT)}"); I("s_mov_b32 s39, 0x20000")
        I(f"s_add_u32 s32, s32, {sr(sWcol)}"); I("s_addc_u32 s33, s33, 0"); I(f"s_sub_u32 s34, {512*8192}, {sr(sWcol)}"); I("s_mov_b32 s35, 0x20000")
        I("s_mov_b32 s44, s88"); I("s_mov_b32 s45, s89"); I("s_mov_b32 s46, 2048"); I("s_mov_b32 s47, 0x20000")
        I("s_mov_b32 s76, s52"); I("s_mov_b32 s77, s53"); I("s_mov_b32 s52, s54"); I("s_mov_b32 s53, s55"); I("s_mov_b32 s54, s76"); I("s_mov_b32 s55, s77")
        I("s_mov_b32 s51, 0x20000"); I("s_mov_b32 s48, s98"); I("s_mov_b32 s49, s99"); I("s_mov_b32 s50, 0")
        for (m, val) in ((mJ2, 0x00030003), (mJ3, 0x00070007), (mJ04, 0x00110011), (mJ8, 0x00ff00ff)):
            I(f"s_mov_b32 {sr(m)}, {val:#x}"); I(f"s_mov_b32 {sr(m+1)}, {val:#x}")
        I(f"s_mov_b32 {sr(sC)}, {f2u(128**-0.5 * 1.4426950408889634):#x}")
        I(f"s_mov_b32 {sr(sPass)}, 0"); I(f"s_mov_b32 {sr(sLay)}, 0"); I(f"s_mov_b32 {sr(sFast)}, 0")
        I(f"s_lshl_b32 {sr(sWoB0)}, {sr(sV)}, 15")
        I(f"s_lshl_b32 {sr(sWoM0)}, {sr(sV)}, 12"); I(f"s_add_u32 {sr(sWoM0)}, {sr(sWoM0)}, {WO_BASE}")
        I(f"s_lshl_b32 {sr(sQpub)}, {sr(sH)}, 9")
        I(f"s_lshr_b32 {sr(sT)}, {sr(sJ8)}, 2"); I(f"s_lshl_b32 {sr(sT)}, {sr(sT)}, 8")
        I(f"s_add_u32 {sr(sQpoll)}, {sr(sQpub)}, {sr(sT)}")
        I(f"s_lshl_b32 {sr(sT)}, {sr(sG)}, 5"); I(f"s_add_u32 {sr(sT2)}, {sr(sT)}, {sr(sR)}")
        I(f"s_lshl_b32 {sr(sLpub)}, {sr(sT2)}, 2"); I(f"s_add_u32 {sr(sLpub)}, {sr(sLpub)}, {LSE_OFF}")
        I(f"s_and_b32 {sr(sT2)}, {sr(sT2)}, 0xf8")
        I(f"s_lshl_b32 {sr(sOpoll)}, {sr(sT2)}, 8"); I(f"s_add_u32 {sr(sOpoll)}, {sr(sOpoll)}, {OS_OFF}")
        I(f"s_mov_b32 {sr(sOpub)}, {sr(sOpoll)}")
        I(f"s_lshl_b32 {sr(sLpoll)}, {sr(sT2)}, 2"); I(f"s_add_u32 {sr(sLpoll)}, {sr(sLpoll)}, {LSE_OFF}")
        I(f"s_lshl_b32 {sr(sYpoll)}, {sr(sR)}, 12"); I(f"s_add_u32 {sr(sYpoll)}, {sr(sYpoll)}, {YS_OFF}")
        I(f"s_lshl_b32 {sr(sT)}, {sr(sJ8)}, 2"); I(f"s_add_u32 {sr(sT)}, {sr(sT)}, {sr(sV)}"); I(f"s_lshl_b32 {sr(sT)}, {sr(sT)}, 12")
        I(f"s_lshl_b32 {sr(sT2)}, {sr(sH)}, 7"); I(f"s_add_u32 {sr(sT)}, {sr(sT)}, {sr(sT2)}"); I(f"s_add_u32 {sr(sYpub)}, {sr(sT)}, {YS_OFF}")
        I(f"s_lshl_b32 {sr(sXS)}, {sr(sG)}, 11"); I(f"s_add_u32 {sr(sXS)}, {sr(sXS)}, {XS_OFF}")
        I(f"v_lshlrev_b32 {vr(vL4)}, 2, {vr(vLane)}")
        I(f"v_lshlrev_b32 {vr(vL8w)}, 3, {vr(vLane)}"); I(f"v_add_u32 {vr(vL8w)}, {sr(sWB)}, {vr(vL8w)}")
        I(f"v_lshrrev_b32 v24, 4, {vr(vLane)}")
        I(f"v_and_b32 v25, 15, {vr(vLane)}")
        I("v_lshlrev_b32 v26, 2, v24"); I("v_xor_b32 v26, v26, v25"); I("v_lshlrev_b32 v26, 4, v26")
        I(f"v_lshl_add_u32 {vr(vVswz)}, v24, 8, v26")
        I(f"v_bfe_u32 v26, {vr(vLane)}, 2, 2")
        I(f"v_bfe_u32 v27, {vr(vLane)}, 1, 1")
        I("v_lshl_add_u32 v27, v24, 1, v27")
        I("v_lshlrev_b32 v28, 2, v26"); I("v_xor_b32 v27, v27, v28"); I("v_lshlrev_b32 v27, 4, v27")
        I("v_lshl_add_u32 v27, v26, 8, v27")
        I(f"v_and_b32 v28, 1, {vr(vLane)}"); I("v_lshl_add_u32 v27, v28, 3, v27")
        I(f"v_add_u32 {vr(vTrLo)}, {sr(sWB)}, v27")
        I(f"v_xor_b32 {vr(vTrHi)}, 0x80, {vr(vTrLo)}")
        I("v_lshl_add_u32 v27, v24, 3, v26"); I("v_lshlrev_b32 v27, 7, v27")
        I(f"v_and_b32 v28, 3, {vr(vLane)}"); I("v_lshl_add_u32 v27, v28, 3, v27")
        I(f"s_lshl_b32 {sr(sT)}, {sr(sV)}, 5"); I(f"s_add_u32 {sr(sT)}, {sr(sT)}, {WO_BASE}"); I(f"v_add_u32 {vr(vWoRd)}, {sr(sT)}, v27")
        I(f"v_lshrrev_b32 v27, 3, {vr(vLane)}"); I("v_lshlrev_b32 v27, 10, v27")
        I(f"v_and_b32 v28, 7, {vr(vLane)}"); I(f"v_lshl_add_u32 {vr(vWoffO)}, v28, 4, v27")
        I("v_and_b32 v26, 1, v25"); I("v_lshlrev_b32 v26, 4, v26"); I("v_lshl_add_u32 v26, v24, 5, v26")
        I(f"s_lshl_b32 {sr(sT)}, {sr(sV)}, 9"); I(f"v_add_u32 {vr(vXoff)}, {sr(sT)}, v26")
        I(f"v_lshrrev_b32 v26, 2, {vr(vLane)}"); I(f"v_lshlrev_b32 {vr(vQoff)}, 4, v26")
        I("v_and_b32 v26, 7, v25"); I(f"v_lshlrev_b32 {vr(vLoff)}, 2, v26")
        I("v_lshlrev_b32 v26, 4, v26"); I(f"v_lshl_add_u32 {vr(vOoff)}, v24, 7, v26")
        I(f"v_lshrrev_b32 v26, 2, {vr(vLane)}"); I("v_lshlrev_b32 v26, 7, v26")
        I(f"v_and_b32 v27, 3, {vr(vLane)}"); I("v_lshl_add_u32 v26, v27, 2, v26")
        I(f"s_lshl_b32 {sr(sT)}, {sr(sJ8)}, 4"); I(f"v_add_u32 {vr(vOpub)}, {sr(sT)}, v26")
        I(f"v_bfe_u32 v26, {vr(vLane)}, 2, 1"); I("v_lshlrev_b32 v27, 6, v26"); I(f"v_lshl_add_u32 {vr(vYpub)}, v24, 4, v27")
        I("v_lshlrev_b32 v27, 10, v26")
        I(f"v_and_b32 v28, 3, {vr(vLane)}"); I("v_lshl_add_u32 v27, v28, 3, v27")
        I(f"s_lshl_b32 {sr(sT)}, {sr(sR)}, 5"); I(f"v_add_u32 v30, {sr(sT)}, v27")
        I("v_lshlrev_b32 v26, 4, v26")
        I("v_lshrrev_b32 v27, 1, v28"); I("v_lshl_add_u32 v26, v27, 5, v26")
        I("v_and_b32 v27, 1, v28"); I("v_lshl_add_u32 v26, v27, 3, v26")
        I(f"s_lshl_b32 {sr(sT)}, {sr(sR)}, 6"); I(f"v_add_u32 {vr(vXpub)}, {sr(sT)}, v26")
        I("v_and_b32 v26, 1, v24"); I("v_lshlrev_b32 v26, 8, v26"); I("v_lshl_add_u32 v26, v25, 1, v26")
        I(f"s_lshl_b32 {sr(sT)}, {sr(sJ8)}, 5"); I(f"v_add_u32 {vr(vQpub)}, {sr(sT)}, v26")
        if self.profile:
            I(f"s_lshl_b32 {sr(sT)}, {sr(sWG)}, 2"); I(f"s_add_u32 {sr(sT)}, {sr(sT)}, {sr(sV)}"); I(f"s_lshl_b32 {sr(sT)}, {sr(sT)}, 10")
            I(f"s_add_u32 {sr(sT)}, {sr(sT)}, {PROF_OFF}"); I(f"v_add_u32 {vr(vStA)}, {sr(sT)}, {vr(vL4)}")
            I("s_memrealtime s[88:89]"); I("s_memtime s[90:91]"); I("s_waitcnt lgkmcnt(0)")
            I(f"v_mov_b32 {vr(vStD)}, s88"); I(f"v_writelane_b32 {vr(vStD)}, s90, 1")
            I(f"s_getreg_b32 {sr(sT)}, hwreg(HW_REG_HW_ID)"); I(f"v_writelane_b32 {vr(vStD)}, {sr(sT)}, 2")
            I("s_mov_b64 exec, 7")
            I(f"buffer_store_dword {vr(vStD)}, {vr(vStA)}, {sr(SRD['WS'],4)}, 0 offen offset:512")
            I("s_mov_b64 exec, -1")
        self.vm("xold", f"buffer_load_dwordx2 v[{vXold}:{vXold+1}], v30, s[44:47], 0 offen")

    def layer(self, T, plan):
        I = self.I
        last = (T == "B")
        lg = (lambda n: 0) if self.profile else (lambda n: n)
        X, W, DQ, DS = 24, 40, 56, 60
        self.stamp("start")
        self.p1_site(lambda: plan("D0"))
        for k in range(4):
            for t in range(2):
                I(f"ds_read_b64_tr_b16 {vr(W+4*k+2*t,2)}, {vr(vL8w)} offset:{WQ_OFF[T] + k*1024 + t*512}")
        for i in range(16): I(f"v_mov_b32 {vr(X+i)}, 0x3f803f80")
        I(f"v_and_b32 v66, 15, {vr(vLane)}"); I(f"v_lshrrev_b32 v67, 4, {vr(vLane)}")
        I("v_lshlrev_b32 v64, 6, v66"); I("v_lshl_add_u32 v64, v67, 4, v64")
        I(f"s_mul_i32 {sr(sT)}, {sr(sV)}, 192"); I(f"s_add_u32 {sr(sT)}, {sr(sT)}, {QB}"); I(f"v_add_u32 v64, {sr(sT)}, v64")
        I(f"s_lshl_b32 {sr(sT)}, {sr(sV)}, 4"); I(f"s_add_u32 {sr(sT)}, {sr(sT)}, {SB}")
        I(f"v_lshlrev_b32 v65, 3, {vr(vLane)}"); I(f"v_add_u32 v65, {sr(sT)}, v65")
        I(f"v_add_u32 v68, {QB}, {vr(vL4)}")
        I("v_lshlrev_b32 v66, 2, v66"); I(f"v_add_u32 v66, {QB+128}, v66")
        I("v_and_b32 v67, 1, v67"); I("v_lshlrev_b32 v67, 3, v67"); I(f"v_add_u32 v67, {SB}, v67")
        def d_issue(track):
            I(f"s_mov_b64 exec, {sr(mJ2,2)}")
            for k in range(4):
                t = f"buffer_load_dwordx4 {vr(X+4*k,4)}, {vr(vXoff)}, {sr(SRD['XSRC'],4)}, 0 offen offset:{128*k} sc1"
                self.vm("pollD", t) if track else I(t)
            I("s_mov_b64 exec, -1")
        def chk16(base, extra=None, ta=69, tb=70, mask="exec"):
            def f():
                a, b = vr(ta), vr(tb)
                I(f"v_max3_u32 {a}, {vr(base)}, {vr(base+1)}, {vr(base+2)}")
                I(f"v_max3_u32 {b}, {vr(base+3)}, {vr(base+4)}, {vr(base+5)}")
                I(f"v_max3_u32 {a}, {a}, {vr(base+6)}, {vr(base+7)}")
                I(f"v_max3_u32 {b}, {b}, {vr(base+8)}, {vr(base+9)}")
                I(f"v_max3_u32 {a}, {a}, {vr(base+10)}, {vr(base+11)}")
                I(f"v_max3_u32 {b}, {b}, {vr(base+12)}, {vr(base+13)}")
                I(f"v_max3_u32 {a}, {a}, {vr(base+14)}, {vr(base+15)}")
                if extra is not None: I(f"v_max3_u32 {a}, {a}, {b}, {vr(extra)}")
                else: I(f"v_max_u32 {a}, {a}, {b}")
                I(f"v_cmp_eq_u32 vcc, -1, {a}")
                I(f"s_and_b64 vcc, vcc, {mask}")
            return f
        self.hop(d_issue, chk16(X), lambda iss, chk: plan("D", iss, chk))
        self.stamp("Dok")
        I("s_waitcnt lgkmcnt(0)")
        for k in range(4):
            c = "0" if k == 0 else vr(DQ, 4)
            I(f"v_mfma_f32_16x16x32_bf16 {vr(DQ,4)}, {vr(W+4*k,4)}, {vr(X+4*k,4)}, {c}")
            c = "0" if k == 0 else vr(DS, 4)
            I(f"v_mfma_f32_16x16x32_bf16 {vr(DS,4)}, {vr(X+4*k,4)}, {vr(X+4*k,4)}, {c}")
        I(f"v_cmp_eq_u32 vcc, 1, {vr(vLane)}")
        I(f"s_mov_b64 exec, {sr(mJ3,2)}")
        I(f"ds_write_b128 v64, {vr(DQ,4)}")
        I("s_mov_b64 exec, 3")
        I(f"v_cndmask_b32 {vr(DS)}, {vr(DS)}, {vr(DS+1)}, vcc")
        I(f"v_mov_b32 {vr(DS+1)}, {vr(DS+2)}")
        I(f"ds_write_b64 v65, v[{DS}:{DS+1}]")
        I("s_mov_b64 exec, -1")
        I("s_waitcnt lgkmcnt(0)")
        I("s_barrier")
        self.stamp("Qbar")
        lf = self.newlab("FQ")
        I(f"s_cmp_lg_u32 {sr(sV)}, 0"); I(f"s_cbranch_scc1 {lf}")
        I("ds_read2_b32 v[24:25], v68 offset0:0 offset1:48")
        I("ds_read2_b32 v[26:27], v68 offset0:96 offset1:144")
        I("ds_read2_b32 v[28:29], v66 offset0:0 offset1:48")
        I("ds_read2_b32 v[30:31], v66 offset0:96 offset1:144")
        for w in range(4): I(f"ds_read_b64 v[{32+2*w}:{33+2*w}], v67 offset:{16*w}")
        I("s_waitcnt lgkmcnt(0)")
        I("v_add_f32 v33, v33, v35"); I("v_add_f32 v37, v37, v39"); I("v_add_f32 v32, v32, v34"); I("v_add_f32 v36, v36, v38")
        I("v_add_f32 v24, v24, v25"); I("v_add_f32 v33, v33, v37"); I("v_add_f32 v26, v26, v27"); I("v_add_f32 v32, v32, v36")
        I(f"v_mul_f32 v33, {f2u(1/512):#x}, v33"); I("v_add_f32 v28, v28, v29")
        I(f"v_mul_f32 v32, {f2u(1/512):#x}, v32"); I("v_add_f32 v30, v30, v31")
        I("v_fma_f32 v32, -v33, v33, v32"); I("v_add_f32 v24, v24, v26")
        I("v_max_f32 v32, 0, v32"); I("v_add_f32 v28, v28, v30")
        I(f"v_add_f32 v32, {f2u(1e-5):#x}, v32")
        I("v_fma_f32 v24, -v33, v28, v24")
        I("v_rsq_f32 v32, v32")
        I("v_mul_f32 v24, v24, v32")
        I("v_mov_b32_dpp v25, v24 quad_perm:[1,1,3,3] row_mask:0xf bank_mask:0xf")
        I("v_cvt_pk_bf16_f32 v24, v24, v25")
        I("s_mov_b64 exec, 0x55555555")
        self.pub(lambda fl: f"buffer_store_dword v24, {vr(vQpub)}, {sr(SRD['WS'],4)}, {sr(sQpub)} offen {fl}")
        I("s_mov_b64 exec, -1")
        self.label(lf)
        self.stamp("Qpub")
        Q = 76
        def a_issue(track):
            t = f"buffer_load_dwordx4 {vr(Q,4)}, {vr(vQoff)}, {sr(SRD['WS'],4)}, {sr(sQpoll)} offen sc1"
            self.vm("pollA", t) if track else I(t)
        def a_check():
            I(f"v_max3_u32 v69, {vr(Q)}, {vr(Q+1)}, {vr(Q+2)}")
            I(f"v_max_u32 v69, v69, {vr(Q+3)}")
            I("v_cmp_eq_u32 vcc, -1, v69")
            I("s_and_b64 vcc, vcc, exec")
        self.hop(a_issue, a_check, lambda iss, chk: plan("A", iss, chk))
        self.stamp("Aok")
        S = 24; kb = KBASE[T]
        for cc in range(8):
            for u in range(2):
                for tl in range(4):
                    c = "0" if (cc == 0 and u == 0) else vr(S+4*tl, 4)
                    I(f"v_mfma_f32_4x4x4_16b_bf16 {vr(S+4*tl,4)}, {vr(Q+2*u,2)}, {ar(kb+32*tl+4*cc+2*u,2)}, {c} cbsz:3 abid:{cc}")
        VT = 40
        def vtemp_reads():
            for n in range(NVLDS):
                I(f"ds_read_b64_tr_b16 {vr(VT+4*n,2)}, {vr(vTrLo)} offset:{VL_OFF[T] + n*1024}")
                I(f"ds_read_b64_tr_b16 {vr(VT+4*n+2,2)}, {vr(vTrHi)} offset:{VL_OFF[T] + n*1024}")
        vtemp_reads()
        I(f"v_permlane32_swap_b32 {vr(S)}, {vr(S+4)}")
        I(f"v_permlane32_swap_b32 {vr(S+8)}, {vr(S+12)}")
        I(f"v_add_f32 {vr(S)}, {vr(S)}, {vr(S+4)}")
        I(f"v_add_f32 {vr(S+8)}, {vr(S+8)}, {vr(S+12)}")
        M_, TM = 25, 26
        I(f"v_max_f32 {vr(M_)}, {vr(S)}, {vr(S+8)}")
        for rr in (8, 4, 2, 1):
            I(f"v_max_f32_dpp {vr(M_)}, {vr(M_)}, {vr(M_)} row_ror:{rr} row_mask:0xf bank_mask:0xf")
        I(f"v_mov_b32 {vr(TM)}, {vr(M_)}"); I(f"v_permlane16_swap_b32 {vr(M_)}, {vr(TM)}"); I(f"v_max_f32 {vr(M_)}, {vr(M_)}, {vr(TM)}")
        I(f"v_mov_b32 {vr(TM)}, {vr(M_)}"); I(f"v_permlane32_swap_b32 {vr(M_)}, {vr(TM)}"); I(f"v_max_f32 {vr(M_)}, {vr(M_)}, {vr(TM)}")
        I(f"v_mul_f32 v36, {sr(sC)}, {vr(M_)}")
        I(f"v_fma_f32 {vr(S)}, {vr(S)}, {sr(sC)}, -v36")
        I(f"v_fma_f32 {vr(S+8)}, {vr(S+8)}, {sr(sC)}, -v36")
        I(f"v_exp_f32 {vr(S)}, {vr(S)}")
        I(f"v_exp_f32 {vr(S+8)}, {vr(S+8)}")
        P0, P1 = 34, 38
        I(f"v_mov_b32_dpp {vr(TM)}, {vr(S)} quad_perm:[1,1,3,3] row_mask:0xf bank_mask:0xf")
        I(f"v_mov_b32_dpp v27, {vr(S+8)} quad_perm:[1,1,3,3] row_mask:0xf bank_mask:0xf")
        I(f"v_cvt_pk_bf16_f32 {vr(P0)}, {vr(S)}, {vr(TM)}")
        I(f"v_cvt_pk_bf16_f32 {vr(P1)}, {vr(S+8)}, v27")
        I(f"v_add_f32 v33, {vr(S)}, {vr(S+8)}")
        I(f"v_mov_b32_dpp {vr(P0+1)}, {vr(P0)} quad_perm:[2,2,2,2] row_mask:0xf bank_mask:0xf")
        I(f"v_mov_b32_dpp {vr(P1+1)}, {vr(P1)} quad_perm:[2,2,2,2] row_mask:0xf bank_mask:0xf")
        self.stamp("SM")
        def pv_p1():
            I("s_waitcnt lgkmcnt(0)")
            plan("PV")
            vtemp_reads()
        self.p1_site(pv_p1)
        self.stamp("Vok")
        OL, OH = 28, 24
        lsum = [f"v_add_f32_dpp v33, v33, v33 row_ror:{rr} row_mask:0xf bank_mask:0xf" for rr in (8, 4, 2, 1)]
        lsum += ["v_mov_b32 v37, v33", "v_permlane16_swap_b32 v33, v37", "v_add_f32 v33, v33, v37",
                 "v_mov_b32 v37, v33", "v_permlane32_swap_b32 v33, v37", "v_add_f32 v37, v33, v37"]
        extra = [f"s_lshl_b32 {sr(sT)}, {sr(sV)}, 9", f"s_add_u32 {sr(sT)}, {sr(sT)}, {OB}"]
        first = True; cnt = 0
        for n in range(32):
            J, b = n >> 4, n & 15
            Pp = P0 if J == 0 else P1
            src = VBASE[T] + 4 * n if n < NVREG else VT + 4 * (n - NVREG)
            if n == NVREG: I("s_waitcnt lgkmcnt(0)")
            c = "0" if first else vr(OL, 4)
            I(f"v_mfma_f32_4x4x4_16b_bf16 {vr(OL,4)}, {vr(Pp,2)}, {vr(src,2)}, {c} cbsz:4 abid:{b}")
            c = "0" if first else vr(OH, 4)
            I(f"v_mfma_f32_4x4x4_16b_bf16 {vr(OH,4)}, {vr(Pp,2)}, {vr(src+2,2)}, {c} cbsz:4 abid:{b}")
            first = False
            if cnt % 2 == 0 and lsum and n >= 1: I(lsum.pop(0))
            else: I("s_nop 0")
            cnt += 1
        assert not lsum
        I(f"s_lshl_b32 {sr(sT)}, {sr(sV)}, 9"); I(f"s_add_u32 {sr(sT)}, {sr(sT)}, {OB}"); I(f"v_add_u32 v40, {sr(sT)}, {vr(vL4)}")
        I(f"s_lshl_b32 {sr(sT)}, {sr(sV)}, 3"); I(f"s_add_u32 {sr(sT)}, {sr(sT)}, {MB}"); I(f"v_mov_b32 v41, {sr(sT)}")
        I(f"ds_write_b32 v40, {vr(OL)}")
        I(f"ds_write_b32 v40, {vr(OH)} offset:256")
        I("s_mov_b64 exec, 1")
        I("ds_write_b64 v41, v[36:37]")
        I("s_mov_b64 exec, -1")
        I(f"v_lshlrev_b32 v42, 3, {vr(vLane)}"); I(f"v_add_u32 v42, {OB}, v42"); I(f"v_mov_b32 v43, {MB}")
        self.stamp("PV")
        self.p1_site(lambda: plan("B0"))
        I("s_waitcnt lgkmcnt(0)")
        I("s_barrier")
        self.stamp("Obar")
        W2 = 56
        for k in range(4):
            for t in range(2):
                I(f"ds_read_b64_tr_b16 {vr(W2+4*k+2*t,2)}, {vr(vWoRd)} offset:{WO_OFF[T] + k*4096 + t*512}")
        lc = self.newlab("CB")
        I(f"s_cmp_lg_u32 {sr(sV)}, 0"); I(f"s_cbranch_scc1 {lc}")
        I("ds_read_b128 v[24:27], v43"); I("ds_read_b128 v[28:31], v43 offset:16")
        for w in range(4): I(f"ds_read_b64 v[{32+2*w}:{33+2*w}], v42 offset:{512*w}")
        I(f"s_waitcnt lgkmcnt({lg(4)})")
        I("v_max3_f32 v44, v24, v26, v28"); I("v_max_f32 v44, v44, v30")
        I("v_sub_f32 v24, v24, v44"); I("v_sub_f32 v26, v26, v44"); I("v_sub_f32 v28, v28, v44"); I("v_sub_f32 v30, v30, v44")
        I("v_exp_f32 v24, v24"); I("v_exp_f32 v26, v26"); I("v_exp_f32 v28, v28"); I("v_exp_f32 v30, v30")
        I("v_mul_f32 v45, v24, v25"); I("v_fmac_f32 v45, v26, v27"); I("v_fmac_f32 v45, v28, v29"); I("v_fmac_f32 v45, v30, v31")
        I("s_waitcnt lgkmcnt(0)")
        I("v_rcp_f32 v46, v45")
        I("v_mul_f32 v48, v24, v32"); I("v_mul_f32 v49, v24, v33")
        I("v_fmac_f32 v48, v26, v34"); I("v_fmac_f32 v49, v26, v35")
        I("v_fmac_f32 v48, v28, v36"); I("v_fmac_f32 v49, v28, v37")
        I("v_fmac_f32 v48, v30, v38"); I("v_fmac_f32 v49, v30, v39")
        I("v_log_f32 v47, v45")
        I("v_mul_f32 v48, v48, v46"); I("v_mul_f32 v49, v49, v46")
        I("v_cvt_pk_bf16_f32 v48, v48, v49")
        I("v_add_f32 v47, v47, v44")
        I("v_mov_b32 v50, 0")
        lf2, le2 = self.newlab("PF"), self.newlab("PE")
        I(f"s_cmp_lg_u32 {sr(sFast)}, 0"); I(f"s_cbranch_scc1 {lf2}")
        I(f"buffer_store_dword v48, {vr(vOpub)}, {sr(SRD['WS'],4)}, {sr(sOpub)} offen sc1")
        I("s_mov_b64 exec, 1")
        I(f"buffer_store_dword v47, v50, {sr(SRD['WS'],4)}, {sr(sLpub)} offen sc1")
        I(f"s_branch {le2}")
        self.label(lf2)
        I(f"buffer_store_dword v48, {vr(vOpub)}, {sr(SRD['WS'],4)}, {sr(sOpub)} offen")
        I("s_mov_b64 exec, 1")
        I(f"buffer_store_dword v47, v50, {sr(SRD['WS'],4)}, {sr(sLpub)} offen")
        self.label(le2)
        I("s_mov_b64 exec, -1")
        self.label(lc)
        self.stamp("Opub")
        O_, LS = 24, 40
        def b_issue(track):
            I(f"s_mov_b64 exec, {sr(mJ8,2)}")
            for k in range(4):
                t = f"buffer_load_dwordx4 {vr(O_+4*k,4)}, {vr(vOoff)}, {sr(SRD['WS'],4)}, {sr(sOpoll)} offen offset:{512*k} sc1"
                self.vm("pollB", t) if track else I(t)
            t = f"buffer_load_dword {vr(LS)}, {vr(vLoff)}, {sr(SRD['WS'],4)}, {sr(sLpoll)} offen sc1"
            self.vm("pollB", t) if track else I(t)
            I("s_mov_b64 exec, -1")
        self.hop(b_issue, chk16(O_, LS, 46, 47, mask=sr(mJ8,2)), lambda iss, chk: plan("B", iss, chk))
        self.stamp("Bok")
        DY = 48
        I("s_waitcnt lgkmcnt(0)")
        for k in range(4):
            c = "0" if k == 0 else vr(DY, 4)
            I(f"v_mfma_f32_16x16x32_bf16 {vr(DY,4)}, {vr(W2+4*k,4)}, {vr(O_+4*k,4)}, {c}")
        I(f"v_mov_b32_dpp v41, {vr(LS)} quad_perm:[1,0,3,2] row_mask:0xf bank_mask:0xf")
        I(f"v_max_f32 v41, v41, {vr(LS)}")
        I("v_mov_b32_dpp v42, v41 quad_perm:[2,3,0,1] row_mask:0xf bank_mask:0xf")
        I("v_max_f32 v41, v41, v42")
        I(f"v_sub_f32 v41, {vr(LS)}, v41")
        I("v_exp_f32 v41, v41")
        I("v_add_f32_dpp v42, v41, v41 quad_perm:[1,0,3,2] row_mask:0xf bank_mask:0xf")
        I("v_add_f32_dpp v42, v42, v42 quad_perm:[2,3,0,1] row_mask:0xf bank_mask:0xf")
        I("v_rcp_f32 v42, v42")
        I("v_mul_f32 v41, v41, v42")
        for i in range(4): I(f"v_mul_f32 {vr(DY+i)}, {vr(DY+i)}, v41")
        for i in range(4): I(f"v_add_f32_dpp {vr(DY+i)}, {vr(DY+i)}, {vr(DY+i)} quad_perm:[1,0,3,2] row_mask:0xf bank_mask:0xf")
        for i in range(4): I(f"v_add_f32_dpp {vr(DY+i)}, {vr(DY+i)}, {vr(DY+i)} quad_perm:[2,3,0,1] row_mask:0xf bank_mask:0xf")
        I(f"s_mov_b64 exec, {sr(mJ04,2)}")
        I(f"buffer_store_dwordx4 {vr(DY,4)}, {vr(vYpub)}, {sr(SRD['WS'],4)}, {sr(sYpub)} offen sc1")
        I("s_mov_b64 exec, -1")
        self.stamp("Ypub")
        I(f"s_add_u32 {sr(sT)}, {sr(sLay)}, {sr(sXS)}")
        I(f"s_add_u32 s44, {sr(sWSlo)}, {sr(sT)}"); I(f"s_addc_u32 s45, {sr(sWShi)}, 0")
        I("s_mov_b32 s48, s44"); I("s_mov_b32 s49, s45"); I("s_mov_b32 s50, 2048")
        if last:
            I(f"s_cmp_eq_u32 {sr(sPass)}, 1")
            I(f"s_cselect_b32 s48, {sr(sOUT)}, s48"); I(f"s_cselect_b32 s49, {sr(sOUT+1)}, s49")
            I(f"s_cselect_b32 {sr(sT)}, {sr(sG)}, 0")
            I(f"s_cmp_eq_u32 {sr(sT)}, 0")
            I("s_cselect_b32 s50, 2048, 0")
            I(f"v_bfe_u32 v52, {vr(vLane)}, 2, 1"); I("v_lshlrev_b32 v52, 10, v52")
            I(f"v_and_b32 v53, 3, {vr(vLane)}"); I("v_lshl_add_u32 v52, v53, 3, v52")
            I(f"s_lshl_b32 {sr(sT)}, {sr(sR)}, 5"); I(f"v_add_u32 v52, {sr(sT)}, v52")
            I(f"s_cmp_eq_u32 {sr(sPass)}, 1"); I("s_cselect_b64 vcc, -1, 0")
            I(f"v_cndmask_b32 v52, {vr(vXpub)}, v52, vcc")
        lx = self.newlab("CX"); lnz = self.newlab("CNZ")
        I(f"s_cmp_lg_u32 {sr(sV)}, 0"); I(f"s_cbranch_scc1 {lnz}")
        Y = 24
        def c_issue(track):
            for i in range(4):
                t = f"buffer_load_dwordx4 {vr(Y+4*i,4)}, {vr(vL16)}, {sr(SRD['WS'],4)}, {sr(sYpoll)} offen offset:{1024*i} sc1"
                self.vm("pollC", t) if track else I(t)
        st_before = self.state()
        self.hop(c_issue, chk16(Y), lambda iss, chk: plan("C", iss, chk))
        self.stamp("Cok")
        for i in range(4): I(f"v_add_f32 {vr(Y+i)}, {vr(Y+i)}, {vr(Y+4+i)}")
        for i in range(4): I(f"v_add_f32 {vr(Y+8+i)}, {vr(Y+8+i)}, {vr(Y+12+i)}")
        for i in range(4): I(f"v_add_f32 {vr(Y+i)}, {vr(Y+i)}, {vr(Y+8+i)}")
        for i in range(4): I(f"v_add_f32_dpp {vr(Y+i)}, {vr(Y+i)}, {vr(Y+i)} row_ror:8 row_mask:0xf bank_mask:0xf")
        for i in range(4): I(f"v_mov_b32 v{32+i}, {vr(Y+i)}")
        for i in range(4): I(f"v_permlane16_swap_b32 {vr(Y+i)}, v{32+i}")
        for i in range(4): I(f"v_add_f32 {vr(Y+i)}, {vr(Y+i)}, v{32+i}")
        for i in range(4): I(f"v_mov_b32 v{32+i}, {vr(Y+i)}")
        for i in range(4): I(f"v_permlane32_swap_b32 {vr(Y+i)}, v{32+i}")
        for i in range(4): I(f"v_add_f32 {vr(Y+i)}, {vr(Y+i)}, v{32+i}")
        I(f"v_cvt_pk_bf16_f32 v32, {vr(Y)}, {vr(Y+1)}"); I(f"v_cvt_pk_bf16_f32 v33, {vr(Y+2)}, {vr(Y+3)}")
        I("v_lshlrev_b32 v34, 16, v32"); I("v_and_b32 v35, 0xffff0000, v32"); I("v_lshlrev_b32 v36, 16, v33"); I("v_and_b32 v37, 0xffff0000, v33")
        for i in range(4): I(f"v_add_f32 v{34+i}, v{34+i}, {vr(vXold+i)}")
        I("v_cvt_pk_bf16_f32 v32, v34, v35"); I("v_cvt_pk_bf16_f32 v33, v36, v37")
        I("s_mov_b64 exec, 0xff")
        self.pub(lambda fl: f"buffer_store_dwordx2 v[32:33], {vr(52 if last else vXpub)}, {sr(SRD['XDST'],4)}, 0 offen {fl}")
        I("s_mov_b64 exec, -1")
        I(f"v_lshlrev_b32 {vr(vXold)}, 16, v32"); I(f"v_and_b32 {vr(vXold+1)}, 0xffff0000, v32")
        I(f"v_lshlrev_b32 {vr(vXold+2)}, 16, v33"); I(f"v_and_b32 {vr(vXold+3)}, 0xffff0000, v33")
        self.stamp("Xpub")
        I(f"s_branch {lx}")
        st_after = self.state()
        self.label(lnz)
        self.set_state(st_before)
        self.p1_site(lambda: plan("C", None, None))
        assert self.state()[1:] == st_after[1:], (self.state()[1:], st_after[1:])
        self.label(lx)
        for s_ in (sLay, sQpub, sQpoll, sOpub, sLpub, sOpoll, sLpoll, sYpub, sYpoll):
            I(f"s_add_u32 {sr(s_)}, {sr(s_)}, {LAYER_STRIDE}")
        self.flush_stamps(T)

    def build(self, plan_factory):
        self.build_items()
        self.prologue()
        plan = plan_factory(self)
        self.label("L_LOOP")
        self.layer("A", lambda site, iss=None, chk=None: plan("A", site, iss, chk))
        self.layer("B", lambda site, iss=None, chk=None: plan("B", site, iss, chk))
        assert self.next_item == len(self.items), (self.next_item, len(self.items))
        assert self.kdone == {"A": 4, "B": 4} and self.vdone == {"A": NVREG, "B": NVREG}
        self.I(f"s_add_u32 {sr(sPass)}, {sr(sPass)}, 1")
        self.I(f"s_cmp_lt_u32 {sr(sPass)}, 2")
        self.I("s_cbranch_scc1 L_LOOP")
        if self.profile:
            self.I("s_memrealtime s[88:89]"); self.I("s_memtime s[90:91]"); self.I("s_waitcnt lgkmcnt(0)")
            self.I(f"v_mov_b32 {vr(vStD)}, s88"); self.I(f"v_writelane_b32 {vr(vStD)}, s90, 1")
            self.I("s_mov_b64 exec, 3")
            self.I(f"buffer_store_dword {vr(vStD)}, {vr(vStA)}, {sr(SRD['WS'],4)}, 0 offen offset:768")
            self.I("s_mov_b64 exec, -1")
        self.label("L_END")
        self.I("s_endpgm")
        hdr = [f"; @launch grid=(256,1,1) block=(256,1,1) lds={LDS_BYTES}", '.amdgcn_target "amdgcn-amd-amdhsa--gfx950"',
               ".text", f".globl {KNAME}", ".p2align 8", f".type {KNAME},@function", f"{KNAME}:"]
        tail = ['.section .rodata,"a"', ".p2align 6", f".amdhsa_kernel {KNAME}",
                "  .amdhsa_next_free_vgpr 512", "  .amdhsa_next_free_sgpr 102", "  .amdhsa_accum_offset 256",
                "  .amdhsa_group_segment_fixed_size 0", "  .amdhsa_kernarg_size 104", "  .amdhsa_user_sgpr_count 2",
                "  .amdhsa_user_sgpr_kernarg_segment_ptr 1", "  .amdhsa_system_sgpr_workgroup_id_x 1",
                "  .amdhsa_float_denorm_mode_32 3", ".end_amdhsa_kernel"]
        return "\n".join(hdr + self.main.lines + self.ool.lines + tail) + "\n"

def startup_check(G):
    I = G.I
    l = G.newlab("SC"); lp = G.newlab("SCL"); dn = G.newlab("SCD")
    I(f"s_cmp_lg_u32 {sr(sV)}, 0"); I(f"s_cbranch_scc1 {l}")
    I(f"v_lshrrev_b32 v72, 1, {vr(vLane)}"); I("v_lshlrev_b32 v72, 6, v72")
    I(f"v_and_b32 v73, 1, {vr(vLane)}"); I("v_lshl_add_u32 v72, v73, 3, v72")
    I(f"s_mov_b32 {sr(sCnt)}, 0")
    I("s_mov_b64 exec, 0xff")
    G.label(lp)
    I(f"global_load_dwordx2 v[74:75], v72, {sr(sDBG,2)} sc1")
    I("s_waitcnt vmcnt(0)")
    I("v_sad_u8 v73, v74, 0, 0"); I("v_sad_u8 v73, v75, 0, v73")
    I("v_cmp_ne_u32 vcc, 32, v73")
    I(f"s_cbranch_vccz {dn}")
    I(f"s_add_u32 {sr(sCnt)}, {sr(sCnt)}, 1")
    I(f"s_cmp_lt_u32 {sr(sCnt)}, {G.cfg.get('spin', 40000)}")
    I(f"s_cbranch_scc1 {lp}")
    G.label(dn)
    I(f"v_readlane_b32 {sr(sT2)}, v74, {sr(sG)}")
    I(f"v_readlane_b32 {sr(sT3)}, v75, {sr(sG)}")
    I("s_mov_b64 exec, -1")
    I(f"s_lshl_b32 {sr(sT)}, {sr(sXcc)}, 3")
    I(f"s_lshr_b64 s[{sT2}:{sT3}], s[{sT2}:{sT3}], {sr(sT)}")
    I(f"s_and_b32 {sr(sT2)}, {sr(sT2)}, 0xff")
    I(f"s_cmp_eq_u32 {sr(sT2)}, 32")
    I(f"s_cselect_b32 {sr(sFast)}, {0 if G.cfg.get('force_slow') else 1}, 0")
    G.label(l)

def make_plan(G):
    c = G.cfg
    d1 = c.get("d1", 24)
    allW = lambda m, T: all(G.landed(("W", m, T, k)) for k in range(4))
    def hop_p1(tag, iss, chk, name, dflt):
        pre, low, n, ch = c.get(name, dflt)
        G.bg(pre, depth=c.get("d2", 10), allow=(() if name == "hC" else ("K", "V")))
        G.wait_out(low) if iss is not None else None
        if iss is None:
            for _ in range(n): G.step(ch, depth=c.get("d2", 10), allow=())
        else:
            G.attempts(tag, iss, chk, n, ch)
    def plan(T, site, iss=None, chk=None):
        I = G.I
        if T == "A":
            if site == "D0":
                G.bg_until(lambda: allW("q", "A"), depth=d1, allow=())
            elif site == "D":
                I(f"v_lshrrev_b32 v72, 4, {vr(vLane)}"); I(f"v_and_b32 v73, 1, {vr(vLane)}")
                I("v_lshlrev_b32 v73, 10, v73"); I("v_lshl_add_u32 v72, v72, 4, v73")
                I(f"s_lshl_b32 {sr(sT)}, {sr(sV)}, 8"); I(f"v_add_u32 v72, {sr(sT)}, v72")
                I(f"s_mov_b64 exec, {sr(mJ2,2)}")
                for k in range(4):
                    G.vm("pollD", f"buffer_load_dwordx4 {vr(24+4*k,4)}, v72, {sr(SRD['XSRC'],4)}, 0 offen offset:{64*k}")
                I("s_mov_b64 exec, -1")
                G.issue(c.get("dA_after", 8))
                G.need("pollD"); G.need("xold")
                I(f"v_and_b32 {vr(vXold+3)}, 0xffff0000, {vr(vXold+1)}"); I(f"v_lshlrev_b32 {vr(vXold+2)}, 16, {vr(vXold+1)}")
                I(f"v_and_b32 {vr(vXold+1)}, 0xffff0000, {vr(vXold)}"); I(f"v_lshlrev_b32 {vr(vXold)}, 16, {vr(vXold)}")
                startup_check(G)
                G.relayout_ready()
            elif site == "A":
                G.bg_until(lambda: G.kdone["A"] >= 3, depth=d1)
                G.attempts("pollA", iss, chk, 1, c.get("aA_after", 8))
                G.bg_until(lambda: G.kdone["A"] == 4, depth=d1)
            elif site == "PV":
                G.bg_until(lambda: G.issued(("V", "A", 31)), depth=d1)
                G.bg_until(lambda: G.vdone["A"] == NVREG and G.landed(("V", "A", 31)), depth=c.get("d2", 10))
            elif site == "B0":
                G.bg_until(lambda: allW("o", "A"), depth=c.get("d2", 10))
            elif site == "B": hop_p1("pollB", iss, chk, "hB", [1, 4, 2, 4])
            elif site == "C": hop_p1("pollC", iss, chk, "hC", [1, 4, 3, 4])
        else:
            if site == "D0":
                G.bg_until(lambda: allW("q", "B"), depth=c.get("d2", 10))
            elif site == "D": hop_p1("pollD", iss, chk, "hD", [0, 4, 3, 4])
            elif site == "A":
                hop_p1("pollA", iss, chk, "hA", [0, 4, 3, 4])
                G.bg_until(lambda: G.kdone["B"] == 4, depth=d1)
            elif site == "PV":
                G.bg_until(lambda: G.vdone["B"] == NVREG and G.landed(("V", "B", 31)) and G.next_item == len(G.items), depth=d1)
            elif site == "B0":
                G.bg_until(lambda: allW("o", "B"))
            elif site == "B": G.need("pollB")
            elif site == "C":
                if iss: G.need("pollC")
    return plan

def generate(cfg):
    G = Gen(cfg)
    return G.build(make_plan), G

if __name__ == "__main__":
    cfg = json.loads(sys.argv[2]) if len(sys.argv) > 2 else {}
    txt, G = generate(cfg)
    open(sys.argv[1], "w").write(txt)
    if cfg.get("profile"): json.dump(cfg.get("stamps", []), open(sys.argv[1] + ".stamps.json", "w"))
    print("lines", txt.count("\n"), "bytes", len(txt), "items", [ (i, it) for i, it in enumerate(G.items) if it[0] == "W"])
```

```python
import struct, sys, json
from emit import Stream, Ins

KNAME = "interleave_layers__sliding_block_cached__sliding_block_cached__decode_kernel"
def f2u(x): return struct.unpack("<I", struct.pack("<f", x))[0]

LAYER_STRIDE = 0x40000
QS_OFF, XS_OFF, LSE_OFF, OS_OFF, YS_OFF = 0x0, 0x4000, 0x8000, 0x10000, 0x20000
SLOT_BYTES = 4 * LAYER_STRIDE
PROF_OFF = 0x100000
WAVE_BLK = 31744
WQ_OFF = {"A": 0, "B": 4096}
VL_OFF = {"A": 8192, "B": 18432}
STG_OFF = 28672
KST_OFF = VL_OFF["B"]
WO_BASE = 4 * WAVE_BLK
WO_OFF = {"A": 0, "B": 16384}
COMMON = WO_BASE + 32768
OB, QB, SB, MB = COMMON + 0, COMMON + 2048, COMMON + 2816, COMMON + 2880
LDS_BYTES = 163840
NVREG = 22
NVLDS = 32 - NVREG
sWG, sV, sPass, sLay, sFast, sT = 2, 3, 4, 5, 6, 7
SRD = {"KA": 8, "VA": 12, "KB": 16, "VB": 20, "WqA": 24, "WoA": 28, "WqB": 32, "WoB": 36, "WS": 40, "XSRC": 44, "XDST": 48}
sDBG, sOUT = 52, 54
sG, sR, sH, sJ8 = 56, 57, 58, 59
sQpub, sQpoll, sOpub, sLpub, sOpoll, sLpoll, sYpub, sYpoll = 60, 61, 62, 63, 64, 65, 66, 67
mJ2, mJ3, mJ04 = 68, 70, 72
mJ8 = 100
sWB, sCnt, sT2, sT3 = 74, 75, 76, 77
sWqB0, sWoB0 = 78, 79
sC, sXS, sWoM0, sKV = 80, 81, 82, 83
sXcc, sWcol = 84, 85
sWSlo, sWShi = 86, 87
vLane, vL16, vL8w, vTrLo, vTrHi, vXoff, vQoff, vOoff, vLoff, vXpub, vQpub, vL4 = range(12)
vXold = 12
vVswz, vWoffQ, vWoffO = 16, 17, 18
vStD, vStA = 19, 20
vWoRd, vYpub, vOpub = 21, 22, 23
vOutPub = 19
KBASE = {"A": 0, "B": 128}
VBASE = {"A": 80, "B": 168}
SCR = 72

def vr(a, n=1): return f"v{a}" if n == 1 else f"v[{a}:{a+n-1}]"
def ar(a, n=1): return f"a{a}" if n == 1 else f"a[{a}:{a+n-1}]"
def sr(a, n=1): return f"s{a}" if n == 1 else f"s[{a}:{a+n-1}]"

class Gen:
    def __init__(self, cfg):
        self.cfg = cfg
        self.main = Stream(); self.ool = Stream(); self.ool.snap = self.main.snap
        self.cur = self.main
        self.vmq = []
        self.nlab = 0
        self.items = []; self.next_item = 0
        self.kdone = {"A": 0, "B": 0}
        self.vdone = {"A": 0, "B": 0}
        self.profile = cfg.get("profile", False)
        self.kvflags = cfg.get("kvflags", "nt")
        self.wqflags = cfg.get("wqflags", "")
        self.woflags = cfg.get("woflags", "nt")
        self.depth = cfg.get("depth", 8)
    def I(self, t):
        for line in t.split("\n"):
            line = line.strip()
            if line: self.cur.ins(line)
    def label(self, n): self.cur.label(n)
    def newlab(self, p):
        self.nlab += 1
        return f"{p}_{self.nlab}"
    def vm(self, tag, t):
        self.I(t); self.vmq.append(tag)
    def need(self, tag):
        idx = [i for i, x in enumerate(self.vmq) if x == tag]
        if not idx: return
        n = len(self.vmq) - 1 - idx[-1]
        assert n <= 63
        self.I(f"s_waitcnt vmcnt({n})")
        self.vmq = self.vmq[idx[-1] + 1:]
    def wait_out(self, n):
        if len(self.vmq) > n:
            self.I(f"s_waitcnt vmcnt({n})")
            self.vmq = self.vmq[len(self.vmq) - n:] if n else []
    def issued(self, item): return item in self.items[:self.next_item]
    def landed(self, item): return self.issued(item) and item not in self.vmq
    def state(self): return (list(self.vmq), self.next_item, dict(self.kdone), dict(self.vdone))
    def set_state(self, s): self.vmq, self.next_item, self.kdone, self.vdone = list(s[0]), s[1], dict(s[2]), dict(s[3])
    def stamp(self, key):
        if not self.profile: return
        sel = self.cfg.get("stamps", [])
        if key in sel:
            k = sel.index(key)
            self.I(f"s_memtime s[{88+2*k}:{89+2*k}]")
    def flush_stamps(self, T):
        if not self.profile: return
        sel = self.cfg.get("stamps", [])
        self.I("s_waitcnt lgkmcnt(0)")
        for k in range(len(sel)):
            self.I(f"v_writelane_b32 {vr(vStD)}, s{88+2*k}, {k}")
        self.I(f"s_lshl_b32 {sr(sT3)}, {sr(sPass)}, 6")
        if T == "B": self.I(f"s_add_u32 {sr(sT3)}, {sr(sT3)}, 32")
        self.I("s_mov_b64 exec, 0x7f")
        self.I(f"buffer_store_dword {vr(vStD)}, {vr(vStA)}, {sr(SRD['WS'],4)}, {sr(sT3)} offen")
        self.I("s_mov_b64 exec, -1")
    def dbgtime(self, slot, invert=False):
        if not self.cfg.get("dbgtime"): return
        l = self.newlab("DT")
        self.I(f"s_cmp_lg_u32 {sr(sV)}, 0"); self.I(f"s_cbranch_scc1 {l}")
        self.I(f"s_cmp_lg_u32 {sr(sWG)}, {self.cfg.get('dbgwg', 0)}"); self.I(f"s_cbranch_scc1 {l}")
        self.I("s_memrealtime s[88:89]"); self.I("s_waitcnt lgkmcnt(0)")
        self.I(f"v_mov_b32 {vr(vStD)}, s88"); self.I(f"v_mov_b32 {vr(vStA)}, {slot*4}")
        self.I("s_mov_b64 exec, 1")
        if isinstance(slot, int) and slot >= 6 and slot <= 13:
            self.I(f"s_lshl_b32 s89, {sr(sPass)}, 4"); self.I(f"v_add_u32 {vr(vStA)}, s89, {vr(vStA)}")
        self.I(f"global_store_dword {vr(vStA)}, {vr(vStD)}, {sr(sDBG,2)}")
        self.I("s_mov_b64 exec, -1")
        self.label(l)
    def ool_begin(self):
        assert self.cur is self.main
        self.ool.hists = [list(h) for h in self.main.hists]
        self.cur = self.ool
    def ool_end(self): self.cur = self.main
    def p1_site(self, fn):
        lo = self.newlab("P1"); lb = self.newlab("P1B")
        self.I(f"s_cmp_eq_u32 {sr(sPass)}, 0")
        self.I(f"s_cbranch_scc1 {lo}")
        self.ool_begin(); self.label(lo)
        fn()
        self.I("s_nop 7"); self.I(f"s_branch {lb}")
        self.ool_end(); self.label(lb)
    def build_items(self):
        def inter(main, extra, first, every):
            out = []; ex = list(extra); pos = first
            for i, x in enumerate(main):
                if ex and i == pos:
                    out.append(ex.pop(0)); pos += every
                out.append(x)
            return out + ex
        c = self.cfg
        KV = lambda k, T: [(k, T, n) for n in range(32)]
        W = lambda m, T: [("W", m, T, k) for k in range(4)]
        it = []
        it += inter(KV("K", "A"), W("q", "A"), c.get("wqa_first", 0), c.get("wqa_every", 0) or 0) if c.get("wqa_every", 0) else W("q", "A") + KV("K", "A")
        it += inter(inter(KV("V", "A"), W("q", "B"), c.get("wqb_first", 1), c.get("wqb_every", 3)), W("o", "A"), c.get("woa_first", 16), c.get("woa_every", 4))
        it += KV("K", "B")
        it += inter(KV("V", "B"), W("o", "B"), c.get("wob_first", 4), c.get("wob_every", 4))
        self.items = it
    def emit_item(self, it):
        if it[0] == "K":
            _, T, n = it
            self.I(f"s_mov_b32 {sr(sT)}, {n*4096}")
            self.vm(it, f"buffer_load_dwordx4 {ar(KBASE[T]+4*n,4)}, {vr(vL16)}, {sr(SRD['K'+T],4)}, {sr(sT)} offen {self.kvflags}")
        elif it[0] == "V":
            _, T, n = it
            self.I(f"s_mov_b32 {sr(sT)}, {n*4096}")
            if n < NVREG:
                self.vm(it, f"buffer_load_dwordx4 {vr(VBASE[T]+4*n,4)}, {vr(vL16)}, {sr(SRD['V'+T],4)}, {sr(sT)} offen {self.kvflags}")
            else:
                if T == "B": assert self.kdone["B"] == 4, "VB LDS DMA before KB relayout finished"
                self.I(f"s_add_u32 m0, {sr(sWB)}, {VL_OFF[T] + (n-NVREG)*1024}")
                self.vm(it, f"buffer_load_dwordx4 {vr(vVswz)}, {sr(SRD['V'+T],4)}, {sr(sT)} offen {self.kvflags} lds")
        else:
            _, m, T, k = it
            if m == "q":
                self.I(f"s_add_u32 {sr(sT)}, {sr(sWqB0)}, {k*32*8192}")
                self.I(f"s_add_u32 m0, {sr(sWB)}, {WQ_OFF[T] + k*1024}")
                self.vm(it, f"buffer_load_dwordx4 {vr(vWoffQ)}, {sr(SRD['Wq'+T],4)}, {sr(sT)} offen {self.wqflags} lds")
            else:
                self.I(f"s_add_u32 {sr(sT)}, {sr(sWoB0)}, {k*8*1024}")
                self.I(f"s_add_u32 m0, {sr(sWoM0)}, {WO_OFF[T] + k*1024}")
                self.vm(it, f"buffer_load_dwordx4 {vr(vWoffO)}, {sr(SRD['Wo'+T],4)}, {sr(sT)} offen {self.woflags} lds")
    def can_issue(self, it):
        if it[0] == "V" and it[1] == "B" and it[2] >= NVREG: return self.kdone["B"] == 4
        return True
    def issue(self, cnt):
        out = []
        for _ in range(cnt):
            if self.next_item >= len(self.items): break
            it = self.items[self.next_item]
            if not self.can_issue(it): break
            self.next_item += 1
            self.emit_item(it); out.append(it)
        return out
    def relayout_ready(self, allow=("K", "V")):
        prog = True
        while prog:
            prog = False
            for T in "AB":
                if "K" in allow and self.kdone[T] < 4:
                    t = self.kdone[T]
                    if all(self.landed(("K", T, 8*t+i)) for i in range(8)):
                        self.k_relayout(T, t); prog = True
                if "V" in allow and self.vdone[T] < NVREG:
                    n0 = self.vdone[T]; grp = list(range(n0, min(n0 + 3, NVREG)))
                    if all(self.landed(("V", T, n)) for n in grp):
                        self.v_relayout(T, grp); prog = True
    def step(self, chunk=4, depth=None, allow=("K", "V")):
        depth = depth or self.depth
        self.wait_out(max(depth - chunk, 0))
        self.issue(chunk)
        self.relayout_ready(allow)
    def bg(self, n, chunk=4, depth=None, allow=("K", "V")):
        for _ in range(n): self.step(chunk, depth, allow)
    def bg_until(self, cond, chunk=4, depth=None, allow=("K", "V")):
        guard = 0
        while not cond():
            if self.next_item >= len(self.items) or not self.can_issue(self.items[self.next_item]):
                assert self.vmq, "bg_until stuck"
                self.wait_out(max(len(self.vmq) - chunk, 0)); self.relayout_ready(allow)
            else:
                self.step(chunk, depth, allow)
            guard += 1; assert guard < 200
    def k_relayout(self, T, tile):
        b = KBASE[T] + 32 * tile
        w0, r0, t0, t1 = SCR, SCR + 1, SCR + 2, SCR + 3
        I = self.I
        I(f"v_lshrrev_b32 {vr(t0)}, 4, {vr(vLane)}")
        I(f"v_and_b32 {vr(t1)}, 15, {vr(vLane)}")
        I(f"v_xor_b32 {vr(t1)}, {vr(t1)}, {vr(t0)}")
        I(f"v_lshlrev_b32 {vr(t1)}, 4, {vr(t1)}")
        I(f"v_lshl_add_u32 {vr(w0)}, {vr(t0)}, 8, {vr(t1)}")
        I(f"s_add_u32 {sr(sT)}, {sr(sWB)}, {KST_OFF}")
        I(f"v_add_u32 {vr(w0)}, {sr(sT)}, {vr(w0)}")
        I(f"v_and_b32 {vr(t0)}, 31, {vr(vLane)}")
        I(f"v_lshrrev_b32 {vr(t1)}, 5, {vr(vLane)}")
        I(f"v_lshlrev_b32 {vr(t1)}, 3, {vr(t1)}")
        I(f"v_and_b32 {vr(r0)}, 15, {vr(vLane)}")
        I(f"v_xor_b32 {vr(r0)}, {vr(r0)}, {vr(t1)}")
        I(f"v_lshlrev_b32 {vr(r0)}, 4, {vr(r0)}")
        I(f"v_lshl_add_u32 {vr(r0)}, {vr(t0)}, 8, {vr(r0)}")
        I(f"v_add_u32 {vr(r0)}, {sr(sT)}, {vr(r0)}")
        for i in range(8):
            m = i & 3; a = w0
            if m:
                a = t0 if (i & 1) else t1
                I(f"v_xor_b32 {vr(a)}, {m<<6}, {vr(w0)}")
            I(f"ds_write_b128 {vr(a)}, {ar(b+4*i,4)} offset:{i*1024}")
        I("s_waitcnt lgkmcnt(0)")
        for cc in range(8):
            a = r0
            if cc:
                a = t0 if (cc & 1) else t1
                I(f"v_xor_b32 {vr(a)}, {cc<<4}, {vr(r0)}")
            I(f"ds_read_b128 {ar(b+4*cc,4)}, {vr(a)}")
        I("s_waitcnt lgkmcnt(0)")
        self.kdone[T] += 1
    def v_relayout(self, T, grp):
        w0 = SCR; I = self.I
        I(f"s_add_u32 {sr(sT)}, {sr(sWB)}, {STG_OFF}")
        I(f"v_add_u32 {vr(w0)}, {sr(sT)}, {vr(vVswz)}")
        for s, n in enumerate(grp):
            I(f"ds_write_b128 {vr(w0)}, {vr(VBASE[T]+4*n,4)} offset:{s*1024}")
        I("s_waitcnt lgkmcnt(0)")
        for s, n in enumerate(grp):
            d = VBASE[T] + 4 * n
            I(f"ds_read_b64_tr_b16 {vr(d,2)}, {vr(vTrLo)} offset:{STG_OFF + s*1024}")
            I(f"ds_read_b64_tr_b16 {vr(d+2,2)}, {vr(vTrHi)} offset:{STG_OFF + s*1024}")
        I("s_waitcnt lgkmcnt(0)")
        self.vdone[T] += len(grp)
    def attempts(self, tag, iss, check, n, chunk):
        rest = [self.newlab("RS") for _ in range(n + 1)]
        chunks = []
        for k in range(n):
            iss()
            c = self.issue(chunk); chunks.append(c)
            self.need(tag)
            if k < n - 1:
                check()
                self.I(f"s_cbranch_scc0 {rest[k+1]}")
        self.I(f"s_branch {rest[n]}")
        save = self.state()
        for k in range(1, n):
            self.label(rest[k])
            for it in chunks[k]: self.emit_item(it)
        self.label(rest[n])
        self.set_state(save)
        self.vmq = [it for c in chunks for it in c]
    def hop(self, issue_fn, check_fn, p1_fn):
        lo, chk, ok, rt = self.newlab("HO"), self.newlab("HC"), self.newlab("HK"), self.newlab("HR")
        issue_fn(True)
        self.I(f"s_cmp_eq_u32 {sr(sPass)}, 0")
        self.I(f"s_cbranch_scc1 {lo}")
        self.ool_begin(); self.label(lo)
        p1_fn(lambda: issue_fn(True), check_fn)
        self.I("s_nop 7"); self.I(f"s_branch {chk}")
        self.ool_end()
        self.I("s_waitcnt vmcnt(0)")
        self.label(chk)
        check_fn()
        self.I(f"s_cbranch_scc1 {rt}")
        self.label(ok)
        self.ool_begin(); self.label(rt)
        self.I(f"s_mov_b32 {sr(sCnt)}, 0")
        lp = self.newlab("HL"); dn = self.newlab("HD")
        self.label(lp)
        issue_fn(False)
        self.I("s_waitcnt vmcnt(0)")
        check_fn()
        self.I(f"s_cbranch_scc0 {dn}")
        self.I(f"s_add_u32 {sr(sCnt)}, {sr(sCnt)}, 1")
        self.I(f"s_cmp_lt_u32 {sr(sCnt)}, {self.cfg.get('spin', 40000)}")
        self.I(f"s_cbranch_scc1 {lp}")
        self.label(dn)
        self.I("s_nop 7"); self.I(f"s_branch {ok}")
        self.ool_end()
    def pub(self, text_fn):
        lf, le = self.newlab("PF"), self.newlab("PE")
        self.I(f"s_cmp_lg_u32 {sr(sFast)}, 0")
        self.I(f"s_cbranch_scc1 {lf}")
        self.I(text_fn("sc1"))
        self.I(f"s_branch {le}")
        self.label(lf)
        self.I(text_fn(""))
        self.label(le)

    def kv_off(self):
        I = self.I
        I(f"s_lshr_b32 {sr(sT)}, {sr(sJ8)}, 2"); I(f"s_lshl_b32 {sr(sT)}, {sr(sT)}, 5"); I(f"s_add_u32 {sr(sT)}, {sr(sT)}, {sr(sH)}")
        I(f"s_lshl_b32 {sr(sT)}, {sr(sT)}, 21")
        I(f"s_and_b32 {sr(sT2)}, {sr(sJ8)}, 3"); I(f"s_lshl_b32 {sr(sT2)}, {sr(sT2)}, 17"); I(f"s_add_u32 {sr(sT)}, {sr(sT)}, {sr(sT2)}")
        I(f"s_lshl_b32 {sr(sT2)}, {sr(sV)}, 10"); I(f"s_add_u32 {sr(sT)}, {sr(sT)}, {sr(sT2)}")
        I(f"s_add_u32 {sr(sKV)}, {sr(sT)}, {6144*256}")
    def prologue(self):
        I = self.I
        KVN = 128 * 1024
        I(f"s_cmp_ge_u32 {sr(sWG)}, 256")
        I("s_cbranch_scc1 L_END")
        I("s_load_dwordx8 s[88:95], s[0:1], 0")
        I("s_load_dwordx2 s[96:97], s[0:1], 32")
        I("s_load_dwordx2 s[98:99], s[0:1], 96")
        I("s_load_dwordx4 s[16:19], s[0:1], 48")
        I("s_load_dwordx4 s[32:35], s[0:1], 64")
        I("s_load_dwordx4 s[52:55], s[0:1], 80")
        I("v_lshrrev_b32 v1, 6, v0")
        I("v_and_b32 v0, 63, v0")
        I(f"v_readfirstlane_b32 {sr(sV)}, v1")
        I(f"s_and_b32 {sr(sG)}, {sr(sWG)}, 7")
        I(f"s_lshr_b32 {sr(sR)}, {sr(sWG)}, 3")
        I(f"s_lshr_b32 {sr(sT)}, {sr(sR)}, 3")
        I(f"s_lshl_b32 {sr(sH)}, {sr(sG)}, 2")
        I(f"s_add_u32 {sr(sH)}, {sr(sH)}, {sr(sT)}")
        I(f"s_and_b32 {sr(sJ8)}, {sr(sR)}, 7")
        I(f"v_lshlrev_b32 {vr(vL16)}, 4, {vr(vLane)}")
        self.kv_off()
        I(f"s_mul_i32 {sr(sWB)}, {sr(sV)}, {WAVE_BLK}")
        I(f"v_lshrrev_b32 v24, 1, {vr(vLane)}")
        I("v_bfe_u32 v25, v24, 2, 2"); I("v_lshlrev_b32 v25, 3, v25")
        I("v_lshrrev_b32 v26, 4, v24"); I("v_lshl_add_u32 v25, v26, 2, v25")
        I("v_and_b32 v26, 3, v24"); I("v_add_u32 v25, v25, v26")
        I(f"v_and_b32 v26, 1, {vr(vLane)}"); I("v_lshlrev_b32 v26, 4, v26")
        I(f"v_lshl_add_u32 {vr(vWoffQ)}, v25, 13, v26")
        I(f"s_lshl_b32 {sr(sWqB0)}, {sr(sV)}, 20")
        I(f"s_lshl_b32 {sr(sWcol)}, {sr(sH)}, 8"); I(f"s_lshl_b32 {sr(sT2)}, {sr(sJ8)}, 5"); I(f"s_add_u32 {sr(sWcol)}, {sr(sWcol)}, {sr(sT2)}")
        I(f"s_getreg_b32 {sr(sXcc)}, hwreg(HW_REG_XCC_ID, 0, 4)")
        I(f"s_and_b32 {sr(sXcc)}, {sr(sXcc)}, 7")
        I("s_waitcnt lgkmcnt(0)")
        I(f"s_add_u32 s8, s90, {sr(sKV)}"); I("s_addc_u32 s9, s91, 0"); I(f"s_mov_b32 s10, {KVN}"); I("s_mov_b32 s11, 0x20000")
        I(f"s_add_u32 s24, s94, {sr(sWcol)}"); I("s_addc_u32 s25, s95, 0"); I(f"s_sub_u32 s26, {512*8192}, {sr(sWcol)}"); I("s_mov_b32 s27, 0x20000")
        I("s_mov_b32 s40, s98"); I("s_mov_b32 s41, s99"); I(f"s_mov_b32 s42, {PROF_OFF + 0x100000}"); I("s_mov_b32 s43, 0x20000")
        lskip = self.newlab("NOCLR")
        I(f"s_cmp_lg_u32 {sr(sV)}, 3"); I(f"s_cbranch_scc1 {lskip}")
        I("v_mov_b32 v28, -1"); I("v_mov_b32 v29, -1"); I("v_mov_b32 v30, -1"); I("v_mov_b32 v31, -1")
        I(f"s_mul_i32 {sr(sT)}, {sr(sWG)}, {SLOT_BYTES//256}")
        for o in range(0, SLOT_BYTES // 256, 1024):
            I(f"buffer_store_dwordx4 v[28:31], {vr(vL16)}, s[40:43], {sr(sT)} offen offset:{o} sc1")
        I(f"s_lshl_b32 {sr(sT)}, {sr(sXcc)}, 3")
        I(f"s_lshl_b64 s[76:77], 1, {sr(sT)}")
        I("v_mov_b32 v28, s76"); I("v_mov_b32 v29, s77")
        I(f"s_lshr_b32 {sr(sT)}, {sr(sG)}, 1"); I(f"s_lshl_b32 {sr(sT)}, {sr(sT)}, 6")
        I(f"s_and_b32 s76, {sr(sG)}, 1"); I("s_lshl_b32 s76, s76, 3"); I(f"s_add_u32 {sr(sT)}, {sr(sT)}, s76")
        I(f"v_mov_b32 v30, {sr(sT)}")
        I("s_waitcnt vmcnt(0)")
        I("s_mov_b64 exec, 1")
        I("global_atomic_add_x2 v30, v[28:29], s[54:55]")
        I("s_mov_b64 exec, -1")
        self.label(lskip)
        self.issue(self.cfg.get("pro_n", 16))
        I(f"s_mov_b32 {sr(sWSlo)}, s98"); I(f"s_mov_b32 {sr(sWShi)}, s99")
        I(f"s_add_u32 s12, s92, {sr(sKV)}"); I("s_addc_u32 s13, s93, 0"); I(f"s_mov_b32 s14, {KVN}"); I("s_mov_b32 s15, 0x20000")
        I(f"s_add_u32 s20, s18, {sr(sKV)}"); I("s_addc_u32 s21, s19, 0"); I(f"s_mov_b32 s22, {KVN}"); I("s_mov_b32 s23, 0x20000")
        I(f"s_add_u32 s16, s16, {sr(sKV)}"); I("s_addc_u32 s17, s17, 0"); I(f"s_mov_b32 s18, {KVN}"); I("s_mov_b32 s19, 0x20000")
        I(f"s_lshl_b32 {sr(sT)}, {sr(sH)}, 17"); I(f"s_lshl_b32 {sr(sT2)}, {sr(sJ8)}, 7"); I(f"s_add_u32 {sr(sT)}, {sr(sT)}, {sr(sT2)}")
        I(f"s_add_u32 s28, s96, {sr(sT)}"); I("s_addc_u32 s29, s97, 0"); I(f"s_sub_u32 s30, {4096*1024}, {sr(sT)}"); I("s_mov_b32 s31, 0x20000")
        I(f"s_add_u32 s36, s34, {sr(sT)}"); I("s_addc_u32 s37, s35, 0"); I(f"s_sub_u32 s38, {4096*1024}, {sr(sT)}"); I("s_mov_b32 s39, 0x20000")
        I(f"s_add_u32 s32, s32, {sr(sWcol)}"); I("s_addc_u32 s33, s33, 0"); I(f"s_sub_u32 s34, {512*8192}, {sr(sWcol)}"); I("s_mov_b32 s35, 0x20000")
        I("s_mov_b32 s44, s88"); I("s_mov_b32 s45, s89"); I("s_mov_b32 s46, 2048"); I("s_mov_b32 s47, 0x20000")
        I("s_mov_b32 s76, s52"); I("s_mov_b32 s77, s53"); I("s_mov_b32 s52, s54"); I("s_mov_b32 s53, s55"); I("s_mov_b32 s54, s76"); I("s_mov_b32 s55, s77")
        I("s_mov_b32 s51, 0x20000"); I("s_mov_b32 s48, s98"); I("s_mov_b32 s49, s99"); I("s_mov_b32 s50, 0")
        for (m, val) in ((mJ2, 0x00030003), (mJ3, 0x00070007), (mJ04, 0x00110011), (mJ8, 0x00ff00ff)):
            I(f"s_mov_b32 {sr(m)}, {val:#x}"); I(f"s_mov_b32 {sr(m+1)}, {val:#x}")
        I(f"s_mov_b32 {sr(sC)}, {f2u(128**-0.5 * 1.4426950408889634):#x}")
        I(f"s_mov_b32 {sr(sPass)}, 0"); I(f"s_mov_b32 {sr(sLay)}, 0"); I(f"s_mov_b32 {sr(sFast)}, 0")
        I(f"s_lshl_b32 {sr(sWoB0)}, {sr(sV)}, 15")
        I(f"s_lshl_b32 {sr(sWoM0)}, {sr(sV)}, 12"); I(f"s_add_u32 {sr(sWoM0)}, {sr(sWoM0)}, {WO_BASE}")
        I(f"s_lshl_b32 {sr(sQpub)}, {sr(sH)}, 9")
        I(f"s_lshr_b32 {sr(sT)}, {sr(sJ8)}, 2"); I(f"s_lshl_b32 {sr(sT)}, {sr(sT)}, 8")
        I(f"s_add_u32 {sr(sQpoll)}, {sr(sQpub)}, {sr(sT)}")
        I(f"s_lshl_b32 {sr(sT)}, {sr(sG)}, 5"); I(f"s_add_u32 {sr(sT2)}, {sr(sT)}, {sr(sR)}")
        I(f"s_lshl_b32 {sr(sLpub)}, {sr(sT2)}, 2"); I(f"s_add_u32 {sr(sLpub)}, {sr(sLpub)}, {LSE_OFF}")
        I(f"s_and_b32 {sr(sT2)}, {sr(sT2)}, 0xf8")
        I(f"s_lshl_b32 {sr(sOpoll)}, {sr(sT2)}, 8"); I(f"s_add_u32 {sr(sOpoll)}, {sr(sOpoll)}, {OS_OFF}")
        I(f"s_mov_b32 {sr(sOpub)}, {sr(sOpoll)}")
        I(f"s_lshl_b32 {sr(sLpoll)}, {sr(sT2)}, 2"); I(f"s_add_u32 {sr(sLpoll)}, {sr(sLpoll)}, {LSE_OFF}")
        I(f"s_lshl_b32 {sr(sYpoll)}, {sr(sR)}, 12"); I(f"s_add_u32 {sr(sYpoll)}, {sr(sYpoll)}, {YS_OFF}")
        I(f"s_lshl_b32 {sr(sT)}, {sr(sJ8)}, 2"); I(f"s_add_u32 {sr(sT)}, {sr(sT)}, {sr(sV)}"); I(f"s_lshl_b32 {sr(sT)}, {sr(sT)}, 12")
        I(f"s_lshl_b32 {sr(sT2)}, {sr(sH)}, 7"); I(f"s_add_u32 {sr(sT)}, {sr(sT)}, {sr(sT2)}"); I(f"s_add_u32 {sr(sYpub)}, {sr(sT)}, {YS_OFF}")
        I(f"s_lshl_b32 {sr(sXS)}, {sr(sG)}, 11"); I(f"s_add_u32 {sr(sXS)}, {sr(sXS)}, {XS_OFF}")
        I(f"v_lshlrev_b32 {vr(vL4)}, 2, {vr(vLane)}")
        I(f"v_lshlrev_b32 {vr(vL8w)}, 3, {vr(vLane)}"); I(f"v_add_u32 {vr(vL8w)}, {sr(sWB)}, {vr(vL8w)}")
        I(f"v_lshrrev_b32 v24, 4, {vr(vLane)}")
        I(f"v_and_b32 v25, 15, {vr(vLane)}")
        I("v_lshlrev_b32 v26, 2, v24"); I("v_xor_b32 v26, v26, v25"); I("v_lshlrev_b32 v26, 4, v26")
        I(f"v_lshl_add_u32 {vr(vVswz)}, v24, 8, v26")
        I(f"v_bfe_u32 v26, {vr(vLane)}, 2, 2")
        I(f"v_bfe_u32 v27, {vr(vLane)}, 1, 1")
        I("v_lshl_add_u32 v27, v24, 1, v27")
        I("v_lshlrev_b32 v28, 2, v26"); I("v_xor_b32 v27, v27, v28"); I("v_lshlrev_b32 v27, 4, v27")
        I("v_lshl_add_u32 v27, v26, 8, v27")
        I(f"v_and_b32 v28, 1, {vr(vLane)}"); I("v_lshl_add_u32 v27, v28, 3, v27")
        I(f"v_add_u32 {vr(vTrLo)}, {sr(sWB)}, v27")
        I(f"v_xor_b32 {vr(vTrHi)}, 0x80, {vr(vTrLo)}")
        I("v_lshl_add_u32 v27, v24, 3, v26"); I("v_lshlrev_b32 v27, 7, v27")
        I(f"v_and_b32 v28, 3, {vr(vLane)}"); I("v_lshl_add_u32 v27, v28, 3, v27")
        I(f"s_lshl_b32 {sr(sT)}, {sr(sV)}, 5"); I(f"s_add_u32 {sr(sT)}, {sr(sT)}, {WO_BASE}"); I(f"v_add_u32 {vr(vWoRd)}, {sr(sT)}, v27")
        I(f"v_lshrrev_b32 v27, 3, {vr(vLane)}"); I("v_lshlrev_b32 v27, 10, v27")
        I(f"v_and_b32 v28, 7, {vr(vLane)}"); I(f"v_lshl_add_u32 {vr(vWoffO)}, v28, 4, v27")
        I("v_and_b32 v26, 1, v25"); I("v_lshlrev_b32 v26, 4, v26"); I("v_lshl_add_u32 v26, v24, 5, v26")
        I(f"s_lshl_b32 {sr(sT)}, {sr(sV)}, 9"); I(f"v_add_u32 {vr(vXoff)}, {sr(sT)}, v26")
        I(f"v_lshrrev_b32 v26, 2, {vr(vLane)}"); I(f"v_lshlrev_b32 {vr(vQoff)}, 4, v26")
        I("v_and_b32 v26, 7, v25"); I(f"v_lshlrev_b32 {vr(vLoff)}, 2, v26")
        I("v_lshlrev_b32 v26, 4, v26"); I(f"v_lshl_add_u32 {vr(vOoff)}, v24, 7, v26")
        I(f"v_lshrrev_b32 v26, 2, {vr(vLane)}"); I("v_lshlrev_b32 v26, 7, v26")
        I(f"v_and_b32 v27, 3, {vr(vLane)}"); I("v_lshl_add_u32 v26, v27, 2, v26")
        I(f"s_lshl_b32 {sr(sT)}, {sr(sJ8)}, 4"); I(f"v_add_u32 {vr(vOpub)}, {sr(sT)}, v26")
        I(f"v_bfe_u32 v26, {vr(vLane)}, 2, 1"); I("v_lshlrev_b32 v27, 6, v26"); I(f"v_lshl_add_u32 {vr(vYpub)}, v24, 4, v27")
        I("v_lshlrev_b32 v27, 10, v26")
        I(f"v_and_b32 v28, 3, {vr(vLane)}"); I("v_lshl_add_u32 v27, v28, 3, v27")
        I(f"s_lshl_b32 {sr(sT)}, {sr(sR)}, 5"); I(f"v_add_u32 v30, {sr(sT)}, v27")
        I("v_lshlrev_b32 v26, 4, v26")
        I("v_lshrrev_b32 v27, 1, v28"); I("v_lshl_add_u32 v26, v27, 5, v26")
        I("v_and_b32 v27, 1, v28"); I("v_lshl_add_u32 v26, v27, 3, v26")
        I(f"s_lshl_b32 {sr(sT)}, {sr(sR)}, 6"); I(f"v_add_u32 {vr(vXpub)}, {sr(sT)}, v26")
        I("v_and_b32 v26, 1, v24"); I("v_lshlrev_b32 v26, 8, v26"); I("v_lshl_add_u32 v26, v25, 1, v26")
        I(f"s_lshl_b32 {sr(sT)}, {sr(sJ8)}, 5"); I(f"v_add_u32 {vr(vQpub)}, {sr(sT)}, v26")
        if self.profile:
            I(f"s_lshl_b32 {sr(sT)}, {sr(sWG)}, 2"); I(f"s_add_u32 {sr(sT)}, {sr(sT)}, {sr(sV)}"); I(f"s_lshl_b32 {sr(sT)}, {sr(sT)}, 10")
            I(f"s_add_u32 {sr(sT)}, {sr(sT)}, {PROF_OFF}"); I(f"v_add_u32 {vr(vStA)}, {sr(sT)}, {vr(vL4)}")
            I("s_memrealtime s[88:89]"); I("s_memtime s[90:91]"); I("s_waitcnt lgkmcnt(0)")
            I(f"v_mov_b32 {vr(vStD)}, s88"); I(f"v_writelane_b32 {vr(vStD)}, s90, 1")
            I(f"s_getreg_b32 {sr(sT)}, hwreg(HW_REG_HW_ID)"); I(f"v_writelane_b32 {vr(vStD)}, {sr(sT)}, 2")
            I("s_mov_b64 exec, 7")
            I(f"buffer_store_dword {vr(vStD)}, {vr(vStA)}, {sr(SRD['WS'],4)}, 0 offen offset:512")
            I("s_mov_b64 exec, -1")
        self.dbgtime(5, invert=True)
        self.vm("xold", f"buffer_load_dwordx2 v[{vXold}:{vXold+1}], v30, s[44:47], 0 offen")

    def layer(self, T, plan):
        I = self.I
        last = (T == "B")
        lg = (lambda n: 0) if self.profile else (lambda n: n)
        X, W, DQ, DS = 24, 40, 56, 60
        self.stamp("start")
        self.p1_site(lambda: plan("D0"))
        for k in range(4):
            for t in range(2):
                I(f"ds_read_b64_tr_b16 {vr(W+4*k+2*t,2)}, {vr(vL8w)} offset:{WQ_OFF[T] + k*1024 + t*512}")
        for i in range(16): I(f"v_mov_b32 {vr(X+i)}, 0x3f803f80")
        I(f"v_and_b32 v66, 15, {vr(vLane)}"); I(f"v_lshrrev_b32 v67, 4, {vr(vLane)}")
        I("v_lshlrev_b32 v64, 6, v66"); I("v_lshl_add_u32 v64, v67, 4, v64")
        I(f"s_mul_i32 {sr(sT)}, {sr(sV)}, 192"); I(f"s_add_u32 {sr(sT)}, {sr(sT)}, {QB}"); I(f"v_add_u32 v64, {sr(sT)}, v64")
        I(f"s_lshl_b32 {sr(sT)}, {sr(sV)}, 4"); I(f"s_add_u32 {sr(sT)}, {sr(sT)}, {SB}")
        I(f"v_lshlrev_b32 v65, 3, {vr(vLane)}"); I(f"v_add_u32 v65, {sr(sT)}, v65")
        I(f"v_add_u32 v68, {QB}, {vr(vL4)}")
        I("v_lshlrev_b32 v66, 2, v66"); I(f"v_add_u32 v66, {QB+128}, v66")
        I("v_and_b32 v67, 1, v67"); I("v_lshlrev_b32 v67, 3, v67"); I(f"v_add_u32 v67, {SB}, v67")
        def d_issue(track):
            I(f"s_mov_b64 exec, {sr(mJ2,2)}")
            for k in range(4):
                t = f"buffer_load_dwordx4 {vr(X+4*k,4)}, {vr(vXoff)}, {sr(SRD['XSRC'],4)}, 0 offen offset:{128*k} sc1"
                self.vm("pollD", t) if track else I(t)
            I("s_mov_b64 exec, -1")
        def chk16(base, extra=None, ta=69, tb=70, mask="exec"):
            def f():
                a, b = vr(ta), vr(tb)
                I(f"v_max3_u32 {a}, {vr(base)}, {vr(base+1)}, {vr(base+2)}")
                I(f"v_max3_u32 {b}, {vr(base+3)}, {vr(base+4)}, {vr(base+5)}")
                I(f"v_max3_u32 {a}, {a}, {vr(base+6)}, {vr(base+7)}")
                I(f"v_max3_u32 {b}, {b}, {vr(base+8)}, {vr(base+9)}")
                I(f"v_max3_u32 {a}, {a}, {vr(base+10)}, {vr(base+11)}")
                I(f"v_max3_u32 {b}, {b}, {vr(base+12)}, {vr(base+13)}")
                I(f"v_max3_u32 {a}, {a}, {vr(base+14)}, {vr(base+15)}")
                if extra is not None: I(f"v_max3_u32 {a}, {a}, {b}, {vr(extra)}")
                else: I(f"v_max_u32 {a}, {a}, {b}")
                I(f"v_cmp_eq_u32 vcc, -1, {a}")
                I(f"s_and_b64 vcc, vcc, {mask}")
            return f
        self.hop(d_issue, chk16(X), lambda iss, chk: plan("D", iss, chk))
        self.stamp("Dok")
        I("s_waitcnt lgkmcnt(0)")
        for k in range(4):
            c = "0" if k == 0 else vr(DQ, 4)
            I(f"v_mfma_f32_16x16x32_bf16 {vr(DQ,4)}, {vr(W+4*k,4)}, {vr(X+4*k,4)}, {c}")
            c = "0" if k == 0 else vr(DS, 4)
            I(f"v_mfma_f32_16x16x32_bf16 {vr(DS,4)}, {vr(X+4*k,4)}, {vr(X+4*k,4)}, {c}")
        I(f"v_cmp_eq_u32 vcc, 1, {vr(vLane)}")
        I(f"s_mov_b64 exec, {sr(mJ3,2)}")
        I(f"ds_write_b128 v64, {vr(DQ,4)}")
        I("s_mov_b64 exec, 3")
        I(f"v_cndmask_b32 {vr(DS)}, {vr(DS)}, {vr(DS+1)}, vcc")
        I(f"v_mov_b32 {vr(DS+1)}, {vr(DS+2)}")
        I(f"ds_write_b64 v65, v[{DS}:{DS+1}]")
        I("s_mov_b64 exec, -1")
        I("s_waitcnt lgkmcnt(0)")
        I("s_barrier")
        self.stamp("Qbar")
        lf = self.newlab("FQ")
        I(f"s_cmp_lg_u32 {sr(sV)}, 0"); I(f"s_cbranch_scc1 {lf}")
        I("ds_read2_b32 v[24:25], v68 offset0:0 offset1:48")
        I("ds_read2_b32 v[26:27], v68 offset0:96 offset1:144")
        I("ds_read2_b32 v[28:29], v66 offset0:0 offset1:48")
        I("ds_read2_b32 v[30:31], v66 offset0:96 offset1:144")
        for w in range(4): I(f"ds_read_b64 v[{32+2*w}:{33+2*w}], v67 offset:{16*w}")
        I("s_waitcnt lgkmcnt(0)")
        I("v_add_f32 v33, v33, v35"); I("v_add_f32 v37, v37, v39"); I("v_add_f32 v32, v32, v34"); I("v_add_f32 v36, v36, v38")
        I("v_add_f32 v24, v24, v25"); I("v_add_f32 v33, v33, v37"); I("v_add_f32 v26, v26, v27"); I("v_add_f32 v32, v32, v36")
        I(f"v_mul_f32 v33, {f2u(1/512):#x}, v33"); I("v_add_f32 v28, v28, v29")
        I(f"v_mul_f32 v32, {f2u(1/512):#x}, v32"); I("v_add_f32 v30, v30, v31")
        I("v_fma_f32 v32, -v33, v33, v32"); I("v_add_f32 v24, v24, v26")
        I("v_max_f32 v32, 0, v32"); I("v_add_f32 v28, v28, v30")
        I(f"v_add_f32 v32, {f2u(1e-5):#x}, v32")
        I("v_fma_f32 v24, -v33, v28, v24")
        I("v_rsq_f32 v32, v32")
        I("v_mul_f32 v24, v24, v32")
        I("v_mov_b32_dpp v25, v24 quad_perm:[1,1,3,3] row_mask:0xf bank_mask:0xf")
        I("v_cvt_pk_bf16_f32 v24, v24, v25")
        I("s_mov_b64 exec, 0x55555555")
        self.pub(lambda fl: f"buffer_store_dword v24, {vr(vQpub)}, {sr(SRD['WS'],4)}, {sr(sQpub)} offen {fl}")
        I("s_mov_b64 exec, -1")
        self.label(lf)
        self.stamp("Qpub")
        Q = 76
        def a_issue(track):
            t = f"buffer_load_dwordx4 {vr(Q,4)}, {vr(vQoff)}, {sr(SRD['WS'],4)}, {sr(sQpoll)} offen sc1"
            self.vm("pollA", t) if track else I(t)
        def a_check():
            I(f"v_max3_u32 v69, {vr(Q)}, {vr(Q+1)}, {vr(Q+2)}")
            I(f"v_max_u32 v69, v69, {vr(Q+3)}")
            I("v_cmp_eq_u32 vcc, -1, v69")
            I("s_and_b64 vcc, vcc, exec")
        self.hop(a_issue, a_check, lambda iss, chk: plan("A", iss, chk))
        self.stamp("Aok")
        S = 24; kb = KBASE[T]
        for cc in range(8):
            for u in range(2):
                for tl in range(4):
                    c = "0" if (cc == 0 and u == 0) else vr(S+4*tl, 4)
                    I(f"v_mfma_f32_4x4x4_16b_bf16 {vr(S+4*tl,4)}, {vr(Q+2*u,2)}, {ar(kb+32*tl+4*cc+2*u,2)}, {c} cbsz:3 abid:{cc}")
        VT = 40
        def vtemp_reads():
            for n in range(NVLDS):
                I(f"ds_read_b64_tr_b16 {vr(VT+4*n,2)}, {vr(vTrLo)} offset:{VL_OFF[T] + n*1024}")
                I(f"ds_read_b64_tr_b16 {vr(VT+4*n+2,2)}, {vr(vTrHi)} offset:{VL_OFF[T] + n*1024}")
        vtemp_reads()
        I(f"v_permlane32_swap_b32 {vr(S)}, {vr(S+4)}")
        I(f"v_permlane32_swap_b32 {vr(S+8)}, {vr(S+12)}")
        I(f"v_add_f32 {vr(S)}, {vr(S)}, {vr(S+4)}")
        I(f"v_add_f32 {vr(S+8)}, {vr(S+8)}, {vr(S+12)}")
        M_, TM = 25, 26
        I(f"v_max_f32 {vr(M_)}, {vr(S)}, {vr(S+8)}")
        for rr in (8, 4, 2, 1):
            I(f"v_max_f32_dpp {vr(M_)}, {vr(M_)}, {vr(M_)} row_ror:{rr} row_mask:0xf bank_mask:0xf")
        I(f"v_mov_b32 {vr(TM)}, {vr(M_)}"); I(f"v_permlane16_swap_b32 {vr(M_)}, {vr(TM)}"); I(f"v_max_f32 {vr(M_)}, {vr(M_)}, {vr(TM)}")
        I(f"v_mov_b32 {vr(TM)}, {vr(M_)}"); I(f"v_permlane32_swap_b32 {vr(M_)}, {vr(TM)}"); I(f"v_max_f32 {vr(M_)}, {vr(M_)}, {vr(TM)}")
        I(f"v_mul_f32 v36, {sr(sC)}, {vr(M_)}")
        I(f"v_fma_f32 {vr(S)}, {vr(S)}, {sr(sC)}, -v36")
        I(f"v_fma_f32 {vr(S+8)}, {vr(S+8)}, {sr(sC)}, -v36")
        I(f"v_exp_f32 {vr(S)}, {vr(S)}")
        I(f"v_exp_f32 {vr(S+8)}, {vr(S+8)}")
        P0, P1 = 34, 38
        I(f"v_mov_b32_dpp {vr(TM)}, {vr(S)} quad_perm:[1,1,3,3] row_mask:0xf bank_mask:0xf")
        I(f"v_mov_b32_dpp v27, {vr(S+8)} quad_perm:[1,1,3,3] row_mask:0xf bank_mask:0xf")
        I(f"v_cvt_pk_bf16_f32 {vr(P0)}, {vr(S)}, {vr(TM)}")
        I(f"v_cvt_pk_bf16_f32 {vr(P1)}, {vr(S+8)}, v27")
        I(f"v_add_f32 v33, {vr(S)}, {vr(S+8)}")
        I(f"v_mov_b32_dpp {vr(P0+1)}, {vr(P0)} quad_perm:[2,2,2,2] row_mask:0xf bank_mask:0xf")
        I(f"v_mov_b32_dpp {vr(P1+1)}, {vr(P1)} quad_perm:[2,2,2,2] row_mask:0xf bank_mask:0xf")
        self.stamp("SM")
        def pv_p1():
            I("s_waitcnt lgkmcnt(0)")
            plan("PV")
            vtemp_reads()
        self.p1_site(pv_p1)
        self.stamp("Vok")
        self.dbgtime(6 if T == "A" else 8)
        OL, OH = 28, 24
        lsum = [f"v_add_f32_dpp v33, v33, v33 row_ror:{rr} row_mask:0xf bank_mask:0xf" for rr in (8, 4, 2, 1)]
        lsum += ["v_mov_b32 v37, v33", "v_permlane16_swap_b32 v33, v37", "v_add_f32 v33, v33, v37",
                 "v_mov_b32 v37, v33", "v_permlane32_swap_b32 v33, v37", "v_add_f32 v37, v33, v37"]
        extra = [f"s_lshl_b32 {sr(sT)}, {sr(sV)}, 9", f"s_add_u32 {sr(sT)}, {sr(sT)}, {OB}"]
        first = True; cnt = 0
        for n in range(32):
            J, b = n >> 4, n & 15
            Pp = P0 if J == 0 else P1
            src = VBASE[T] + 4 * n if n < NVREG else VT + 4 * (n - NVREG)
            if n == NVREG: I("s_waitcnt lgkmcnt(0)")
            c = "0" if first else vr(OL, 4)
            I(f"v_mfma_f32_4x4x4_16b_bf16 {vr(OL,4)}, {vr(Pp,2)}, {vr(src,2)}, {c} cbsz:4 abid:{b}")
            c = "0" if first else vr(OH, 4)
            I(f"v_mfma_f32_4x4x4_16b_bf16 {vr(OH,4)}, {vr(Pp,2)}, {vr(src+2,2)}, {c} cbsz:4 abid:{b}")
            first = False
            if cnt % 2 == 0 and lsum and n >= 1: I(lsum.pop(0))
            else: I("s_nop 0")
            cnt += 1
        assert not lsum
        I(f"s_lshl_b32 {sr(sT)}, {sr(sV)}, 9"); I(f"s_add_u32 {sr(sT)}, {sr(sT)}, {OB}"); I(f"v_add_u32 v40, {sr(sT)}, {vr(vL4)}")
        I(f"s_lshl_b32 {sr(sT)}, {sr(sV)}, 3"); I(f"s_add_u32 {sr(sT)}, {sr(sT)}, {MB}"); I(f"v_mov_b32 v41, {sr(sT)}")
        I(f"ds_write_b32 v40, {vr(OL)}")
        I(f"ds_write_b32 v40, {vr(OH)} offset:256")
        I("s_mov_b64 exec, 1")
        I("ds_write_b64 v41, v[36:37]")
        I("s_mov_b64 exec, -1")
        I(f"v_lshlrev_b32 v42, 3, {vr(vLane)}"); I(f"v_add_u32 v42, {OB}, v42"); I(f"v_mov_b32 v43, {MB}")
        self.stamp("PV")
        self.p1_site(lambda: plan("B0"))
        I("s_waitcnt lgkmcnt(0)")
        I("s_barrier")
        self.stamp("Obar")
        W2 = 56
        for k in range(4):
            for t in range(2):
                I(f"ds_read_b64_tr_b16 {vr(W2+4*k+2*t,2)}, {vr(vWoRd)} offset:{WO_OFF[T] + k*4096 + t*512}")
        lc = self.newlab("CB")
        I(f"s_cmp_lg_u32 {sr(sV)}, 0"); I(f"s_cbranch_scc1 {lc}")
        I("ds_read_b128 v[24:27], v43"); I("ds_read_b128 v[28:31], v43 offset:16")
        for w in range(4): I(f"ds_read_b64 v[{32+2*w}:{33+2*w}], v42 offset:{512*w}")
        I(f"s_waitcnt lgkmcnt({lg(4)})")
        I("v_max3_f32 v44, v24, v26, v28"); I("v_max_f32 v44, v44, v30")
        I("v_sub_f32 v24, v24, v44"); I("v_sub_f32 v26, v26, v44"); I("v_sub_f32 v28, v28, v44"); I("v_sub_f32 v30, v30, v44")
        I("v_exp_f32 v24, v24"); I("v_exp_f32 v26, v26"); I("v_exp_f32 v28, v28"); I("v_exp_f32 v30, v30")
        I("v_mul_f32 v45, v24, v25"); I("v_fmac_f32 v45, v26, v27"); I("v_fmac_f32 v45, v28, v29"); I("v_fmac_f32 v45, v30, v31")
        I("s_waitcnt lgkmcnt(0)")
        I("v_rcp_f32 v46, v45")
        I("v_mul_f32 v48, v24, v32"); I("v_mul_f32 v49, v24, v33")
        I("v_fmac_f32 v48, v26, v34"); I("v_fmac_f32 v49, v26, v35")
        I("v_fmac_f32 v48, v28, v36"); I("v_fmac_f32 v49, v28, v37")
        I("v_fmac_f32 v48, v30, v38"); I("v_fmac_f32 v49, v30, v39")
        I("v_log_f32 v47, v45")
        I("v_mul_f32 v48, v48, v46"); I("v_mul_f32 v49, v49, v46")
        I("v_cvt_pk_bf16_f32 v48, v48, v49")
        I("v_add_f32 v47, v47, v44")
        I("v_mov_b32 v50, 0")
        lf2, le2 = self.newlab("PF"), self.newlab("PE")
        I(f"s_cmp_lg_u32 {sr(sFast)}, 0"); I(f"s_cbranch_scc1 {lf2}")
        I(f"buffer_store_dword v48, {vr(vOpub)}, {sr(SRD['WS'],4)}, {sr(sOpub)} offen sc1")
        I("s_mov_b64 exec, 1")
        I(f"buffer_store_dword v47, v50, {sr(SRD['WS'],4)}, {sr(sLpub)} offen sc1")
        I(f"s_branch {le2}")
        self.label(lf2)
        I(f"buffer_store_dword v48, {vr(vOpub)}, {sr(SRD['WS'],4)}, {sr(sOpub)} offen")
        I("s_mov_b64 exec, 1")
        I(f"buffer_store_dword v47, v50, {sr(SRD['WS'],4)}, {sr(sLpub)} offen")
        self.label(le2)
        I("s_mov_b64 exec, -1")
        self.label(lc)
        self.stamp("Opub")
        O_, LS = 24, 40
        def b_issue(track):
            I(f"s_mov_b64 exec, {sr(mJ8,2)}")
            for k in range(4):
                t = f"buffer_load_dwordx4 {vr(O_+4*k,4)}, {vr(vOoff)}, {sr(SRD['WS'],4)}, {sr(sOpoll)} offen offset:{512*k} sc1"
                self.vm("pollB", t) if track else I(t)
            t = f"buffer_load_dword {vr(LS)}, {vr(vLoff)}, {sr(SRD['WS'],4)}, {sr(sLpoll)} offen sc1"
            self.vm("pollB", t) if track else I(t)
            I("s_mov_b64 exec, -1")
        self.hop(b_issue, chk16(O_, LS, 46, 47, mask=sr(mJ8,2)), lambda iss, chk: plan("B", iss, chk))
        self.stamp("Bok")
        DY = 48
        I("s_waitcnt lgkmcnt(0)")
        for k in range(4):
            c = "0" if k == 0 else vr(DY, 4)
            I(f"v_mfma_f32_16x16x32_bf16 {vr(DY,4)}, {vr(W2+4*k,4)}, {vr(O_+4*k,4)}, {c}")
        I(f"v_mov_b32_dpp v41, {vr(LS)} quad_perm:[1,0,3,2] row_mask:0xf bank_mask:0xf")
        I(f"v_max_f32 v41, v41, {vr(LS)}")
        I("v_mov_b32_dpp v42, v41 quad_perm:[2,3,0,1] row_mask:0xf bank_mask:0xf")
        I("v_max_f32 v41, v41, v42")
        I(f"v_sub_f32 v41, {vr(LS)}, v41")
        I("v_exp_f32 v41, v41")
        I("v_add_f32_dpp v42, v41, v41 quad_perm:[1,0,3,2] row_mask:0xf bank_mask:0xf")
        I("v_add_f32_dpp v42, v42, v42 quad_perm:[2,3,0,1] row_mask:0xf bank_mask:0xf")
        I("v_rcp_f32 v42, v42")
        I("v_mul_f32 v41, v41, v42")
        for i in range(4): I(f"v_mul_f32 {vr(DY+i)}, {vr(DY+i)}, v41")
        for i in range(4): I(f"v_add_f32_dpp {vr(DY+i)}, {vr(DY+i)}, {vr(DY+i)} quad_perm:[1,0,3,2] row_mask:0xf bank_mask:0xf")
        for i in range(4): I(f"v_add_f32_dpp {vr(DY+i)}, {vr(DY+i)}, {vr(DY+i)} quad_perm:[2,3,0,1] row_mask:0xf bank_mask:0xf")
        I(f"s_mov_b64 exec, {sr(mJ04,2)}")
        I(f"buffer_store_dwordx4 {vr(DY,4)}, {vr(vYpub)}, {sr(SRD['WS'],4)}, {sr(sYpub)} offen sc1")
        I("s_mov_b64 exec, -1")
        self.stamp("Ypub")
        I(f"s_add_u32 {sr(sT)}, {sr(sLay)}, {sr(sXS)}")
        I(f"s_add_u32 s44, {sr(sWSlo)}, {sr(sT)}"); I(f"s_addc_u32 s45, {sr(sWShi)}, 0")
        I("s_mov_b32 s48, s44"); I("s_mov_b32 s49, s45"); I("s_mov_b32 s50, 2048")
        if last:
            I(f"s_cmp_eq_u32 {sr(sPass)}, 1")
            I(f"s_cselect_b32 s48, {sr(sOUT)}, s48"); I(f"s_cselect_b32 s49, {sr(sOUT+1)}, s49")
            I(f"s_cselect_b32 {sr(sT)}, {sr(sG)}, 0")
            I(f"s_cmp_eq_u32 {sr(sT)}, 0")
            I("s_cselect_b32 s50, 2048, 0")
            I(f"v_bfe_u32 v52, {vr(vLane)}, 2, 1"); I("v_lshlrev_b32 v52, 10, v52")
            I(f"v_and_b32 v53, 3, {vr(vLane)}"); I("v_lshl_add_u32 v52, v53, 3, v52")
            I(f"s_lshl_b32 {sr(sT)}, {sr(sR)}, 5"); I(f"v_add_u32 v52, {sr(sT)}, v52")
            I(f"s_cmp_eq_u32 {sr(sPass)}, 1"); I("s_cselect_b64 vcc, -1, 0")
            I(f"v_cndmask_b32 v52, {vr(vXpub)}, v52, vcc")
        lx = self.newlab("CX"); lnz = self.newlab("CNZ")
        I(f"s_cmp_lg_u32 {sr(sV)}, 0"); I(f"s_cbranch_scc1 {lnz}")
        Y = 24
        def c_issue(track):
            for i in range(4):
                t = f"buffer_load_dwordx4 {vr(Y+4*i,4)}, {vr(vL16)}, {sr(SRD['WS'],4)}, {sr(sYpoll)} offen offset:{1024*i} sc1"
                self.vm("pollC", t) if track else I(t)
        st_before = self.state()
        self.hop(c_issue, chk16(Y), lambda iss, chk: plan("C", iss, chk))
        self.stamp("Cok")
        for i in range(4): I(f"v_add_f32 {vr(Y+i)}, {vr(Y+i)}, {vr(Y+4+i)}")
        for i in range(4): I(f"v_add_f32 {vr(Y+8+i)}, {vr(Y+8+i)}, {vr(Y+12+i)}")
        for i in range(4): I(f"v_add_f32 {vr(Y+i)}, {vr(Y+i)}, {vr(Y+8+i)}")
        for i in range(4): I(f"v_add_f32_dpp {vr(Y+i)}, {vr(Y+i)}, {vr(Y+i)} row_ror:8 row_mask:0xf bank_mask:0xf")
        for i in range(4): I(f"v_mov_b32 v{32+i}, {vr(Y+i)}")
        for i in range(4): I(f"v_permlane16_swap_b32 {vr(Y+i)}, v{32+i}")
        for i in range(4): I(f"v_add_f32 {vr(Y+i)}, {vr(Y+i)}, v{32+i}")
        for i in range(4): I(f"v_mov_b32 v{32+i}, {vr(Y+i)}")
        for i in range(4): I(f"v_permlane32_swap_b32 {vr(Y+i)}, v{32+i}")
        for i in range(4): I(f"v_add_f32 {vr(Y+i)}, {vr(Y+i)}, v{32+i}")
        I(f"v_cvt_pk_bf16_f32 v32, {vr(Y)}, {vr(Y+1)}"); I(f"v_cvt_pk_bf16_f32 v33, {vr(Y+2)}, {vr(Y+3)}")
        I("v_lshlrev_b32 v34, 16, v32"); I("v_and_b32 v35, 0xffff0000, v32"); I("v_lshlrev_b32 v36, 16, v33"); I("v_and_b32 v37, 0xffff0000, v33")
        for i in range(4): I(f"v_add_f32 v{34+i}, v{34+i}, {vr(vXold+i)}")
        I("v_cvt_pk_bf16_f32 v32, v34, v35"); I("v_cvt_pk_bf16_f32 v33, v36, v37")
        I("s_mov_b64 exec, 0xff")
        self.pub(lambda fl: f"buffer_store_dwordx2 v[32:33], {vr(52 if last else vXpub)}, {sr(SRD['XDST'],4)}, 0 offen {fl}")
        I("s_mov_b64 exec, -1")
        I(f"v_lshlrev_b32 {vr(vXold)}, 16, v32"); I(f"v_and_b32 {vr(vXold+1)}, 0xffff0000, v32")
        I(f"v_lshlrev_b32 {vr(vXold+2)}, 16, v33"); I(f"v_and_b32 {vr(vXold+3)}, 0xffff0000, v33")
        self.stamp("Xpub")
        self.dbgtime(7 if T == "A" else 9)
        I(f"s_branch {lx}")
        st_after = self.state()
        self.label(lnz)
        self.set_state(st_before)
        self.p1_site(lambda: plan("C", None, None))
        assert self.state()[1:] == st_after[1:], (self.state()[1:], st_after[1:])
        self.label(lx)
        for s_ in (sLay, sQpub, sQpoll, sOpub, sLpub, sOpoll, sLpoll, sYpub, sYpoll):
            I(f"s_add_u32 {sr(s_)}, {sr(s_)}, {LAYER_STRIDE}")
        self.flush_stamps(T)

    def build(self, plan_factory):
        self.build_items()
        self.prologue()
        plan = plan_factory(self)
        self.label("L_LOOP")
        self.layer("A", lambda site, iss=None, chk=None: plan("A", site, iss, chk))
        self.layer("B", lambda site, iss=None, chk=None: plan("B", site, iss, chk))
        assert self.next_item == len(self.items), (self.next_item, len(self.items))
        assert self.kdone == {"A": 4, "B": 4} and self.vdone == {"A": NVREG, "B": NVREG}
        self.I(f"s_add_u32 {sr(sPass)}, {sr(sPass)}, 1")
        self.I(f"s_cmp_lt_u32 {sr(sPass)}, 2")
        self.I("s_cbranch_scc1 L_LOOP")
        if self.profile:
            self.I("s_memrealtime s[88:89]"); self.I("s_memtime s[90:91]"); self.I("s_waitcnt lgkmcnt(0)")
            self.I(f"v_mov_b32 {vr(vStD)}, s88"); self.I(f"v_writelane_b32 {vr(vStD)}, s90, 1")
            self.I("s_mov_b64 exec, 3")
            self.I(f"buffer_store_dword {vr(vStD)}, {vr(vStA)}, {sr(SRD['WS'],4)}, 0 offen offset:768")
            self.I("s_mov_b64 exec, -1")
        self.dbgtime(4)
        self.label("L_END")
        self.I("s_endpgm")
        hdr = [f"; @launch grid=(256,1,1) block=(256,1,1) lds={LDS_BYTES}", '.amdgcn_target "amdgcn-amd-amdhsa--gfx950"',
               ".text", f".globl {KNAME}", ".p2align 8", f".type {KNAME},@function", f"{KNAME}:"]
        tail = ['.section .rodata,"a"', ".p2align 6", f".amdhsa_kernel {KNAME}",
                "  .amdhsa_next_free_vgpr 512", "  .amdhsa_next_free_sgpr 102", "  .amdhsa_accum_offset 256",
                "  .amdhsa_group_segment_fixed_size 0", "  .amdhsa_kernarg_size 104", "  .amdhsa_user_sgpr_count 2",
                "  .amdhsa_user_sgpr_kernarg_segment_ptr 1", "  .amdhsa_system_sgpr_workgroup_id_x 1",
                "  .amdhsa_float_denorm_mode_32 3", ".end_amdhsa_kernel"]
        return "\n".join(hdr + self.main.lines + self.ool.lines + tail) + "\n"

def startup_check(G):
    I = G.I
    l = G.newlab("SC"); lp = G.newlab("SCL"); dn = G.newlab("SCD")
    I(f"s_cmp_lg_u32 {sr(sV)}, 0"); I(f"s_cbranch_scc1 {l}")
    I(f"v_lshrrev_b32 v72, 1, {vr(vLane)}"); I("v_lshlrev_b32 v72, 6, v72")
    I(f"v_and_b32 v73, 1, {vr(vLane)}"); I("v_lshl_add_u32 v72, v73, 3, v72")
    I(f"s_mov_b32 {sr(sCnt)}, 0")
    I("s_mov_b64 exec, 0xff")
    G.label(lp)
    I(f"global_load_dwordx2 v[74:75], v72, {sr(sDBG,2)} sc1")
    I("s_waitcnt vmcnt(0)")
    I("v_sad_u8 v73, v74, 0, 0"); I("v_sad_u8 v73, v75, 0, v73")
    I("v_cmp_ne_u32 vcc, 32, v73")
    I(f"s_cbranch_vccz {dn}")
    I(f"s_add_u32 {sr(sCnt)}, {sr(sCnt)}, 1")
    I(f"s_cmp_lt_u32 {sr(sCnt)}, {G.cfg.get('spin', 40000)}")
    I(f"s_cbranch_scc1 {lp}")
    G.label(dn)
    I(f"v_readlane_b32 {sr(sT2)}, v74, {sr(sG)}")
    I(f"v_readlane_b32 {sr(sT3)}, v75, {sr(sG)}")
    I("s_mov_b64 exec, -1")
    I(f"s_lshl_b32 {sr(sT)}, {sr(sXcc)}, 3")
    I(f"s_lshr_b64 s[{sT2}:{sT3}], s[{sT2}:{sT3}], {sr(sT)}")
    I(f"s_and_b32 {sr(sT2)}, {sr(sT2)}, 0xff")
    I(f"s_cmp_eq_u32 {sr(sT2)}, 32")
    I(f"s_cselect_b32 {sr(sFast)}, {0 if G.cfg.get('force_slow') else 1}, 0")
    G.label(l)

def make_plan(G):
    c = G.cfg
    d1 = c.get("d1", 24)
    allW = lambda m, T: all(G.landed(("W", m, T, k)) for k in range(4))
    def hop_p1(tag, iss, chk, name, dflt):
        pre, low, n, ch = c.get(name, dflt)
        G.bg(pre, depth=c.get("d2", 10), allow=(() if name == "hC" else ("K", "V")))
        G.wait_out(low) if iss is not None else None
        if iss is None:
            for _ in range(n): G.step(ch, depth=c.get("d2", 10), allow=())
        else:
            G.attempts(tag, iss, chk, n, ch)
    def plan(T, site, iss=None, chk=None):
        I = G.I
        if T == "A":
            if site == "D0":
                G.bg_until(lambda: allW("q", "A"), depth=d1, allow=())
            elif site == "D":
                I(f"v_lshrrev_b32 v72, 4, {vr(vLane)}"); I(f"v_and_b32 v73, 1, {vr(vLane)}")
                I("v_lshlrev_b32 v73, 10, v73"); I("v_lshl_add_u32 v72, v72, 4, v73")
                I(f"s_lshl_b32 {sr(sT)}, {sr(sV)}, 8"); I(f"v_add_u32 v72, {sr(sT)}, v72")
                I(f"s_mov_b64 exec, {sr(mJ2,2)}")
                for k in range(4):
                    G.vm("pollD", f"buffer_load_dwordx4 {vr(24+4*k,4)}, v72, {sr(SRD['XSRC'],4)}, 0 offen offset:{64*k}")
                I("s_mov_b64 exec, -1")
                G.issue(c.get("dA_after", 8))
                G.need("pollD"); G.need("xold")
                I(f"v_and_b32 {vr(vXold+3)}, 0xffff0000, {vr(vXold+1)}"); I(f"v_lshlrev_b32 {vr(vXold+2)}, 16, {vr(vXold+1)}")
                I(f"v_and_b32 {vr(vXold+1)}, 0xffff0000, {vr(vXold)}"); I(f"v_lshlrev_b32 {vr(vXold)}, 16, {vr(vXold)}")
                startup_check(G)
                G.relayout_ready()
            elif site == "A":
                G.bg_until(lambda: G.kdone["A"] >= 3, depth=d1)
                G.attempts("pollA", iss, chk, 1, c.get("aA_after", 8))
                G.bg_until(lambda: G.kdone["A"] == 4, depth=d1)
            elif site == "PV":
                G.bg_until(lambda: G.issued(("V", "A", 31)), depth=d1)
                G.bg_until(lambda: G.vdone["A"] == NVREG and G.landed(("V", "A", 31)), depth=c.get("d2", 10))
            elif site == "B0":
                G.bg_until(lambda: allW("o", "A"), depth=c.get("d2", 10))
            elif site == "B": hop_p1("pollB", iss, chk, "hB", [1, 4, 2, 4])
            elif site == "C": hop_p1("pollC", iss, chk, "hC", [1, 4, 3, 4])
        else:
            if site == "D0":
                G.bg_until(lambda: allW("q", "B"), depth=c.get("d2", 10))
            elif site == "D": hop_p1("pollD", iss, chk, "hD", [0, 4, 3, 4])
            elif site == "A":
                hop_p1("pollA", iss, chk, "hA", [0, 4, 3, 4])
                G.bg_until(lambda: G.kdone["B"] == 4, depth=d1)
            elif site == "PV":
                G.bg_until(lambda: G.vdone["B"] == NVREG and G.landed(("V", "B", 31)) and G.next_item == len(G.items), depth=d1)
            elif site == "B0":
                G.bg_until(lambda: allW("o", "B"))
            elif site == "B": G.need("pollB")
            elif site == "C":
                if iss: G.need("pollC")
    return plan

def generate(cfg):
    G = Gen(cfg)
    return G.build(make_plan), G

if __name__ == "__main__":
    cfg = json.loads(sys.argv[2]) if len(sys.argv) > 2 else {}
    txt, G = generate(cfg)
    open(sys.argv[1], "w").write(txt)
    if cfg.get("profile"): json.dump(cfg.get("stamps", []), open(sys.argv[1] + ".stamps.json", "w"))
    print("lines", txt.count("\n"), "bytes", len(txt), "items", [ (i, it) for i, it in enumerate(G.items) if it[0] == "W"])
```

```python
import struct, sys, json
from emit import Stream, Ins

KNAME = "interleave_layers__sliding_block_cached__sliding_block_cached__decode_kernel"
def f2u(x): return struct.unpack("<I", struct.pack("<f", x))[0]

LAYER_STRIDE = 0x40000
QS_OFF, XS_OFF, LSE_OFF, OS_OFF, YS_OFF = 0x0, 0x4000, 0x8000, 0x10000, 0x20000
SLOT_BYTES = 4 * LAYER_STRIDE
PROF_OFF = 0x100000
WAVE_BLK = 31744
WQ_OFF = {"A": 0, "B": 4096}
VL_OFF = {"A": 8192, "B": 18432}
STG_OFF = 28672
KST_OFF = VL_OFF["B"]
WO_BASE = 4 * WAVE_BLK
WO_OFF = {"A": 0, "B": 16384}
COMMON = WO_BASE + 32768
OB, QB, SB, MB = COMMON + 0, COMMON + 2048, COMMON + 2816, COMMON + 2880
LDS_BYTES = 163840
NVREG = 22
NVLDS = 32 - NVREG
sWG, sV, sPass, sLay, sFast, sT = 2, 3, 4, 5, 6, 7
SRD = {"KA": 8, "VA": 12, "KB": 16, "VB": 20, "WqA": 24, "WoA": 28, "WqB": 32, "WoB": 36, "WS": 40, "XSRC": 44, "XDST": 48}
sDBG, sOUT = 52, 54
sG, sR, sH, sJ8 = 56, 57, 58, 59
sQpub, sQpoll, sOpub, sLpub, sOpoll, sLpoll, sYpub, sYpoll = 60, 61, 62, 63, 64, 65, 66, 67
mJ2, mJ3, mJ04 = 68, 70, 72
mJ8 = 100
sWB, sCnt, sT2, sT3 = 74, 75, 76, 77
sWqB0, sWoB0 = 78, 79
sC, sXS, sWoM0, sKV = 80, 81, 82, 83
sXcc, sWcol = 84, 85
sWSlo, sWShi = 86, 87
vLane, vL16, vL8w, vTrLo, vTrHi, vXoff, vQoff, vOoff, vLoff, vXpub, vQpub, vL4 = range(12)
vXold = 12
vVswz, vWoffQ, vWoffO = 16, 17, 18
vStD, vStA = 19, 20
vWoRd, vYpub, vOpub = 21, 22, 23
vOutPub = 19
KBASE = {"A": 0, "B": 128}
VBASE = {"A": 80, "B": 168}
SCR = 72

def vr(a, n=1): return f"v{a}" if n == 1 else f"v[{a}:{a+n-1}]"
def ar(a, n=1): return f"a{a}" if n == 1 else f"a[{a}:{a+n-1}]"
def sr(a, n=1): return f"s{a}" if n == 1 else f"s[{a}:{a+n-1}]"

class Gen:
    def __init__(self, cfg):
        self.cfg = cfg
        self.main = Stream(); self.ool = Stream(); self.ool.snap = self.main.snap
        self.cur = self.main
        self.vmq = []
        self.nlab = 0
        self.items = []; self.next_item = 0
        self.kdone = {"A": 0, "B": 0}
        self.vdone = {"A": 0, "B": 0}
        self.profile = cfg.get("profile", False)
        self.kvflags = cfg.get("kvflags", "nt")
        self.wqflags = cfg.get("wqflags", "")
        self.woflags = cfg.get("woflags", "nt")
        self.depth = cfg.get("depth", 8)
    def I(self, t):
        for line in t.split("\n"):
            line = line.strip()
            if line: self.cur.ins(line)
    def label(self, n): self.cur.label(n)
    def newlab(self, p):
        self.nlab += 1
        return f"{p}_{self.nlab}"
    def vm(self, tag, t):
        self.I(t); self.vmq.append(tag)
    def need(self, tag):
        idx = [i for i, x in enumerate(self.vmq) if x == tag]
        if not idx: return
        n = len(self.vmq) - 1 - idx[-1]
        assert n <= 63
        self.I(f"s_waitcnt vmcnt({n})")
        self.vmq = self.vmq[idx[-1] + 1:]
    def wait_out(self, n):
        if len(self.vmq) > n:
            self.I(f"s_waitcnt vmcnt({n})")
            self.vmq = self.vmq[len(self.vmq) - n:] if n else []
    def issued(self, item): return item in self.items[:self.next_item]
    def landed(self, item): return self.issued(item) and item not in self.vmq
    def state(self): return (list(self.vmq), self.next_item, dict(self.kdone), dict(self.vdone))
    def set_state(self, s): self.vmq, self.next_item, self.kdone, self.vdone = list(s[0]), s[1], dict(s[2]), dict(s[3])
    def stamp(self, key):
        if not self.profile: return
        sel = self.cfg.get("stamps", [])
        if key in sel:
            k = sel.index(key)
            self.I(f"s_memtime s[{88+2*k}:{89+2*k}]")
    def flush_stamps(self, T):
        if not self.profile: return
        sel = self.cfg.get("stamps", [])
        self.I("s_waitcnt lgkmcnt(0)")
        for k in range(len(sel)):
            self.I(f"v_writelane_b32 {vr(vStD)}, s{88+2*k}, {k}")
        self.I(f"s_lshl_b32 {sr(sT3)}, {sr(sPass)}, 6")
        if T == "B": self.I(f"s_add_u32 {sr(sT3)}, {sr(sT3)}, 32")
        self.I("s_mov_b64 exec, 0x7f")
        self.I(f"buffer_store_dword {vr(vStD)}, {vr(vStA)}, {sr(SRD['WS'],4)}, {sr(sT3)} offen")
        self.I("s_mov_b64 exec, -1")
    def dbgtime(self, slot, invert=False):
        if not self.cfg.get("dbgtime"): return
        l = self.newlab("DT")
        self.I(f"s_cmp_lg_u32 {sr(sV)}, 0"); self.I(f"s_cbranch_scc1 {l}")
        self.I(f"s_cmp_lg_u32 {sr(sWG)}, {self.cfg.get('dbgwg', 0)}"); self.I(f"s_cbranch_scc1 {l}")
        self.I("s_memrealtime s[88:89]"); self.I("s_waitcnt lgkmcnt(0)")
        self.I(f"v_mov_b32 {vr(vStD)}, s88"); self.I(f"v_mov_b32 {vr(vStA)}, {slot*4}")
        self.I("s_mov_b64 exec, 1")
        if isinstance(slot, int) and slot >= 6 and slot <= 13:
            self.I(f"s_lshl_b32 s89, {sr(sPass)}, 4"); self.I(f"v_add_u32 {vr(vStA)}, s89, {vr(vStA)}")
        self.I(f"global_store_dword {vr(vStA)}, {vr(vStD)}, {sr(sDBG,2)}")
        self.I("s_mov_b64 exec, -1")
        self.label(l)
    def ool_begin(self):
        assert self.cur is self.main
        self.ool.hists = [list(h) for h in self.main.hists]
        self.cur = self.ool
    def ool_end(self): self.cur = self.main
    def p1_site(self, fn):
        lo = self.newlab("P1"); lb = self.newlab("P1B")
        self.I(f"s_cmp_eq_u32 {sr(sPass)}, 0")
        self.I(f"s_cbranch_scc1 {lo}")
        self.ool_begin(); self.label(lo)
        fn()
        self.I("s_nop 7"); self.I(f"s_branch {lb}")
        self.ool_end(); self.label(lb)
    def build_items(self):
        def inter(main, extra, first, every):
            out = []; ex = list(extra); pos = first
            for i, x in enumerate(main):
                if ex and i == pos:
                    out.append(ex.pop(0)); pos += every
                out.append(x)
            return out + ex
        c = self.cfg
        KV = lambda k, T: [(k, T, n) for n in range(32)]
        W = lambda m, T: [("W", m, T, k) for k in range(4)]
        it = []
        it += inter(KV("K", "A"), W("q", "A"), c.get("wqa_first", 0), c.get("wqa_every", 0) or 0) if c.get("wqa_every", 0) else W("q", "A") + KV("K", "A")
        it += inter(inter(KV("V", "A"), W("q", "B"), c.get("wqb_first", 1), c.get("wqb_every", 3)), W("o", "A"), c.get("woa_first", 16), c.get("woa_every", 4))
        it += KV("K", "B")
        it += inter(KV("V", "B"), W("o", "B"), c.get("wob_first", 4), c.get("wob_every", 4))
        self.items = it
    def emit_item(self, it):
        if it[0] == "K":
            _, T, n = it
            self.I(f"s_mov_b32 {sr(sT)}, {n*4096}")
            self.vm(it, f"buffer_load_dwordx4 {ar(KBASE[T]+4*n,4)}, {vr(vL16)}, {sr(SRD['K'+T],4)}, {sr(sT)} offen {self.kvflags}")
        elif it[0] == "V":
            _, T, n = it
            self.I(f"s_mov_b32 {sr(sT)}, {n*4096}")
            if n < NVREG:
                self.vm(it, f"buffer_load_dwordx4 {vr(VBASE[T]+4*n,4)}, {vr(vL16)}, {sr(SRD['V'+T],4)}, {sr(sT)} offen {self.kvflags}")
            else:
                if T == "B": assert self.kdone["B"] == 4, "VB LDS DMA before KB relayout finished"
                self.I(f"s_add_u32 m0, {sr(sWB)}, {VL_OFF[T] + (n-NVREG)*1024}")
                self.vm(it, f"buffer_load_dwordx4 {vr(vVswz)}, {sr(SRD['V'+T],4)}, {sr(sT)} offen {self.kvflags} lds")
        else:
            _, m, T, k = it
            if m == "q":
                self.I(f"s_add_u32 {sr(sT)}, {sr(sWqB0)}, {k*32*8192}")
                self.I(f"s_add_u32 m0, {sr(sWB)}, {WQ_OFF[T] + k*1024}")
                self.vm(it, f"buffer_load_dwordx4 {vr(vWoffQ)}, {sr(SRD['Wq'+T],4)}, {sr(sT)} offen {self.wqflags} lds")
            else:
                self.I(f"s_add_u32 {sr(sT)}, {sr(sWoB0)}, {k*8*1024}")
                self.I(f"s_add_u32 m0, {sr(sWoM0)}, {WO_OFF[T] + k*1024}")
                self.vm(it, f"buffer_load_dwordx4 {vr(vWoffO)}, {sr(SRD['Wo'+T],4)}, {sr(sT)} offen {self.woflags} lds")
    def can_issue(self, it):
        if it[0] == "V" and it[1] == "B" and it[2] >= NVREG: return self.kdone["B"] == 4
        return True
    def issue(self, cnt):
        out = []
        for _ in range(cnt):
            if self.next_item >= len(self.items): break
            it = self.items[self.next_item]
            if not self.can_issue(it): break
            self.next_item += 1
            self.emit_item(it); out.append(it)
        return out
    def relayout_ready(self, allow=("K", "V")):
        prog = True
        while prog:
            prog = False
            for T in "AB":
                if "K" in allow and self.kdone[T] < 4:
                    t = self.kdone[T]
                    if all(self.landed(("K", T, 8*t+i)) for i in range(8)):
                        self.k_relayout(T, t); prog = True
                if "V" in allow and self.vdone[T] < NVREG:
                    n0 = self.vdone[T]; grp = list(range(n0, min(n0 + 3, NVREG)))
                    if all(self.landed(("V", T, n)) for n in grp):
                        self.v_relayout(T, grp); prog = True
    def step(self, chunk=4, depth=None, allow=("K", "V")):
        depth = depth or self.depth
        self.wait_out(max(depth - chunk, 0))
        self.issue(chunk)
        self.relayout_ready(allow)
    def bg(self, n, chunk=4, depth=None, allow=("K", "V")):
        for _ in range(n): self.step(chunk, depth, allow)
    def bg_until(self, cond, chunk=4, depth=None, allow=("K", "V")):
        guard = 0
        while not cond():
            if self.next_item >= len(self.items) or not self.can_issue(self.items[self.next_item]):
                assert self.vmq, "bg_until stuck"
                self.wait_out(max(len(self.vmq) - chunk, 0)); self.relayout_ready(allow)
            else:
                self.step(chunk, depth, allow)
            guard += 1; assert guard < 200
    def k_relayout(self, T, tile):
        b = KBASE[T] + 32 * tile
        w0, r0, t0, t1 = SCR, SCR + 1, SCR + 2, SCR + 3
        I = self.I
        I(f"v_lshrrev_b32 {vr(t0)}, 4, {vr(vLane)}")
        I(f"v_and_b32 {vr(t1)}, 15, {vr(vLane)}")
        I(f"v_xor_b32 {vr(t1)}, {vr(t1)}, {vr(t0)}")
        I(f"v_lshlrev_b32 {vr(t1)}, 4, {vr(t1)}")
        I(f"v_lshl_add_u32 {vr(w0)}, {vr(t0)}, 8, {vr(t1)}")
        I(f"s_add_u32 {sr(sT)}, {sr(sWB)}, {KST_OFF}")
        I(f"v_add_u32 {vr(w0)}, {sr(sT)}, {vr(w0)}")
        I(f"v_and_b32 {vr(t0)}, 31, {vr(vLane)}")
        I(f"v_lshrrev_b32 {vr(t1)}, 5, {vr(vLane)}")
        I(f"v_lshlrev_b32 {vr(t1)}, 3, {vr(t1)}")
        I(f"v_and_b32 {vr(r0)}, 15, {vr(vLane)}")
        I(f"v_xor_b32 {vr(r0)}, {vr(r0)}, {vr(t1)}")
        I(f"v_lshlrev_b32 {vr(r0)}, 4, {vr(r0)}")
        I(f"v_lshl_add_u32 {vr(r0)}, {vr(t0)}, 8, {vr(r0)}")
        I(f"v_add_u32 {vr(r0)}, {sr(sT)}, {vr(r0)}")
        for i in range(8):
            m = i & 3; a = w0
            if m:
                a = t0 if (i & 1) else t1
                I(f"v_xor_b32 {vr(a)}, {m<<6}, {vr(w0)}")
            I(f"ds_write_b128 {vr(a)}, {ar(b+4*i,4)} offset:{i*1024}")
        I("s_waitcnt lgkmcnt(0)")
        for cc in range(8):
            a = r0
            if cc:
                a = t0 if (cc & 1) else t1
                I(f"v_xor_b32 {vr(a)}, {cc<<4}, {vr(r0)}")
            I(f"ds_read_b128 {ar(b+4*cc,4)}, {vr(a)}")
        I("s_waitcnt lgkmcnt(0)")
        self.kdone[T] += 1
    def v_relayout(self, T, grp):
        w0 = SCR; I = self.I
        I(f"s_add_u32 {sr(sT)}, {sr(sWB)}, {STG_OFF}")
        I(f"v_add_u32 {vr(w0)}, {sr(sT)}, {vr(vVswz)}")
        for s, n in enumerate(grp):
            I(f"ds_write_b128 {vr(w0)}, {vr(VBASE[T]+4*n,4)} offset:{s*1024}")
        I("s_waitcnt lgkmcnt(0)")
        for s, n in enumerate(grp):
            d = VBASE[T] + 4 * n
            I(f"ds_read_b64_tr_b16 {vr(d,2)}, {vr(vTrLo)} offset:{STG_OFF + s*1024}")
            I(f"ds_read_b64_tr_b16 {vr(d+2,2)}, {vr(vTrHi)} offset:{STG_OFF + s*1024}")
        I("s_waitcnt lgkmcnt(0)")
        self.vdone[T] += len(grp)
    def attempts(self, tag, iss, check, n, chunk):
        rest = [self.newlab("RS") for _ in range(n + 1)]
        chunks = []
        for k in range(n):
            iss()
            c = self.issue(chunk); chunks.append(c)
            self.need(tag)
            if k < n - 1:
                check()
                self.I(f"s_cbranch_scc0 {rest[k+1]}")
        self.I(f"s_branch {rest[n]}")
        save = self.state()
        for k in range(1, n):
            self.label(rest[k])
            for it in chunks[k]: self.emit_item(it)
        self.label(rest[n])
        self.set_state(save)
        self.vmq = [it for c in chunks for it in c]
    def hop(self, issue_fn, check_fn, p1_fn):
        lo, chk, ok, rt = self.newlab("HO"), self.newlab("HC"), self.newlab("HK"), self.newlab("HR")
        issue_fn(True)
        self.I(f"s_cmp_eq_u32 {sr(sPass)}, 0")
        self.I(f"s_cbranch_scc1 {lo}")
        self.ool_begin(); self.label(lo)
        p1_fn(lambda: issue_fn(True), check_fn)
        self.I("s_nop 7"); self.I(f"s_branch {chk}")
        self.ool_end()
        self.I("s_waitcnt vmcnt(0)")
        self.label(chk)
        check_fn()
        self.I(f"s_cbranch_scc1 {rt}")
        self.label(ok)
        self.ool_begin(); self.label(rt)
        self.I(f"s_mov_b32 {sr(sCnt)}, 0")
        lp = self.newlab("HL"); dn = self.newlab("HD")
        self.label(lp)
        issue_fn(False)
        self.I("s_waitcnt vmcnt(0)")
        check_fn()
        self.I(f"s_cbranch_scc0 {dn}")
        self.I(f"s_add_u32 {sr(sCnt)}, {sr(sCnt)}, 1")
        self.I(f"s_cmp_lt_u32 {sr(sCnt)}, {self.cfg.get('spin', 40000)}")
        self.I(f"s_cbranch_scc1 {lp}")
        self.label(dn)
        self.I("s_nop 7"); self.I(f"s_branch {ok}")
        self.ool_end()
    def pub(self, text_fn):
        lf, le = self.newlab("PF"), self.newlab("PE")
        self.I(f"s_cmp_lg_u32 {sr(sFast)}, 0")
        self.I(f"s_cbranch_scc1 {lf}")
        self.I(text_fn("sc1"))
        self.I(f"s_branch {le}")
        self.label(lf)
        self.I(text_fn(""))
        self.label(le)

    def kv_off(self):
        I = self.I
        I(f"s_lshr_b32 {sr(sT)}, {sr(sJ8)}, 2"); I(f"s_lshl_b32 {sr(sT)}, {sr(sT)}, 5"); I(f"s_add_u32 {sr(sT)}, {sr(sT)}, {sr(sH)}")
        I(f"s_lshl_b32 {sr(sT)}, {sr(sT)}, 21")
        I(f"s_and_b32 {sr(sT2)}, {sr(sJ8)}, 3"); I(f"s_lshl_b32 {sr(sT2)}, {sr(sT2)}, 17"); I(f"s_add_u32 {sr(sT)}, {sr(sT)}, {sr(sT2)}")
        I(f"s_lshl_b32 {sr(sT2)}, {sr(sV)}, 10"); I(f"s_add_u32 {sr(sT)}, {sr(sT)}, {sr(sT2)}")
        I(f"s_add_u32 {sr(sKV)}, {sr(sT)}, {6144*256}")
    def prologue(self):
        I = self.I
        KVN = 128 * 1024
        I(f"s_cmp_ge_u32 {sr(sWG)}, 256")
        I("s_cbranch_scc1 L_END")
        I("s_load_dwordx8 s[88:95], s[0:1], 0")
        I("s_load_dwordx2 s[96:97], s[0:1], 32")
        I("s_load_dwordx2 s[98:99], s[0:1], 96")
        I("s_load_dwordx4 s[16:19], s[0:1], 48")
        I("s_load_dwordx4 s[32:35], s[0:1], 64")
        I("s_load_dwordx4 s[52:55], s[0:1], 80")
        I("v_lshrrev_b32 v1, 6, v0")
        I("v_and_b32 v0, 63, v0")
        I(f"v_readfirstlane_b32 {sr(sV)}, v1")
        I(f"s_and_b32 {sr(sG)}, {sr(sWG)}, 7")
        I(f"s_lshr_b32 {sr(sR)}, {sr(sWG)}, 3")
        I(f"s_lshr_b32 {sr(sT)}, {sr(sR)}, 3")
        I(f"s_lshl_b32 {sr(sH)}, {sr(sG)}, 2")
        I(f"s_add_u32 {sr(sH)}, {sr(sH)}, {sr(sT)}")
        I(f"s_and_b32 {sr(sJ8)}, {sr(sR)}, 7")
        I(f"v_lshlrev_b32 {vr(vL16)}, 4, {vr(vLane)}")
        self.kv_off()
        I(f"s_mul_i32 {sr(sWB)}, {sr(sV)}, {WAVE_BLK}")
        I(f"v_lshrrev_b32 v24, 1, {vr(vLane)}")
        I("v_bfe_u32 v25, v24, 2, 2"); I("v_lshlrev_b32 v25, 3, v25")
        I("v_lshrrev_b32 v26, 4, v24"); I("v_lshl_add_u32 v25, v26, 2, v25")
        I("v_and_b32 v26, 3, v24"); I("v_add_u32 v25, v25, v26")
        I(f"v_and_b32 v26, 1, {vr(vLane)}"); I("v_lshlrev_b32 v26, 4, v26")
        I(f"v_lshl_add_u32 {vr(vWoffQ)}, v25, 13, v26")
        I(f"s_lshl_b32 {sr(sWqB0)}, {sr(sV)}, 20")
        I(f"s_lshl_b32 {sr(sWcol)}, {sr(sH)}, 8"); I(f"s_lshl_b32 {sr(sT2)}, {sr(sJ8)}, 5"); I(f"s_add_u32 {sr(sWcol)}, {sr(sWcol)}, {sr(sT2)}")
        I(f"s_getreg_b32 {sr(sXcc)}, hwreg(HW_REG_XCC_ID, 0, 4)")
        I(f"s_and_b32 {sr(sXcc)}, {sr(sXcc)}, 7")
        I("s_waitcnt lgkmcnt(0)")
        I(f"s_add_u32 s8, s90, {sr(sKV)}"); I("s_addc_u32 s9, s91, 0"); I(f"s_mov_b32 s10, {KVN}"); I("s_mov_b32 s11, 0x20000")
        I(f"s_add_u32 s24, s94, {sr(sWcol)}"); I("s_addc_u32 s25, s95, 0"); I(f"s_sub_u32 s26, {512*8192}, {sr(sWcol)}"); I("s_mov_b32 s27, 0x20000")
        I("s_mov_b32 s40, s98"); I("s_mov_b32 s41, s99"); I(f"s_mov_b32 s42, {PROF_OFF + 0x100000}"); I("s_mov_b32 s43, 0x20000")
        lskip = self.newlab("NOCLR")
        I(f"s_cmp_lg_u32 {sr(sV)}, 3"); I(f"s_cbranch_scc1 {lskip}")
        I("v_mov_b32 v28, -1"); I("v_mov_b32 v29, -1"); I("v_mov_b32 v30, -1"); I("v_mov_b32 v31, -1")
        I(f"s_mul_i32 {sr(sT)}, {sr(sWG)}, {SLOT_BYTES//256}")
        for o in range(0, SLOT_BYTES // 256, 1024):
            I(f"buffer_store_dwordx4 v[28:31], {vr(vL16)}, s[40:43], {sr(sT)} offen offset:{o} sc1")
        I(f"s_lshl_b32 {sr(sT)}, {sr(sXcc)}, 3")
        I(f"s_lshl_b64 s[76:77], 1, {sr(sT)}")
        I("v_mov_b32 v28, s76"); I("v_mov_b32 v29, s77")
        I(f"s_lshr_b32 {sr(sT)}, {sr(sG)}, 1"); I(f"s_lshl_b32 {sr(sT)}, {sr(sT)}, 6")
        I(f"s_and_b32 s76, {sr(sG)}, 1"); I("s_lshl_b32 s76, s76, 3"); I(f"s_add_u32 {sr(sT)}, {sr(sT)}, s76")
        I(f"v_mov_b32 v30, {sr(sT)}")
        I("s_waitcnt vmcnt(0)")
        I("s_mov_b64 exec, 1")
        I("global_atomic_add_x2 v30, v[28:29], s[54:55]")
        I("s_mov_b64 exec, -1")
        self.label(lskip)
        self.issue(self.cfg.get("pro_n", 16))
        I(f"s_mov_b32 {sr(sWSlo)}, s98"); I(f"s_mov_b32 {sr(sWShi)}, s99")
        I(f"s_add_u32 s12, s92, {sr(sKV)}"); I("s_addc_u32 s13, s93, 0"); I(f"s_mov_b32 s14, {KVN}"); I("s_mov_b32 s15, 0x20000")
        I(f"s_add_u32 s20, s18, {sr(sKV)}"); I("s_addc_u32 s21, s19, 0"); I(f"s_mov_b32 s22, {KVN}"); I("s_mov_b32 s23, 0x20000")
        I(f"s_add_u32 s16, s16, {sr(sKV)}"); I("s_addc_u32 s17, s17, 0"); I(f"s_mov_b32 s18, {KVN}"); I("s_mov_b32 s19, 0x20000")
        I(f"s_lshl_b32 {sr(sT)}, {sr(sH)}, 17"); I(f"s_lshl_b32 {sr(sT2)}, {sr(sJ8)}, 7"); I(f"s_add_u32 {sr(sT)}, {sr(sT)}, {sr(sT2)}")
        I(f"s_add_u32 s28, s96, {sr(sT)}"); I("s_addc_u32 s29, s97, 0"); I(f"s_sub_u32 s30, {4096*1024}, {sr(sT)}"); I("s_mov_b32 s31, 0x20000")
        I(f"s_add_u32 s36, s34, {sr(sT)}"); I("s_addc_u32 s37, s35, 0"); I(f"s_sub_u32 s38, {4096*1024}, {sr(sT)}"); I("s_mov_b32 s39, 0x20000")
        I(f"s_add_u32 s32, s32, {sr(sWcol)}"); I("s_addc_u32 s33, s33, 0"); I(f"s_sub_u32 s34, {512*8192}, {sr(sWcol)}"); I("s_mov_b32 s35, 0x20000")
        I("s_mov_b32 s44, s88"); I("s_mov_b32 s45, s89"); I("s_mov_b32 s46, 2048"); I("s_mov_b32 s47, 0x20000")
        I("s_mov_b32 s76, s52"); I("s_mov_b32 s77, s53"); I("s_mov_b32 s52, s54"); I("s_mov_b32 s53, s55"); I("s_mov_b32 s54, s76"); I("s_mov_b32 s55, s77")
        I("s_mov_b32 s51, 0x20000"); I("s_mov_b32 s48, s98"); I("s_mov_b32 s49, s99"); I("s_mov_b32 s50, 0")
        for (m, val) in ((mJ2, 0x00030003), (mJ3, 0x00070007), (mJ04, 0x00110011), (mJ8, 0x00ff00ff)):
            I(f"s_mov_b32 {sr(m)}, {val:#x}"); I(f"s_mov_b32 {sr(m+1)}, {val:#x}")
        I(f"s_mov_b32 {sr(sC)}, {f2u(128**-0.5 * 1.4426950408889634):#x}")
        I(f"s_mov_b32 {sr(sPass)}, 0"); I(f"s_mov_b32 {sr(sLay)}, 0"); I(f"s_mov_b32 {sr(sFast)}, 0")
        I(f"s_lshl_b32 {sr(sWoB0)}, {sr(sV)}, 15")
        I(f"s_lshl_b32 {sr(sWoM0)}, {sr(sV)}, 12"); I(f"s_add_u32 {sr(sWoM0)}, {sr(sWoM0)}, {WO_BASE}")
        I(f"s_lshl_b32 {sr(sQpub)}, {sr(sH)}, 9")
        I(f"s_lshr_b32 {sr(sT)}, {sr(sJ8)}, 2"); I(f"s_lshl_b32 {sr(sT)}, {sr(sT)}, 8")
        I(f"s_add_u32 {sr(sQpoll)}, {sr(sQpub)}, {sr(sT)}")
        I(f"s_lshl_b32 {sr(sT)}, {sr(sG)}, 5"); I(f"s_add_u32 {sr(sT2)}, {sr(sT)}, {sr(sR)}")
        I(f"s_lshl_b32 {sr(sLpub)}, {sr(sT2)}, 2"); I(f"s_add_u32 {sr(sLpub)}, {sr(sLpub)}, {LSE_OFF}")
        I(f"s_and_b32 {sr(sT2)}, {sr(sT2)}, 0xf8")
        I(f"s_lshl_b32 {sr(sOpoll)}, {sr(sT2)}, 8"); I(f"s_add_u32 {sr(sOpoll)}, {sr(sOpoll)}, {OS_OFF}")
        I(f"s_mov_b32 {sr(sOpub)}, {sr(sOpoll)}")
        I(f"s_lshl_b32 {sr(sLpoll)}, {sr(sT2)}, 2"); I(f"s_add_u32 {sr(sLpoll)}, {sr(sLpoll)}, {LSE_OFF}")
        I(f"s_lshl_b32 {sr(sYpoll)}, {sr(sR)}, 12"); I(f"s_add_u32 {sr(sYpoll)}, {sr(sYpoll)}, {YS_OFF}")
        I(f"s_lshl_b32 {sr(sT)}, {sr(sJ8)}, 2"); I(f"s_add_u32 {sr(sT)}, {sr(sT)}, {sr(sV)}"); I(f"s_lshl_b32 {sr(sT)}, {sr(sT)}, 12")
        I(f"s_lshl_b32 {sr(sT2)}, {sr(sH)}, 7"); I(f"s_add_u32 {sr(sT)}, {sr(sT)}, {sr(sT2)}"); I(f"s_add_u32 {sr(sYpub)}, {sr(sT)}, {YS_OFF}")
        I(f"s_lshl_b32 {sr(sXS)}, {sr(sG)}, 11"); I(f"s_add_u32 {sr(sXS)}, {sr(sXS)}, {XS_OFF}")
        I(f"v_lshlrev_b32 {vr(vL4)}, 2, {vr(vLane)}")
        I(f"v_lshlrev_b32 {vr(vL8w)}, 3, {vr(vLane)}"); I(f"v_add_u32 {vr(vL8w)}, {sr(sWB)}, {vr(vL8w)}")
        I(f"v_lshrrev_b32 v24, 4, {vr(vLane)}")
        I(f"v_and_b32 v25, 15, {vr(vLane)}")
        I("v_lshlrev_b32 v26, 2, v24"); I("v_xor_b32 v26, v26, v25"); I("v_lshlrev_b32 v26, 4, v26")
        I(f"v_lshl_add_u32 {vr(vVswz)}, v24, 8, v26")
        I(f"v_bfe_u32 v26, {vr(vLane)}, 2, 2")
        I(f"v_bfe_u32 v27, {vr(vLane)}, 1, 1")
        I("v_lshl_add_u32 v27, v24, 1, v27")
        I("v_lshlrev_b32 v28, 2, v26"); I("v_xor_b32 v27, v27, v28"); I("v_lshlrev_b32 v27, 4, v27")
        I("v_lshl_add_u32 v27, v26, 8, v27")
        I(f"v_and_b32 v28, 1, {vr(vLane)}"); I("v_lshl_add_u32 v27, v28, 3, v27")
        I(f"v_add_u32 {vr(vTrLo)}, {sr(sWB)}, v27")
        I(f"v_xor_b32 {vr(vTrHi)}, 0x80, {vr(vTrLo)}")
        I("v_lshl_add_u32 v27, v24, 3, v26"); I("v_lshlrev_b32 v27, 7, v27")
        I(f"v_and_b32 v28, 3, {vr(vLane)}"); I("v_lshl_add_u32 v27, v28, 3, v27")
        I(f"s_lshl_b32 {sr(sT)}, {sr(sV)}, 5"); I(f"s_add_u32 {sr(sT)}, {sr(sT)}, {WO_BASE}"); I(f"v_add_u32 {vr(vWoRd)}, {sr(sT)}, v27")
        I(f"v_lshrrev_b32 v27, 3, {vr(vLane)}"); I("v_lshlrev_b32 v27, 10, v27")
        I(f"v_and_b32 v28, 7, {vr(vLane)}"); I(f"v_lshl_add_u32 {vr(vWoffO)}, v28, 4, v27")
        I("v_and_b32 v26, 1, v25"); I("v_lshlrev_b32 v26, 4, v26"); I("v_lshl_add_u32 v26, v24, 5, v26")
        I(f"s_lshl_b32 {sr(sT)}, {sr(sV)}, 9"); I(f"v_add_u32 {vr(vXoff)}, {sr(sT)}, v26")
        I(f"v_lshrrev_b32 v26, 2, {vr(vLane)}"); I(f"v_lshlrev_b32 {vr(vQoff)}, 4, v26")
        I("v_and_b32 v26, 7, v25"); I(f"v_lshlrev_b32 {vr(vLoff)}, 2, v26")
        I("v_lshlrev_b32 v26, 4, v26"); I(f"v_lshl_add_u32 {vr(vOoff)}, v24, 7, v26")
        I(f"v_lshrrev_b32 v26, 2, {vr(vLane)}"); I("v_lshlrev_b32 v26, 7, v26")
        I(f"v_and_b32 v27, 3, {vr(vLane)}"); I("v_lshl_add_u32 v26, v27, 2, v26")
        I(f"s_lshl_b32 {sr(sT)}, {sr(sJ8)}, 4"); I(f"v_add_u32 {vr(vOpub)}, {sr(sT)}, v26")
        I(f"v_bfe_u32 v26, {vr(vLane)}, 2, 1"); I("v_lshlrev_b32 v27, 6, v26"); I(f"v_lshl_add_u32 {vr(vYpub)}, v24, 4, v27")
        I("v_lshlrev_b32 v27, 10, v26")
        I(f"v_and_b32 v28, 3, {vr(vLane)}"); I("v_lshl_add_u32 v27, v28, 3, v27")
        I(f"s_lshl_b32 {sr(sT)}, {sr(sR)}, 5"); I(f"v_add_u32 v30, {sr(sT)}, v27")
        I("v_lshlrev_b32 v26, 4, v26")
        I("v_lshrrev_b32 v27, 1, v28"); I("v_lshl_add_u32 v26, v27, 5, v26")
        I("v_and_b32 v27, 1, v28"); I("v_lshl_add_u32 v26, v27, 3, v26")
        I(f"s_lshl_b32 {sr(sT)}, {sr(sR)}, 6"); I(f"v_add_u32 {vr(vXpub)}, {sr(sT)}, v26")
        I("v_and_b32 v26, 1, v24"); I("v_lshlrev_b32 v26, 8, v26"); I("v_lshl_add_u32 v26, v25, 1, v26")
        I(f"s_lshl_b32 {sr(sT)}, {sr(sJ8)}, 5"); I(f"v_add_u32 {vr(vQpub)}, {sr(sT)}, v26")
        if self.profile:
            I(f"s_lshl_b32 {sr(sT)}, {sr(sWG)}, 2"); I(f"s_add_u32 {sr(sT)}, {sr(sT)}, {sr(sV)}"); I(f"s_lshl_b32 {sr(sT)}, {sr(sT)}, 10")
            I(f"s_add_u32 {sr(sT)}, {sr(sT)}, {PROF_OFF}"); I(f"v_add_u32 {vr(vStA)}, {sr(sT)}, {vr(vL4)}")
            I("s_memrealtime s[88:89]"); I("s_memtime s[90:91]"); I("s_waitcnt lgkmcnt(0)")
            I(f"v_mov_b32 {vr(vStD)}, s88"); I(f"v_writelane_b32 {vr(vStD)}, s90, 1")
            I(f"s_getreg_b32 {sr(sT)}, hwreg(HW_REG_HW_ID)"); I(f"v_writelane_b32 {vr(vStD)}, {sr(sT)}, 2")
            I("s_mov_b64 exec, 7")
            I(f"buffer_store_dword {vr(vStD)}, {vr(vStA)}, {sr(SRD['WS'],4)}, 0 offen offset:512")
            I("s_mov_b64 exec, -1")
        self.dbgtime(5, invert=True)
        self.vm("xold", f"buffer_load_dwordx2 v[{vXold}:{vXold+1}], v30, s[44:47], 0 offen")

    def layer(self, T, plan):
        I = self.I
        last = (T == "B")
        lg = (lambda n: 0) if self.profile else (lambda n: n)
        X, W, DQ, DS = 24, 40, 56, 60
        self.stamp("start")
        self.p1_site(lambda: plan("D0"))
        for k in range(4):
            for t in range(2):
                I(f"ds_read_b64_tr_b16 {vr(W+4*k+2*t,2)}, {vr(vL8w)} offset:{WQ_OFF[T] + k*1024 + t*512}")
        for i in range(16): I(f"v_mov_b32 {vr(X+i)}, 0x3f803f80")
        I(f"v_and_b32 v66, 15, {vr(vLane)}"); I(f"v_lshrrev_b32 v67, 4, {vr(vLane)}")
        I("v_lshlrev_b32 v64, 6, v66"); I("v_lshl_add_u32 v64, v67, 4, v64")
        I(f"s_mul_i32 {sr(sT)}, {sr(sV)}, 192"); I(f"s_add_u32 {sr(sT)}, {sr(sT)}, {QB}"); I(f"v_add_u32 v64, {sr(sT)}, v64")
        I(f"s_lshl_b32 {sr(sT)}, {sr(sV)}, 4"); I(f"s_add_u32 {sr(sT)}, {sr(sT)}, {SB}")
        I(f"v_lshlrev_b32 v65, 3, {vr(vLane)}"); I(f"v_add_u32 v65, {sr(sT)}, v65")
        I(f"v_add_u32 v68, {QB}, {vr(vL4)}")
        I("v_lshlrev_b32 v66, 2, v66"); I(f"v_add_u32 v66, {QB+128}, v66")
        I("v_and_b32 v67, 1, v67"); I("v_lshlrev_b32 v67, 3, v67"); I(f"v_add_u32 v67, {SB}, v67")
        def d_issue(track):
            I(f"s_mov_b64 exec, {sr(mJ2,2)}")
            for k in range(4):
                t = f"buffer_load_dwordx4 {vr(X+4*k,4)}, {vr(vXoff)}, {sr(SRD['XSRC'],4)}, 0 offen offset:{128*k} sc1"
                self.vm("pollD", t) if track else I(t)
            I("s_mov_b64 exec, -1")
        def chk16(base, extra=None, ta=69, tb=70, mask="exec"):
            def f():
                a, b = vr(ta), vr(tb)
                I(f"v_max3_u32 {a}, {vr(base)}, {vr(base+1)}, {vr(base+2)}")
                I(f"v_max3_u32 {b}, {vr(base+3)}, {vr(base+4)}, {vr(base+5)}")
                I(f"v_max3_u32 {a}, {a}, {vr(base+6)}, {vr(base+7)}")
                I(f"v_max3_u32 {b}, {b}, {vr(base+8)}, {vr(base+9)}")
                I(f"v_max3_u32 {a}, {a}, {vr(base+10)}, {vr(base+11)}")
                I(f"v_max3_u32 {b}, {b}, {vr(base+12)}, {vr(base+13)}")
                I(f"v_max3_u32 {a}, {a}, {vr(base+14)}, {vr(base+15)}")
                if extra is not None: I(f"v_max3_u32 {a}, {a}, {b}, {vr(extra)}")
                else: I(f"v_max_u32 {a}, {a}, {b}")
                I(f"v_cmp_eq_u32 vcc, -1, {a}")
                I(f"s_and_b64 vcc, vcc, {mask}")
            return f
        self.hop(d_issue, chk16(X), lambda iss, chk: plan("D", iss, chk))
        self.stamp("Dok")
        I("s_waitcnt lgkmcnt(0)")
        for k in range(4):
            c = "0" if k == 0 else vr(DQ, 4)
            I(f"v_mfma_f32_16x16x32_bf16 {vr(DQ,4)}, {vr(W+4*k,4)}, {vr(X+4*k,4)}, {c}")
            c = "0" if k == 0 else vr(DS, 4)
            I(f"v_mfma_f32_16x16x32_bf16 {vr(DS,4)}, {vr(X+4*k,4)}, {vr(X+4*k,4)}, {c}")
        I(f"v_cmp_eq_u32 vcc, 1, {vr(vLane)}")
        I(f"s_mov_b64 exec, {sr(mJ3,2)}")
        I(f"ds_write_b128 v64, {vr(DQ,4)}")
        I("s_mov_b64 exec, 3")
        I(f"v_cndmask_b32 {vr(DS)}, {vr(DS)}, {vr(DS+1)}, vcc")
        I(f"v_mov_b32 {vr(DS+1)}, {vr(DS+2)}")
        I(f"ds_write_b64 v65, v[{DS}:{DS+1}]")
        I("s_mov_b64 exec, -1")
        I("s_waitcnt lgkmcnt(0)")
        I("s_barrier")
        self.stamp("Qbar")
        lf = self.newlab("FQ")
        I(f"s_cmp_lg_u32 {sr(sV)}, 0"); I(f"s_cbranch_scc1 {lf}")
        I("ds_read2_b32 v[24:25], v68 offset0:0 offset1:48")
        I("ds_read2_b32 v[26:27], v68 offset0:96 offset1:144")
        I("ds_read2_b32 v[28:29], v66 offset0:0 offset1:48")
        I("ds_read2_b32 v[30:31], v66 offset0:96 offset1:144")
        for w in range(4): I(f"ds_read_b64 v[{32+2*w}:{33+2*w}], v67 offset:{16*w}")
        I("s_waitcnt lgkmcnt(0)")
        I("v_add_f32 v33, v33, v35"); I("v_add_f32 v37, v37, v39"); I("v_add_f32 v32, v32, v34"); I("v_add_f32 v36, v36, v38")
        I("v_add_f32 v24, v24, v25"); I("v_add_f32 v33, v33, v37"); I("v_add_f32 v26, v26, v27"); I("v_add_f32 v32, v32, v36")
        I(f"v_mul_f32 v33, {f2u(1/512):#x}, v33"); I("v_add_f32 v28, v28, v29")
        I(f"v_mul_f32 v32, {f2u(1/512):#x}, v32"); I("v_add_f32 v30, v30, v31")
        I("v_fma_f32 v32, -v33, v33, v32"); I("v_add_f32 v24, v24, v26")
        I("v_max_f32 v32, 0, v32"); I("v_add_f32 v28, v28, v30")
        I(f"v_add_f32 v32, {f2u(1e-5):#x}, v32")
        I("v_fma_f32 v24, -v33, v28, v24")
        I("v_rsq_f32 v32, v32")
        I("v_mul_f32 v24, v24, v32")
        I("v_mov_b32_dpp v25, v24 quad_perm:[1,1,3,3] row_mask:0xf bank_mask:0xf")
        I("v_cvt_pk_bf16_f32 v24, v24, v25")
        I("s_mov_b64 exec, 0x55555555")
        self.pub(lambda fl: f"buffer_store_dword v24, {vr(vQpub)}, {sr(SRD['WS'],4)}, {sr(sQpub)} offen {fl}")
        I("s_mov_b64 exec, -1")
        self.label(lf)
        self.stamp("Qpub")
        Q = 76
        def a_issue(track):
            t = f"buffer_load_dwordx4 {vr(Q,4)}, {vr(vQoff)}, {sr(SRD['WS'],4)}, {sr(sQpoll)} offen sc1"
            self.vm("pollA", t) if track else I(t)
        def a_check():
            I(f"v_max3_u32 v69, {vr(Q)}, {vr(Q+1)}, {vr(Q+2)}")
            I(f"v_max_u32 v69, v69, {vr(Q+3)}")
            I("v_cmp_eq_u32 vcc, -1, v69")
            I("s_and_b64 vcc, vcc, exec")
        self.hop(a_issue, a_check, lambda iss, chk: plan("A", iss, chk))
        self.stamp("Aok")
        S = 24; kb = KBASE[T]
        for cc in range(8):
            for u in range(2):
                for tl in range(4):
                    c = "0" if (cc == 0 and u == 0) else vr(S+4*tl, 4)
                    I(f"v_mfma_f32_4x4x4_16b_bf16 {vr(S+4*tl,4)}, {vr(Q+2*u,2)}, {ar(kb+32*tl+4*cc+2*u,2)}, {c} cbsz:3 abid:{cc}")
        VT = 40
        def vtemp_reads():
            for n in range(NVLDS):
                I(f"ds_read_b64_tr_b16 {vr(VT+4*n,2)}, {vr(vTrLo)} offset:{VL_OFF[T] + n*1024}")
                I(f"ds_read_b64_tr_b16 {vr(VT+4*n+2,2)}, {vr(vTrHi)} offset:{VL_OFF[T] + n*1024}")
        vtemp_reads()
        I(f"v_permlane32_swap_b32 {vr(S)}, {vr(S+4)}")
        I(f"v_permlane32_swap_b32 {vr(S+8)}, {vr(S+12)}")
        I(f"v_add_f32 {vr(S)}, {vr(S)}, {vr(S+4)}")
        I(f"v_add_f32 {vr(S+8)}, {vr(S+8)}, {vr(S+12)}")
        M_, TM = 25, 26
        I(f"v_max_f32 {vr(M_)}, {vr(S)}, {vr(S+8)}")
        for rr in (8, 4, 2, 1):
            I(f"v_max_f32_dpp {vr(M_)}, {vr(M_)}, {vr(M_)} row_ror:{rr} row_mask:0xf bank_mask:0xf")
        I(f"v_mov_b32 {vr(TM)}, {vr(M_)}"); I(f"v_permlane16_swap_b32 {vr(M_)}, {vr(TM)}"); I(f"v_max_f32 {vr(M_)}, {vr(M_)}, {vr(TM)}")
        I(f"v_mov_b32 {vr(TM)}, {vr(M_)}"); I(f"v_permlane32_swap_b32 {vr(M_)}, {vr(TM)}"); I(f"v_max_f32 {vr(M_)}, {vr(M_)}, {vr(TM)}")
        I(f"v_mul_f32 v36, {sr(sC)}, {vr(M_)}")
        I(f"v_fma_f32 {vr(S)}, {vr(S)}, {sr(sC)}, -v36")
        I(f"v_fma_f32 {vr(S+8)}, {vr(S+8)}, {sr(sC)}, -v36")
        I(f"v_exp_f32 {vr(S)}, {vr(S)}")
        I(f"v_exp_f32 {vr(S+8)}, {vr(S+8)}")
        P0, P1 = 34, 38
        I(f"v_mov_b32_dpp {vr(TM)}, {vr(S)} quad_perm:[1,1,3,3] row_mask:0xf bank_mask:0xf")
        I(f"v_mov_b32_dpp v27, {vr(S+8)} quad_perm:[1,1,3,3] row_mask:0xf bank_mask:0xf")
        I(f"v_cvt_pk_bf16_f32 {vr(P0)}, {vr(S)}, {vr(TM)}")
        I(f"v_cvt_pk_bf16_f32 {vr(P1)}, {vr(S+8)}, v27")
        I(f"v_add_f32 v33, {vr(S)}, {vr(S+8)}")
        I(f"v_mov_b32_dpp {vr(P0+1)}, {vr(P0)} quad_perm:[2,2,2,2] row_mask:0xf bank_mask:0xf")
        I(f"v_mov_b32_dpp {vr(P1+1)}, {vr(P1)} quad_perm:[2,2,2,2] row_mask:0xf bank_mask:0xf")
        self.stamp("SM")
        def pv_p1():
            I("s_waitcnt lgkmcnt(0)")
            plan("PV")
            vtemp_reads()
        self.p1_site(pv_p1)
        self.stamp("Vok")
        self.dbgtime(6 if T == "A" else 8)
        OL, OH = 28, 24
        lsum = [f"v_add_f32_dpp v33, v33, v33 row_ror:{rr} row_mask:0xf bank_mask:0xf" for rr in (8, 4, 2, 1)]
        lsum += ["v_mov_b32 v37, v33", "v_permlane16_swap_b32 v33, v37", "v_add_f32 v33, v33, v37",
                 "v_mov_b32 v37, v33", "v_permlane32_swap_b32 v33, v37", "v_add_f32 v37, v33, v37"]
        extra = [f"s_lshl_b32 {sr(sT)}, {sr(sV)}, 9", f"s_add_u32 {sr(sT)}, {sr(sT)}, {OB}"]
        first = True; cnt = 0
        for n in range(32):
            J, b = n >> 4, n & 15
            Pp = P0 if J == 0 else P1
            src = VBASE[T] + 4 * n if n < NVREG else VT + 4 * (n - NVREG)
            if n == NVREG: I("s_waitcnt lgkmcnt(0)")
            c = "0" if first else vr(OL, 4)
            I(f"v_mfma_f32_4x4x4_16b_bf16 {vr(OL,4)}, {vr(Pp,2)}, {vr(src,2)}, {c} cbsz:4 abid:{b}")
            c = "0" if first else vr(OH, 4)
            I(f"v_mfma_f32_4x4x4_16b_bf16 {vr(OH,4)}, {vr(Pp,2)}, {vr(src+2,2)}, {c} cbsz:4 abid:{b}")
            first = False
            if cnt % 2 == 0 and lsum and n >= 1: I(lsum.pop(0))
            else: I("s_nop 0")
            cnt += 1
        assert not lsum
        I(f"s_lshl_b32 {sr(sT)}, {sr(sV)}, 9"); I(f"s_add_u32 {sr(sT)}, {sr(sT)}, {OB}"); I(f"v_add_u32 v40, {sr(sT)}, {vr(vL4)}")
        I(f"s_lshl_b32 {sr(sT)}, {sr(sV)}, 3"); I(f"s_add_u32 {sr(sT)}, {sr(sT)}, {MB}"); I(f"v_mov_b32 v41, {sr(sT)}")
        I(f"ds_write_b32 v40, {vr(OL)}")
        I(f"ds_write_b32 v40, {vr(OH)} offset:256")
        I("s_mov_b64 exec, 1")
        I("ds_write_b64 v41, v[36:37]")
        I("s_mov_b64 exec, -1")
        I(f"v_lshlrev_b32 v42, 3, {vr(vLane)}"); I(f"v_add_u32 v42, {OB}, v42"); I(f"v_mov_b32 v43, {MB}")
        self.stamp("PV")
        self.p1_site(lambda: plan("B0"))
        I("s_waitcnt lgkmcnt(0)")
        I("s_barrier")
        self.stamp("Obar")
        W2 = 56
        for k in range(4):
            for t in range(2):
                I(f"ds_read_b64_tr_b16 {vr(W2+4*k+2*t,2)}, {vr(vWoRd)} offset:{WO_OFF[T] + k*4096 + t*512}")
        lc = self.newlab("CB")
        I(f"s_cmp_lg_u32 {sr(sV)}, 0"); I(f"s_cbranch_scc1 {lc}")
        I("ds_read_b128 v[24:27], v43"); I("ds_read_b128 v[28:31], v43 offset:16")
        for w in range(4): I(f"ds_read_b64 v[{32+2*w}:{33+2*w}], v42 offset:{512*w}")
        I(f"s_waitcnt lgkmcnt({lg(4)})")
        I("v_max3_f32 v44, v24, v26, v28"); I("v_max_f32 v44, v44, v30")
        I("v_sub_f32 v24, v24, v44"); I("v_sub_f32 v26, v26, v44"); I("v_sub_f32 v28, v28, v44"); I("v_sub_f32 v30, v30, v44")
        I("v_exp_f32 v24, v24"); I("v_exp_f32 v26, v26"); I("v_exp_f32 v28, v28"); I("v_exp_f32 v30, v30")
        I("v_mul_f32 v45, v24, v25"); I("v_fmac_f32 v45, v26, v27"); I("v_fmac_f32 v45, v28, v29"); I("v_fmac_f32 v45, v30, v31")
        I("s_waitcnt lgkmcnt(0)")
        I("v_rcp_f32 v46, v45")
        I("v_mul_f32 v48, v24, v32"); I("v_mul_f32 v49, v24, v33")
        I("v_fmac_f32 v48, v26, v34"); I("v_fmac_f32 v49, v26, v35")
        I("v_fmac_f32 v48, v28, v36"); I("v_fmac_f32 v49, v28, v37")
        I("v_fmac_f32 v48, v30, v38"); I("v_fmac_f32 v49, v30, v39")
        I("v_log_f32 v47, v45")
        I("v_mul_f32 v48, v48, v46"); I("v_mul_f32 v49, v49, v46")
        I("v_cvt_pk_bf16_f32 v48, v48, v49")
        I("v_add_f32 v47, v47, v44")
        I("v_mov_b32 v50, 0")
        lf2, le2 = self.newlab("PF"), self.newlab("PE")
        I(f"s_cmp_lg_u32 {sr(sFast)}, 0"); I(f"s_cbranch_scc1 {lf2}")
        I(f"buffer_store_dword v48, {vr(vOpub)}, {sr(SRD['WS'],4)}, {sr(sOpub)} offen sc1")
        I("s_mov_b64 exec, 1")
        I(f"buffer_store_dword v47, v50, {sr(SRD['WS'],4)}, {sr(sLpub)} offen sc1")
        I(f"s_branch {le2}")
        self.label(lf2)
        I(f"buffer_store_dword v48, {vr(vOpub)}, {sr(SRD['WS'],4)}, {sr(sOpub)} offen")
        I("s_mov_b64 exec, 1")
        I(f"buffer_store_dword v47, v50, {sr(SRD['WS'],4)}, {sr(sLpub)} offen")
        self.label(le2)
        I("s_mov_b64 exec, -1")
        self.label(lc)
        self.stamp("Opub")
        O_, LS = 24, 40
        def b_issue(track):
            I(f"s_mov_b64 exec, {sr(mJ8,2)}")
            for k in range(4):
                t = f"buffer_load_dwordx4 {vr(O_+4*k,4)}, {vr(vOoff)}, {sr(SRD['WS'],4)}, {sr(sOpoll)} offen offset:{512*k} sc1"
                self.vm("pollB", t) if track else I(t)
            t = f"buffer_load_dword {vr(LS)}, {vr(vLoff)}, {sr(SRD['WS'],4)}, {sr(sLpoll)} offen sc1"
            self.vm("pollB", t) if track else I(t)
            I("s_mov_b64 exec, -1")
        self.hop(b_issue, chk16(O_, LS, 46, 47, mask=sr(mJ8,2)), lambda iss, chk: plan("B", iss, chk))
        self.stamp("Bok")
        DY = 48
        I("s_waitcnt lgkmcnt(0)")
        for k in range(4):
            c = "0" if k == 0 else vr(DY, 4)
            I(f"v_mfma_f32_16x16x32_bf16 {vr(DY,4)}, {vr(W2+4*k,4)}, {vr(O_+4*k,4)}, {c}")
        I(f"v_mov_b32_dpp v41, {vr(LS)} quad_perm:[1,0,3,2] row_mask:0xf bank_mask:0xf")
        I(f"v_max_f32 v41, v41, {vr(LS)}")
        I("v_mov_b32_dpp v42, v41 quad_perm:[2,3,0,1] row_mask:0xf bank_mask:0xf")
        I("v_max_f32 v41, v41, v42")
        I(f"v_sub_f32 v41, {vr(LS)}, v41")
        I("v_exp_f32 v41, v41")
        I("v_add_f32_dpp v42, v41, v41 quad_perm:[1,0,3,2] row_mask:0xf bank_mask:0xf")
        I("v_add_f32_dpp v42, v42, v42 quad_perm:[2,3,0,1] row_mask:0xf bank_mask:0xf")
        I("v_rcp_f32 v42, v42")
        I("v_mul_f32 v41, v41, v42")
        for i in range(4): I(f"v_mul_f32 {vr(DY+i)}, {vr(DY+i)}, v41")
        for i in range(4): I(f"v_add_f32_dpp {vr(DY+i)}, {vr(DY+i)}, {vr(DY+i)} quad_perm:[1,0,3,2] row_mask:0xf bank_mask:0xf")
        for i in range(4): I(f"v_add_f32_dpp {vr(DY+i)}, {vr(DY+i)}, {vr(DY+i)} quad_perm:[2,3,0,1] row_mask:0xf bank_mask:0xf")
        I(f"s_mov_b64 exec, {sr(mJ04,2)}")
        I(f"buffer_store_dwordx4 {vr(DY,4)}, {vr(vYpub)}, {sr(SRD['WS'],4)}, {sr(sYpub)} offen sc1")
        I("s_mov_b64 exec, -1")
        self.stamp("Ypub")
        I(f"s_add_u32 {sr(sT)}, {sr(sLay)}, {sr(sXS)}")
        I(f"s_add_u32 s44, {sr(sWSlo)}, {sr(sT)}"); I(f"s_addc_u32 s45, {sr(sWShi)}, 0")
        I("s_mov_b32 s48, s44"); I("s_mov_b32 s49, s45"); I("s_mov_b32 s50, 2048")
        if last:
            I(f"s_cmp_eq_u32 {sr(sPass)}, 1")
            I(f"s_cselect_b32 s48, {sr(sOUT)}, s48"); I(f"s_cselect_b32 s49, {sr(sOUT+1)}, s49")
            I(f"s_cselect_b32 {sr(sT)}, {sr(sG)}, 0")
            I(f"s_cmp_eq_u32 {sr(sT)}, 0")
            I("s_cselect_b32 s50, 2048, 0")
            I(f"v_bfe_u32 v52, {vr(vLane)}, 2, 1"); I("v_lshlrev_b32 v52, 10, v52")
            I(f"v_and_b32 v53, 3, {vr(vLane)}"); I("v_lshl_add_u32 v52, v53, 3, v52")
            I(f"s_lshl_b32 {sr(sT)}, {sr(sR)}, 5"); I(f"v_add_u32 v52, {sr(sT)}, v52")
            I(f"s_cmp_eq_u32 {sr(sPass)}, 1"); I("s_cselect_b64 vcc, -1, 0")
            I(f"v_cndmask_b32 v52, {vr(vXpub)}, v52, vcc")
        lx = self.newlab("CX"); lnz = self.newlab("CNZ")
        I(f"s_cmp_lg_u32 {sr(sV)}, 0"); I(f"s_cbranch_scc1 {lnz}")
        Y = 24
        def c_issue(track):
            for i in range(4):
                t = f"buffer_load_dwordx4 {vr(Y+4*i,4)}, {vr(vL16)}, {sr(SRD['WS'],4)}, {sr(sYpoll)} offen offset:{1024*i} sc1"
                self.vm("pollC", t) if track else I(t)
        st_before = self.state()
        self.hop(c_issue, chk16(Y), lambda iss, chk: plan("C", iss, chk))
        self.stamp("Cok")
        for i in range(4): I(f"v_add_f32 {vr(Y+i)}, {vr(Y+i)}, {vr(Y+4+i)}")
        for i in range(4): I(f"v_add_f32 {vr(Y+8+i)}, {vr(Y+8+i)}, {vr(Y+12+i)}")
        for i in range(4): I(f"v_add_f32 {vr(Y+i)}, {vr(Y+i)}, {vr(Y+8+i)}")
        for i in range(4): I(f"v_add_f32_dpp {vr(Y+i)}, {vr(Y+i)}, {vr(Y+i)} row_ror:8 row_mask:0xf bank_mask:0xf")
        for i in range(4): I(f"v_mov_b32 v{32+i}, {vr(Y+i)}")
        for i in range(4): I(f"v_permlane16_swap_b32 {vr(Y+i)}, v{32+i}")
        for i in range(4): I(f"v_add_f32 {vr(Y+i)}, {vr(Y+i)}, v{32+i}")
        for i in range(4): I(f"v_mov_b32 v{32+i}, {vr(Y+i)}")
        for i in range(4): I(f"v_permlane32_swap_b32 {vr(Y+i)}, v{32+i}")
        for i in range(4): I(f"v_add_f32 {vr(Y+i)}, {vr(Y+i)}, v{32+i}")
        I(f"v_cvt_pk_bf16_f32 v32, {vr(Y)}, {vr(Y+1)}"); I(f"v_cvt_pk_bf16_f32 v33, {vr(Y+2)}, {vr(Y+3)}")
        I("v_lshlrev_b32 v34, 16, v32"); I("v_and_b32 v35, 0xffff0000, v32"); I("v_lshlrev_b32 v36, 16, v33"); I("v_and_b32 v37, 0xffff0000, v33")
        for i in range(4): I(f"v_add_f32 v{34+i}, v{34+i}, {vr(vXold+i)}")
        I("v_cvt_pk_bf16_f32 v32, v34, v35"); I("v_cvt_pk_bf16_f32 v33, v36, v37")
        I("s_mov_b64 exec, 0xff")
        self.pub(lambda fl: f"buffer_store_dwordx2 v[32:33], {vr(52 if last else vXpub)}, {sr(SRD['XDST'],4)}, 0 offen {fl}")
        I("s_mov_b64 exec, -1")
        I(f"v_lshlrev_b32 {vr(vXold)}, 16, v32"); I(f"v_and_b32 {vr(vXold+1)}, 0xffff0000, v32")
        I(f"v_lshlrev_b32 {vr(vXold+2)}, 16, v33"); I(f"v_and_b32 {vr(vXold+3)}, 0xffff0000, v33")
        self.stamp("Xpub")
        self.dbgtime(7 if T == "A" else 9)
        I(f"s_branch {lx}")
        st_after = self.state()
        self.label(lnz)
        self.set_state(st_before)
        self.p1_site(lambda: plan("C", None, None))
        assert self.state()[1:] == st_after[1:], (self.state()[1:], st_after[1:])
        self.label(lx)
        for s_ in (sLay, sQpub, sQpoll, sOpub, sLpub, sOpoll, sLpoll, sYpub, sYpoll):
            I(f"s_add_u32 {sr(s_)}, {sr(s_)}, {LAYER_STRIDE}")
        self.flush_stamps(T)

    def build(self, plan_factory):
        self.build_items()
        self.prologue()
        plan = plan_factory(self)
        self.label("L_LOOP")
        self.layer("A", lambda site, iss=None, chk=None: plan("A", site, iss, chk))
        self.layer("B", lambda site, iss=None, chk=None: plan("B", site, iss, chk))
        assert self.next_item == len(self.items), (self.next_item, len(self.items))
        assert self.kdone == {"A": 4, "B": 4} and self.vdone == {"A": NVREG, "B": NVREG}
        self.I(f"s_add_u32 {sr(sPass)}, {sr(sPass)}, 1")
        self.I(f"s_cmp_lt_u32 {sr(sPass)}, 2")
        self.I("s_cbranch_scc1 L_LOOP")
        if self.profile:
            self.I("s_memrealtime s[88:89]"); self.I("s_memtime s[90:91]"); self.I("s_waitcnt lgkmcnt(0)")
            self.I(f"v_mov_b32 {vr(vStD)}, s88"); self.I(f"v_writelane_b32 {vr(vStD)}, s90, 1")
            self.I("s_mov_b64 exec, 3")
            self.I(f"buffer_store_dword {vr(vStD)}, {vr(vStA)}, {sr(SRD['WS'],4)}, 0 offen offset:768")
            self.I("s_mov_b64 exec, -1")
        if self.cfg.get("diag_delay"):
            self.I(f"s_mov_b32 {sr(sCnt)}, 0")
            self.label("L_DLY")
            for _ in range(16): self.I("s_nop 15")
            self.I(f"s_add_u32 {sr(sCnt)}, {sr(sCnt)}, 1"); self.I(f"s_cmp_lt_u32 {sr(sCnt)}, {self.cfg['diag_delay']}"); self.I("s_cbranch_scc1 L_DLY")
        self.dbgtime(4)
        self.label("L_END")
        self.I("s_endpgm")
        hdr = [f"; @launch grid=(256,1,1) block=(256,1,1) lds={LDS_BYTES}", '.amdgcn_target "amdgcn-amd-amdhsa--gfx950"',
               ".text", f".globl {KNAME}", ".p2align 8", f".type {KNAME},@function", f"{KNAME}:"]
        tail = ['.section .rodata,"a"', ".p2align 6", f".amdhsa_kernel {KNAME}",
                "  .amdhsa_next_free_vgpr 512", "  .amdhsa_next_free_sgpr 102", "  .amdhsa_accum_offset 256",
                "  .amdhsa_group_segment_fixed_size 0", "  .amdhsa_kernarg_size 104", "  .amdhsa_user_sgpr_count 2",
                "  .amdhsa_user_sgpr_kernarg_segment_ptr 1", "  .amdhsa_system_sgpr_workgroup_id_x 1",
                "  .amdhsa_float_denorm_mode_32 3", ".end_amdhsa_kernel"]
        return "\n".join(hdr + self.main.lines + self.ool.lines + tail) + "\n"

def startup_check(G):
    I = G.I
    l = G.newlab("SC"); lp = G.newlab("SCL"); dn = G.newlab("SCD")
    I(f"s_cmp_lg_u32 {sr(sV)}, 0"); I(f"s_cbranch_scc1 {l}")
    I(f"v_lshrrev_b32 v72, 1, {vr(vLane)}"); I("v_lshlrev_b32 v72, 6, v72")
    I(f"v_and_b32 v73, 1, {vr(vLane)}"); I("v_lshl_add_u32 v72, v73, 3, v72")
    I(f"s_mov_b32 {sr(sCnt)}, 0")
    I("s_mov_b64 exec, 0xff")
    G.label(lp)
    I(f"global_load_dwordx2 v[74:75], v72, {sr(sDBG,2)} sc1")
    I("s_waitcnt vmcnt(0)")
    I("v_sad_u8 v73, v74, 0, 0"); I("v_sad_u8 v73, v75, 0, v73")
    I("v_cmp_ne_u32 vcc, 32, v73")
    I(f"s_cbranch_vccz {dn}")
    I(f"s_add_u32 {sr(sCnt)}, {sr(sCnt)}, 1")
    I(f"s_cmp_lt_u32 {sr(sCnt)}, {G.cfg.get('spin', 40000)}")
    I(f"s_cbranch_scc1 {lp}")
    G.label(dn)
    I(f"v_readlane_b32 {sr(sT2)}, v74, {sr(sG)}")
    I(f"v_readlane_b32 {sr(sT3)}, v75, {sr(sG)}")
    I("s_mov_b64 exec, -1")
    I(f"s_lshl_b32 {sr(sT)}, {sr(sXcc)}, 3")
    I(f"s_lshr_b64 s[{sT2}:{sT3}], s[{sT2}:{sT3}], {sr(sT)}")
    I(f"s_and_b32 {sr(sT2)}, {sr(sT2)}, 0xff")
    I(f"s_cmp_eq_u32 {sr(sT2)}, 32")
    I(f"s_cselect_b32 {sr(sFast)}, {0 if G.cfg.get('force_slow') else 1}, 0")
    G.label(l)

def make_plan(G):
    c = G.cfg
    d1 = c.get("d1", 24)
    allW = lambda m, T: all(G.landed(("W", m, T, k)) for k in range(4))
    def hop_p1(tag, iss, chk, name, dflt):
        pre, low, n, ch = c.get(name, dflt)
        G.bg(pre, depth=c.get("d2", 10), allow=(() if name == "hC" else ("K", "V")))
        G.wait_out(low) if iss is not None else None
        if iss is None:
            for _ in range(n): G.step(ch, depth=c.get("d2", 10), allow=())
        else:
            G.attempts(tag, iss, chk, n, ch)
    def plan(T, site, iss=None, chk=None):
        I = G.I
        if T == "A":
            if site == "D0":
                G.bg_until(lambda: allW("q", "A"), depth=d1, allow=())
            elif site == "D":
                I(f"v_lshrrev_b32 v72, 4, {vr(vLane)}"); I(f"v_and_b32 v73, 1, {vr(vLane)}")
                I("v_lshlrev_b32 v73, 10, v73"); I("v_lshl_add_u32 v72, v72, 4, v73")
                I(f"s_lshl_b32 {sr(sT)}, {sr(sV)}, 8"); I(f"v_add_u32 v72, {sr(sT)}, v72")
                I(f"s_mov_b64 exec, {sr(mJ2,2)}")
                for k in range(4):
                    G.vm("pollD", f"buffer_load_dwordx4 {vr(24+4*k,4)}, v72, {sr(SRD['XSRC'],4)}, 0 offen offset:{64*k}")
                I("s_mov_b64 exec, -1")
                G.issue(c.get("dA_after", 8))
                G.need("pollD"); G.need("xold")
                I(f"v_and_b32 {vr(vXold+3)}, 0xffff0000, {vr(vXold+1)}"); I(f"v_lshlrev_b32 {vr(vXold+2)}, 16, {vr(vXold+1)}")
                I(f"v_and_b32 {vr(vXold+1)}, 0xffff0000, {vr(vXold)}"); I(f"v_lshlrev_b32 {vr(vXold)}, 16, {vr(vXold)}")
                startup_check(G)
                G.relayout_ready()
            elif site == "A":
                G.bg_until(lambda: G.kdone["A"] >= 3, depth=d1)
                G.attempts("pollA", iss, chk, 1, c.get("aA_after", 8))
                G.bg_until(lambda: G.kdone["A"] == 4, depth=d1)
            elif site == "PV":
                G.bg_until(lambda: G.issued(("V", "A", 31)), depth=d1)
                G.bg_until(lambda: G.vdone["A"] == NVREG and G.landed(("V", "A", 31)), depth=c.get("d2", 10))
            elif site == "B0":
                G.bg_until(lambda: allW("o", "A"), depth=c.get("d2", 10))
            elif site == "B": hop_p1("pollB", iss, chk, "hB", [1, 4, 2, 4])
            elif site == "C": hop_p1("pollC", iss, chk, "hC", [1, 4, 3, 4])
        else:
            if site == "D0":
                G.bg_until(lambda: allW("q", "B"), depth=c.get("d2", 10))
            elif site == "D": hop_p1("pollD", iss, chk, "hD", [0, 4, 3, 4])
            elif site == "A":
                hop_p1("pollA", iss, chk, "hA", [0, 4, 3, 4])
                G.bg_until(lambda: G.kdone["B"] == 4, depth=d1)
            elif site == "PV":
                G.bg_until(lambda: G.vdone["B"] == NVREG and G.landed(("V", "B", 31)) and G.next_item == len(G.items), depth=d1)
            elif site == "B0":
                G.bg_until(lambda: allW("o", "B"))
            elif site == "B": G.need("pollB")
            elif site == "C":
                if iss: G.need("pollC")
    return plan

def generate(cfg):
    G = Gen(cfg)
    return G.build(make_plan), G

if __name__ == "__main__":
    cfg = json.loads(sys.argv[2]) if len(sys.argv) > 2 else {}
    txt, G = generate(cfg)
    open(sys.argv[1], "w").write(txt)
    if cfg.get("profile"): json.dump(cfg.get("stamps", []), open(sys.argv[1] + ".stamps.json", "w"))
    print("lines", txt.count("\n"), "bytes", len(txt), "items", [ (i, it) for i, it in enumerate(G.items) if it[0] == "W"])
```

```python
import struct, sys, json
from emit import Stream, Ins

KNAME = "interleave_layers__sliding_block_cached__sliding_block_cached__decode_kernel"
def f2u(x): return struct.unpack("<I", struct.pack("<f", x))[0]

LAYER_STRIDE = 0x40000
QS_OFF, XS_OFF, LSE_OFF, OS_OFF, YS_OFF = 0x0, 0x4000, 0x8000, 0x10000, 0x20000
SLOT_BYTES = 4 * LAYER_STRIDE
PROF_OFF = 0x100000
WAVE_BLK = 31744
WQ_OFF = {"A": 0, "B": 4096}
VL_OFF = {"A": 8192, "B": 18432}
STG_OFF = 28672
KST_OFF = VL_OFF["B"]
WO_BASE = 4 * WAVE_BLK
WO_OFF = {"A": 0, "B": 16384}
COMMON = WO_BASE + 32768
OB, QB, SB, MB = COMMON + 0, COMMON + 2048, COMMON + 2816, COMMON + 2880
LDS_BYTES = 163840
NVREG = 22
NVLDS = 32 - NVREG
sWG, sV, sPass, sLay, sFast, sT = 2, 3, 4, 5, 6, 7
SRD = {"KA": 8, "VA": 12, "KB": 16, "VB": 20, "WqA": 24, "WoA": 28, "WqB": 32, "WoB": 36, "WS": 40, "XSRC": 44, "XDST": 48}
sDBG, sOUT = 52, 54
sG, sR, sH, sJ8 = 56, 57, 58, 59
sQpub, sQpoll, sOpub, sLpub, sOpoll, sLpoll, sYpub, sYpoll = 60, 61, 62, 63, 64, 65, 66, 67
mJ2, mJ3, mJ04 = 68, 70, 72
mJ8 = 100
sWB, sCnt, sT2, sT3 = 74, 75, 76, 77
sWqB0, sWoB0 = 78, 79
sC, sXS, sWoM0, sKV = 80, 81, 82, 83
sXcc, sWcol = 84, 85
sWSlo, sWShi = 86, 87
vLane, vL16, vL8w, vTrLo, vTrHi, vXoff, vQoff, vOoff, vLoff, vXpub, vQpub, vL4 = range(12)
vXold = 12
vVswz, vWoffQ, vWoffO = 16, 17, 18
vStD, vStA = 19, 20
vWoRd, vYpub, vOpub = 21, 22, 23
vOutPub = 19
KBASE = {"A": 0, "B": 128}
VBASE = {"A": 80, "B": 168}
SCR = 72

def vr(a, n=1): return f"v{a}" if n == 1 else f"v[{a}:{a+n-1}]"
def ar(a, n=1): return f"a{a}" if n == 1 else f"a[{a}:{a+n-1}]"
def sr(a, n=1): return f"s{a}" if n == 1 else f"s[{a}:{a+n-1}]"

class Gen:
    def __init__(self, cfg):
        self.cfg = cfg
        self.main = Stream(); self.ool = Stream(); self.ool.snap = self.main.snap
        self.cur = self.main
        self.vmq = []
        self.nlab = 0
        self.items = []; self.next_item = 0
        self.kdone = {"A": 0, "B": 0}
        self.vdone = {"A": 0, "B": 0}
        self.profile = cfg.get("profile", False)
        self.kvflags = cfg.get("kvflags", "nt")
        self.wqflags = cfg.get("wqflags", "")
        self.woflags = cfg.get("woflags", "nt")
        self.depth = cfg.get("depth", 8)
    def I(self, t):
        for line in t.split("\n"):
            line = line.strip()
            if line: self.cur.ins(line)
    def label(self, n): self.cur.label(n)
    def newlab(self, p):
        self.nlab += 1
        return f"{p}_{self.nlab}"
    def vm(self, tag, t):
        self.I(t); self.vmq.append(tag)
    def need(self, tag):
        idx = [i for i, x in enumerate(self.vmq) if x == tag]
        if not idx: return
        n = len(self.vmq) - 1 - idx[-1]
        assert n <= 63
        self.I(f"s_waitcnt vmcnt({n})")
        self.vmq = self.vmq[idx[-1] + 1:]
    def wait_out(self, n):
        if len(self.vmq) > n:
            self.I(f"s_waitcnt vmcnt({n})")
            self.vmq = self.vmq[len(self.vmq) - n:] if n else []
    def issued(self, item): return item in self.items[:self.next_item]
    def landed(self, item): return self.issued(item) and item not in self.vmq
    def state(self): return (list(self.vmq), self.next_item, dict(self.kdone), dict(self.vdone))
    def set_state(self, s): self.vmq, self.next_item, self.kdone, self.vdone = list(s[0]), s[1], dict(s[2]), dict(s[3])
    def stamp(self, key):
        if not self.profile: return
        sel = self.cfg.get("stamps", [])
        if key in sel:
            k = sel.index(key)
            self.I(f"s_memtime s[{88+2*k}:{89+2*k}]")
    def flush_stamps(self, T):
        if not self.profile: return
        sel = self.cfg.get("stamps", [])
        self.I("s_waitcnt lgkmcnt(0)")
        for k in range(len(sel)):
            self.I(f"v_writelane_b32 {vr(vStD)}, s{88+2*k}, {k}")
        self.I(f"s_lshl_b32 {sr(sT3)}, {sr(sPass)}, 6")
        if T == "B": self.I(f"s_add_u32 {sr(sT3)}, {sr(sT3)}, 32")
        self.I("s_mov_b64 exec, 0x7f")
        self.I(f"buffer_store_dword {vr(vStD)}, {vr(vStA)}, {sr(SRD['WS'],4)}, {sr(sT3)} offen")
        self.I("s_mov_b64 exec, -1")
    def dbgtime(self, slot, invert=False):
        if not self.cfg.get("dbgtime"): return
        l = self.newlab("DT")
        self.I(f"s_cmp_lg_u32 {sr(sV)}, 0"); self.I(f"s_cbranch_scc1 {l}")
        self.I(f"s_cmp_lg_u32 {sr(sWG)}, {self.cfg.get('dbgwg', 0)}"); self.I(f"s_cbranch_scc1 {l}")
        self.I("s_memrealtime s[88:89]"); self.I("s_waitcnt lgkmcnt(0)")
        self.I(f"v_mov_b32 {vr(vStD)}, s88"); self.I(f"v_mov_b32 {vr(vStA)}, {slot*4}")
        self.I("s_mov_b64 exec, 1")
        if isinstance(slot, int) and slot >= 6 and slot <= 13:
            self.I(f"s_lshl_b32 s89, {sr(sPass)}, 4"); self.I(f"v_add_u32 {vr(vStA)}, s89, {vr(vStA)}")
        self.I(f"global_store_dword {vr(vStA)}, {vr(vStD)}, {sr(sDBG,2)}")
        self.I("s_mov_b64 exec, -1")
        self.label(l)
    def ool_begin(self):
        assert self.cur is self.main
        self.ool.hists = [list(h) for h in self.main.hists]
        self.cur = self.ool
    def ool_end(self): self.cur = self.main
    def p1_site(self, fn):
        lo = self.newlab("P1"); lb = self.newlab("P1B")
        self.I(f"s_cmp_eq_u32 {sr(sPass)}, 0")
        self.I(f"s_cbranch_scc1 {lo}")
        self.ool_begin(); self.label(lo)
        fn()
        self.I("s_nop 7"); self.I(f"s_branch {lb}")
        self.ool_end(); self.label(lb)
    def build_items(self):
        def inter(main, extra, first, every):
            out = []; ex = list(extra); pos = first
            for i, x in enumerate(main):
                if ex and i == pos:
                    out.append(ex.pop(0)); pos += every
                out.append(x)
            return out + ex
        c = self.cfg
        KV = lambda k, T: [(k, T, n) for n in range(32)]
        W = lambda m, T: [("W", m, T, k) for k in range(4)]
        it = []
        it += inter(KV("K", "A"), W("q", "A"), c.get("wqa_first", 0), c.get("wqa_every", 0) or 0) if c.get("wqa_every", 0) else W("q", "A") + KV("K", "A")
        it += inter(inter(KV("V", "A"), W("q", "B"), c.get("wqb_first", 1), c.get("wqb_every", 3)), W("o", "A"), c.get("woa_first", 16), c.get("woa_every", 4))
        it += KV("K", "B")
        it += inter(KV("V", "B"), W("o", "B"), c.get("wob_first", 4), c.get("wob_every", 4))
        self.items = it
    def emit_item(self, it):
        if it[0] == "K":
            _, T, n = it
            self.I(f"s_mov_b32 {sr(sT)}, {n*4096}")
            self.vm(it, f"buffer_load_dwordx4 {ar(KBASE[T]+4*n,4)}, {vr(vL16)}, {sr(SRD['K'+T],4)}, {sr(sT)} offen {self.kvflags}")
        elif it[0] == "V":
            _, T, n = it
            self.I(f"s_mov_b32 {sr(sT)}, {n*4096}")
            if n < NVREG:
                self.vm(it, f"buffer_load_dwordx4 {vr(VBASE[T]+4*n,4)}, {vr(vL16)}, {sr(SRD['V'+T],4)}, {sr(sT)} offen {self.kvflags}")
            else:
                if T == "B": assert self.kdone["B"] == 4, "VB LDS DMA before KB relayout finished"
                self.I(f"s_add_u32 m0, {sr(sWB)}, {VL_OFF[T] + (n-NVREG)*1024}")
                self.vm(it, f"buffer_load_dwordx4 {vr(vVswz)}, {sr(SRD['V'+T],4)}, {sr(sT)} offen {self.kvflags} lds")
        else:
            _, m, T, k = it
            if m == "q":
                self.I(f"s_add_u32 {sr(sT)}, {sr(sWqB0)}, {k*32*8192}")
                self.I(f"s_add_u32 m0, {sr(sWB)}, {WQ_OFF[T] + k*1024}")
                self.vm(it, f"buffer_load_dwordx4 {vr(vWoffQ)}, {sr(SRD['Wq'+T],4)}, {sr(sT)} offen {self.wqflags} lds")
            else:
                self.I(f"s_add_u32 {sr(sT)}, {sr(sWoB0)}, {k*8*1024}")
                self.I(f"s_add_u32 m0, {sr(sWoM0)}, {WO_OFF[T] + k*1024}")
                self.vm(it, f"buffer_load_dwordx4 {vr(vWoffO)}, {sr(SRD['Wo'+T],4)}, {sr(sT)} offen {self.woflags} lds")
    def can_issue(self, it):
        if it[0] == "V" and it[1] == "B" and it[2] >= NVREG: return self.kdone["B"] == 4
        return True
    def issue(self, cnt):
        out = []
        for _ in range(cnt):
            if self.next_item >= len(self.items): break
            it = self.items[self.next_item]
            if not self.can_issue(it): break
            self.next_item += 1
            self.emit_item(it); out.append(it)
        return out
    def relayout_ready(self, allow=("K", "V")):
        prog = True
        while prog:
            prog = False
            for T in "AB":
                if "K" in allow and self.kdone[T] < 4:
                    t = self.kdone[T]
                    if all(self.landed(("K", T, 8*t+i)) for i in range(8)):
                        self.k_relayout(T, t); prog = True
                if "V" in allow and self.vdone[T] < NVREG:
                    n0 = self.vdone[T]; grp = list(range(n0, min(n0 + 3, NVREG)))
                    if all(self.landed(("V", T, n)) for n in grp):
                        self.v_relayout(T, grp); prog = True
    def step(self, chunk=4, depth=None, allow=("K", "V")):
        depth = depth or self.depth
        self.wait_out(max(depth - chunk, 0))
        self.issue(chunk)
        self.relayout_ready(allow)
    def bg(self, n, chunk=4, depth=None, allow=("K", "V")):
        for _ in range(n): self.step(chunk, depth, allow)
    def bg_until(self, cond, chunk=4, depth=None, allow=("K", "V")):
        guard = 0
        while not cond():
            if self.next_item >= len(self.items) or not self.can_issue(self.items[self.next_item]):
                assert self.vmq, "bg_until stuck"
                self.wait_out(max(len(self.vmq) - chunk, 0)); self.relayout_ready(allow)
            else:
                self.step(chunk, depth, allow)
            guard += 1; assert guard < 200
    def k_relayout(self, T, tile):
        b = KBASE[T] + 32 * tile
        w0, r0, t0, t1 = SCR, SCR + 1, SCR + 2, SCR + 3
        I = self.I
        I(f"v_lshrrev_b32 {vr(t0)}, 4, {vr(vLane)}")
        I(f"v_and_b32 {vr(t1)}, 15, {vr(vLane)}")
        I(f"v_xor_b32 {vr(t1)}, {vr(t1)}, {vr(t0)}")
        I(f"v_lshlrev_b32 {vr(t1)}, 4, {vr(t1)}")
        I(f"v_lshl_add_u32 {vr(w0)}, {vr(t0)}, 8, {vr(t1)}")
        I(f"s_add_u32 {sr(sT)}, {sr(sWB)}, {KST_OFF}")
        I(f"v_add_u32 {vr(w0)}, {sr(sT)}, {vr(w0)}")
        I(f"v_and_b32 {vr(t0)}, 31, {vr(vLane)}")
        I(f"v_lshrrev_b32 {vr(t1)}, 5, {vr(vLane)}")
        I(f"v_lshlrev_b32 {vr(t1)}, 3, {vr(t1)}")
        I(f"v_and_b32 {vr(r0)}, 15, {vr(vLane)}")
        I(f"v_xor_b32 {vr(r0)}, {vr(r0)}, {vr(t1)}")
        I(f"v_lshlrev_b32 {vr(r0)}, 4, {vr(r0)}")
        I(f"v_lshl_add_u32 {vr(r0)}, {vr(t0)}, 8, {vr(r0)}")
        I(f"v_add_u32 {vr(r0)}, {sr(sT)}, {vr(r0)}")
        for i in range(8):
            m = i & 3; a = w0
            if m:
                a = t0 if (i & 1) else t1
                I(f"v_xor_b32 {vr(a)}, {m<<6}, {vr(w0)}")
            I(f"ds_write_b128 {vr(a)}, {ar(b+4*i,4)} offset:{i*1024}")
        I("s_waitcnt lgkmcnt(0)")
        for cc in range(8):
            a = r0
            if cc:
                a = t0 if (cc & 1) else t1
                I(f"v_xor_b32 {vr(a)}, {cc<<4}, {vr(r0)}")
            I(f"ds_read_b128 {ar(b+4*cc,4)}, {vr(a)}")
        I("s_waitcnt lgkmcnt(0)")
        self.kdone[T] += 1
    def v_relayout(self, T, grp):
        w0 = SCR; I = self.I
        I(f"s_add_u32 {sr(sT)}, {sr(sWB)}, {STG_OFF}")
        I(f"v_add_u32 {vr(w0)}, {sr(sT)}, {vr(vVswz)}")
        for s, n in enumerate(grp):
            I(f"ds_write_b128 {vr(w0)}, {vr(VBASE[T]+4*n,4)} offset:{s*1024}")
        I("s_waitcnt lgkmcnt(0)")
        for s, n in enumerate(grp):
            d = VBASE[T] + 4 * n
            I(f"ds_read_b64_tr_b16 {vr(d,2)}, {vr(vTrLo)} offset:{STG_OFF + s*1024}")
            I(f"ds_read_b64_tr_b16 {vr(d+2,2)}, {vr(vTrHi)} offset:{STG_OFF + s*1024}")
        I("s_waitcnt lgkmcnt(0)")
        self.vdone[T] += len(grp)
    def attempts(self, tag, iss, check, n, chunk):
        rest = [self.newlab("RS") for _ in range(n + 1)]
        chunks = []
        for k in range(n):
            iss()
            c = self.issue(chunk); chunks.append(c)
            self.need(tag)
            if k < n - 1:
                check()
                self.I(f"s_cbranch_scc0 {rest[k+1]}")
        self.I(f"s_branch {rest[n]}")
        save = self.state()
        for k in range(1, n):
            self.label(rest[k])
            for it in chunks[k]: self.emit_item(it)
        self.label(rest[n])
        self.set_state(save)
        self.vmq = [it for c in chunks for it in c]
    def hop(self, issue_fn, check_fn, p1_fn):
        lo, chk, ok, rt = self.newlab("HO"), self.newlab("HC"), self.newlab("HK"), self.newlab("HR")
        issue_fn(True)
        self.I(f"s_cmp_eq_u32 {sr(sPass)}, 0")
        self.I(f"s_cbranch_scc1 {lo}")
        self.ool_begin(); self.label(lo)
        p1_fn(lambda: issue_fn(True), check_fn)
        self.I("s_nop 7"); self.I(f"s_branch {chk}")
        self.ool_end()
        self.I("s_waitcnt vmcnt(0)")
        self.label(chk)
        check_fn()
        self.I(f"s_cbranch_scc1 {rt}")
        self.label(ok)
        self.ool_begin(); self.label(rt)
        self.I(f"s_mov_b32 {sr(sCnt)}, 0")
        lp = self.newlab("HL"); dn = self.newlab("HD")
        self.label(lp)
        issue_fn(False)
        self.I("s_waitcnt vmcnt(0)")
        check_fn()
        self.I(f"s_cbranch_scc0 {dn}")
        self.I(f"s_add_u32 {sr(sCnt)}, {sr(sCnt)}, 1")
        self.I(f"s_cmp_lt_u32 {sr(sCnt)}, {self.cfg.get('spin', 40000)}")
        self.I(f"s_cbranch_scc1 {lp}")
        self.label(dn)
        self.I("s_nop 7"); self.I(f"s_branch {ok}")
        self.ool_end()
    def pub(self, text_fn):
        lf, le = self.newlab("PF"), self.newlab("PE")
        self.I(f"s_cmp_lg_u32 {sr(sFast)}, 0")
        self.I(f"s_cbranch_scc1 {lf}")
        self.I(text_fn("sc1"))
        self.I(f"s_branch {le}")
        self.label(lf)
        self.I(text_fn(""))
        self.label(le)

    def kv_off(self):
        I = self.I
        I(f"s_lshr_b32 {sr(sT)}, {sr(sJ8)}, 2"); I(f"s_lshl_b32 {sr(sT)}, {sr(sT)}, 5"); I(f"s_add_u32 {sr(sT)}, {sr(sT)}, {sr(sH)}")
        I(f"s_lshl_b32 {sr(sT)}, {sr(sT)}, 21")
        I(f"s_and_b32 {sr(sT2)}, {sr(sJ8)}, 3"); I(f"s_lshl_b32 {sr(sT2)}, {sr(sT2)}, 17"); I(f"s_add_u32 {sr(sT)}, {sr(sT)}, {sr(sT2)}")
        I(f"s_lshl_b32 {sr(sT2)}, {sr(sV)}, 10"); I(f"s_add_u32 {sr(sT)}, {sr(sT)}, {sr(sT2)}")
        I(f"s_add_u32 {sr(sKV)}, {sr(sT)}, {6144*256}")
    def prologue(self):
        I = self.I
        KVN = 128 * 1024
        I(f"s_cmp_ge_u32 {sr(sWG)}, 256")
        I("s_cbranch_scc1 L_END")
        if self.cfg.get("dbgtime"): I("s_memrealtime s[4:5]")
        I("s_load_dwordx8 s[88:95], s[0:1], 0")
        I("s_load_dwordx2 s[96:97], s[0:1], 32")
        I("s_load_dwordx2 s[98:99], s[0:1], 96")
        I("s_load_dwordx4 s[16:19], s[0:1], 48")
        I("s_load_dwordx4 s[32:35], s[0:1], 64")
        I("s_load_dwordx4 s[52:55], s[0:1], 80")
        I("v_lshrrev_b32 v1, 6, v0")
        I("v_and_b32 v0, 63, v0")
        I(f"v_readfirstlane_b32 {sr(sV)}, v1")
        I(f"s_and_b32 {sr(sG)}, {sr(sWG)}, 7")
        I(f"s_lshr_b32 {sr(sR)}, {sr(sWG)}, 3")
        I(f"s_lshr_b32 {sr(sT)}, {sr(sR)}, 3")
        I(f"s_lshl_b32 {sr(sH)}, {sr(sG)}, 2")
        I(f"s_add_u32 {sr(sH)}, {sr(sH)}, {sr(sT)}")
        I(f"s_and_b32 {sr(sJ8)}, {sr(sR)}, 7")
        I(f"v_lshlrev_b32 {vr(vL16)}, 4, {vr(vLane)}")
        self.kv_off()
        I(f"s_mul_i32 {sr(sWB)}, {sr(sV)}, {WAVE_BLK}")
        I(f"v_lshrrev_b32 v24, 1, {vr(vLane)}")
        I("v_bfe_u32 v25, v24, 2, 2"); I("v_lshlrev_b32 v25, 3, v25")
        I("v_lshrrev_b32 v26, 4, v24"); I("v_lshl_add_u32 v25, v26, 2, v25")
        I("v_and_b32 v26, 3, v24"); I("v_add_u32 v25, v25, v26")
        I(f"v_and_b32 v26, 1, {vr(vLane)}"); I("v_lshlrev_b32 v26, 4, v26")
        I(f"v_lshl_add_u32 {vr(vWoffQ)}, v25, 13, v26")
        I(f"s_lshl_b32 {sr(sWqB0)}, {sr(sV)}, 20")
        I(f"s_lshl_b32 {sr(sWcol)}, {sr(sH)}, 8"); I(f"s_lshl_b32 {sr(sT2)}, {sr(sJ8)}, 5"); I(f"s_add_u32 {sr(sWcol)}, {sr(sWcol)}, {sr(sT2)}")
        I(f"s_getreg_b32 {sr(sXcc)}, hwreg(HW_REG_XCC_ID, 0, 4)")
        I(f"s_and_b32 {sr(sXcc)}, {sr(sXcc)}, 7")
        I("s_waitcnt lgkmcnt(0)")
        if self.cfg.get("dbgtime"):
            I("v_mov_b32 v78, s4"); I("s_memrealtime s[4:5]"); I("s_waitcnt lgkmcnt(0)"); I("v_mov_b32 v79, s4")
        I(f"s_add_u32 s8, s90, {sr(sKV)}"); I("s_addc_u32 s9, s91, 0"); I(f"s_mov_b32 s10, {KVN}"); I("s_mov_b32 s11, 0x20000")
        I(f"s_add_u32 s24, s94, {sr(sWcol)}"); I("s_addc_u32 s25, s95, 0"); I(f"s_sub_u32 s26, {512*8192}, {sr(sWcol)}"); I("s_mov_b32 s27, 0x20000")
        I("s_mov_b32 s40, s98"); I("s_mov_b32 s41, s99"); I(f"s_mov_b32 s42, {PROF_OFF + 0x100000}"); I("s_mov_b32 s43, 0x20000")
        lskip = self.newlab("NOCLR")
        I(f"s_cmp_lg_u32 {sr(sV)}, 3"); I(f"s_cbranch_scc1 {lskip}")
        I("v_mov_b32 v28, -1"); I("v_mov_b32 v29, -1"); I("v_mov_b32 v30, -1"); I("v_mov_b32 v31, -1")
        I(f"s_mul_i32 {sr(sT)}, {sr(sWG)}, {SLOT_BYTES//256}")
        for o in range(0, SLOT_BYTES // 256, 1024):
            I(f"buffer_store_dwordx4 v[28:31], {vr(vL16)}, s[40:43], {sr(sT)} offen offset:{o} sc1")
        I(f"s_lshl_b32 {sr(sT)}, {sr(sXcc)}, 3")
        I(f"s_lshl_b64 s[76:77], 1, {sr(sT)}")
        I("v_mov_b32 v28, s76"); I("v_mov_b32 v29, s77")
        I(f"s_lshr_b32 {sr(sT)}, {sr(sG)}, 1"); I(f"s_lshl_b32 {sr(sT)}, {sr(sT)}, 6")
        I(f"s_and_b32 s76, {sr(sG)}, 1"); I("s_lshl_b32 s76, s76, 3"); I(f"s_add_u32 {sr(sT)}, {sr(sT)}, s76")
        I(f"v_mov_b32 v30, {sr(sT)}")
        I("s_waitcnt vmcnt(0)")
        I("s_mov_b64 exec, 1")
        I("global_atomic_add_x2 v30, v[28:29], s[54:55]")
        I("s_mov_b64 exec, -1")
        self.label(lskip)
        self.issue(self.cfg.get("pro_n", 16))
        I(f"s_mov_b32 {sr(sWSlo)}, s98"); I(f"s_mov_b32 {sr(sWShi)}, s99")
        I(f"s_add_u32 s12, s92, {sr(sKV)}"); I("s_addc_u32 s13, s93, 0"); I(f"s_mov_b32 s14, {KVN}"); I("s_mov_b32 s15, 0x20000")
        I(f"s_add_u32 s20, s18, {sr(sKV)}"); I("s_addc_u32 s21, s19, 0"); I(f"s_mov_b32 s22, {KVN}"); I("s_mov_b32 s23, 0x20000")
        I(f"s_add_u32 s16, s16, {sr(sKV)}"); I("s_addc_u32 s17, s17, 0"); I(f"s_mov_b32 s18, {KVN}"); I("s_mov_b32 s19, 0x20000")
        I(f"s_lshl_b32 {sr(sT)}, {sr(sH)}, 17"); I(f"s_lshl_b32 {sr(sT2)}, {sr(sJ8)}, 7"); I(f"s_add_u32 {sr(sT)}, {sr(sT)}, {sr(sT2)}")
        I(f"s_add_u32 s28, s96, {sr(sT)}"); I("s_addc_u32 s29, s97, 0"); I(f"s_sub_u32 s30, {4096*1024}, {sr(sT)}"); I("s_mov_b32 s31, 0x20000")
        I(f"s_add_u32 s36, s34, {sr(sT)}"); I("s_addc_u32 s37, s35, 0"); I(f"s_sub_u32 s38, {4096*1024}, {sr(sT)}"); I("s_mov_b32 s39, 0x20000")
        I(f"s_add_u32 s32, s32, {sr(sWcol)}"); I("s_addc_u32 s33, s33, 0"); I(f"s_sub_u32 s34, {512*8192}, {sr(sWcol)}"); I("s_mov_b32 s35, 0x20000")
        I("s_mov_b32 s44, s88"); I("s_mov_b32 s45, s89"); I("s_mov_b32 s46, 2048"); I("s_mov_b32 s47, 0x20000")
        I("s_mov_b32 s76, s52"); I("s_mov_b32 s77, s53"); I("s_mov_b32 s52, s54"); I("s_mov_b32 s53, s55"); I("s_mov_b32 s54, s76"); I("s_mov_b32 s55, s77")
        I("s_mov_b32 s51, 0x20000"); I("s_mov_b32 s48, s98"); I("s_mov_b32 s49, s99"); I("s_mov_b32 s50, 0")
        for (m, val) in ((mJ2, 0x00030003), (mJ3, 0x00070007), (mJ04, 0x00110011), (mJ8, 0x00ff00ff)):
            I(f"s_mov_b32 {sr(m)}, {val:#x}"); I(f"s_mov_b32 {sr(m+1)}, {val:#x}")
        I(f"s_mov_b32 {sr(sC)}, {f2u(128**-0.5 * 1.4426950408889634):#x}")
        I(f"s_mov_b32 {sr(sPass)}, 0"); I(f"s_mov_b32 {sr(sLay)}, 0"); I(f"s_mov_b32 {sr(sFast)}, 0")
        I(f"s_lshl_b32 {sr(sWoB0)}, {sr(sV)}, 15")
        I(f"s_lshl_b32 {sr(sWoM0)}, {sr(sV)}, 12"); I(f"s_add_u32 {sr(sWoM0)}, {sr(sWoM0)}, {WO_BASE}")
        I(f"s_lshl_b32 {sr(sQpub)}, {sr(sH)}, 9")
        I(f"s_lshr_b32 {sr(sT)}, {sr(sJ8)}, 2"); I(f"s_lshl_b32 {sr(sT)}, {sr(sT)}, 8")
        I(f"s_add_u32 {sr(sQpoll)}, {sr(sQpub)}, {sr(sT)}")
        I(f"s_lshl_b32 {sr(sT)}, {sr(sG)}, 5"); I(f"s_add_u32 {sr(sT2)}, {sr(sT)}, {sr(sR)}")
        I(f"s_lshl_b32 {sr(sLpub)}, {sr(sT2)}, 2"); I(f"s_add_u32 {sr(sLpub)}, {sr(sLpub)}, {LSE_OFF}")
        I(f"s_and_b32 {sr(sT2)}, {sr(sT2)}, 0xf8")
        I(f"s_lshl_b32 {sr(sOpoll)}, {sr(sT2)}, 8"); I(f"s_add_u32 {sr(sOpoll)}, {sr(sOpoll)}, {OS_OFF}")
        I(f"s_mov_b32 {sr(sOpub)}, {sr(sOpoll)}")
        I(f"s_lshl_b32 {sr(sLpoll)}, {sr(sT2)}, 2"); I(f"s_add_u32 {sr(sLpoll)}, {sr(sLpoll)}, {LSE_OFF}")
        I(f"s_lshl_b32 {sr(sYpoll)}, {sr(sR)}, 12"); I(f"s_add_u32 {sr(sYpoll)}, {sr(sYpoll)}, {YS_OFF}")
        I(f"s_lshl_b32 {sr(sT)}, {sr(sJ8)}, 2"); I(f"s_add_u32 {sr(sT)}, {sr(sT)}, {sr(sV)}"); I(f"s_lshl_b32 {sr(sT)}, {sr(sT)}, 12")
        I(f"s_lshl_b32 {sr(sT2)}, {sr(sH)}, 7"); I(f"s_add_u32 {sr(sT)}, {sr(sT)}, {sr(sT2)}"); I(f"s_add_u32 {sr(sYpub)}, {sr(sT)}, {YS_OFF}")
        I(f"s_lshl_b32 {sr(sXS)}, {sr(sG)}, 11"); I(f"s_add_u32 {sr(sXS)}, {sr(sXS)}, {XS_OFF}")
        I(f"v_lshlrev_b32 {vr(vL4)}, 2, {vr(vLane)}")
        I(f"v_lshlrev_b32 {vr(vL8w)}, 3, {vr(vLane)}"); I(f"v_add_u32 {vr(vL8w)}, {sr(sWB)}, {vr(vL8w)}")
        I(f"v_lshrrev_b32 v24, 4, {vr(vLane)}")
        I(f"v_and_b32 v25, 15, {vr(vLane)}")
        I("v_lshlrev_b32 v26, 2, v24"); I("v_xor_b32 v26, v26, v25"); I("v_lshlrev_b32 v26, 4, v26")
        I(f"v_lshl_add_u32 {vr(vVswz)}, v24, 8, v26")
        I(f"v_bfe_u32 v26, {vr(vLane)}, 2, 2")
        I(f"v_bfe_u32 v27, {vr(vLane)}, 1, 1")
        I("v_lshl_add_u32 v27, v24, 1, v27")
        I("v_lshlrev_b32 v28, 2, v26"); I("v_xor_b32 v27, v27, v28"); I("v_lshlrev_b32 v27, 4, v27")
        I("v_lshl_add_u32 v27, v26, 8, v27")
        I(f"v_and_b32 v28, 1, {vr(vLane)}"); I("v_lshl_add_u32 v27, v28, 3, v27")
        I(f"v_add_u32 {vr(vTrLo)}, {sr(sWB)}, v27")
        I(f"v_xor_b32 {vr(vTrHi)}, 0x80, {vr(vTrLo)}")
        I("v_lshl_add_u32 v27, v24, 3, v26"); I("v_lshlrev_b32 v27, 7, v27")
        I(f"v_and_b32 v28, 3, {vr(vLane)}"); I("v_lshl_add_u32 v27, v28, 3, v27")
        I(f"s_lshl_b32 {sr(sT)}, {sr(sV)}, 5"); I(f"s_add_u32 {sr(sT)}, {sr(sT)}, {WO_BASE}"); I(f"v_add_u32 {vr(vWoRd)}, {sr(sT)}, v27")
        I(f"v_lshrrev_b32 v27, 3, {vr(vLane)}"); I("v_lshlrev_b32 v27, 10, v27")
        I(f"v_and_b32 v28, 7, {vr(vLane)}"); I(f"v_lshl_add_u32 {vr(vWoffO)}, v28, 4, v27")
        I("v_and_b32 v26, 1, v25"); I("v_lshlrev_b32 v26, 4, v26"); I("v_lshl_add_u32 v26, v24, 5, v26")
        I(f"s_lshl_b32 {sr(sT)}, {sr(sV)}, 9"); I(f"v_add_u32 {vr(vXoff)}, {sr(sT)}, v26")
        I(f"v_lshrrev_b32 v26, 2, {vr(vLane)}"); I(f"v_lshlrev_b32 {vr(vQoff)}, 4, v26")
        I("v_and_b32 v26, 7, v25"); I(f"v_lshlrev_b32 {vr(vLoff)}, 2, v26")
        I("v_lshlrev_b32 v26, 4, v26"); I(f"v_lshl_add_u32 {vr(vOoff)}, v24, 7, v26")
        I(f"v_lshrrev_b32 v26, 2, {vr(vLane)}"); I("v_lshlrev_b32 v26, 7, v26")
        I(f"v_and_b32 v27, 3, {vr(vLane)}"); I("v_lshl_add_u32 v26, v27, 2, v26")
        I(f"s_lshl_b32 {sr(sT)}, {sr(sJ8)}, 4"); I(f"v_add_u32 {vr(vOpub)}, {sr(sT)}, v26")
        I(f"v_bfe_u32 v26, {vr(vLane)}, 2, 1"); I("v_lshlrev_b32 v27, 6, v26"); I(f"v_lshl_add_u32 {vr(vYpub)}, v24, 4, v27")
        I("v_lshlrev_b32 v27, 10, v26")
        I(f"v_and_b32 v28, 3, {vr(vLane)}"); I("v_lshl_add_u32 v27, v28, 3, v27")
        I(f"s_lshl_b32 {sr(sT)}, {sr(sR)}, 5"); I(f"v_add_u32 v30, {sr(sT)}, v27")
        I("v_lshlrev_b32 v26, 4, v26")
        I("v_lshrrev_b32 v27, 1, v28"); I("v_lshl_add_u32 v26, v27, 5, v26")
        I("v_and_b32 v27, 1, v28"); I("v_lshl_add_u32 v26, v27, 3, v26")
        I(f"s_lshl_b32 {sr(sT)}, {sr(sR)}, 6"); I(f"v_add_u32 {vr(vXpub)}, {sr(sT)}, v26")
        I("v_and_b32 v26, 1, v24"); I("v_lshlrev_b32 v26, 8, v26"); I("v_lshl_add_u32 v26, v25, 1, v26")
        I(f"s_lshl_b32 {sr(sT)}, {sr(sJ8)}, 5"); I(f"v_add_u32 {vr(vQpub)}, {sr(sT)}, v26")
        if self.profile:
            I(f"s_lshl_b32 {sr(sT)}, {sr(sWG)}, 2"); I(f"s_add_u32 {sr(sT)}, {sr(sT)}, {sr(sV)}"); I(f"s_lshl_b32 {sr(sT)}, {sr(sT)}, 10")
            I(f"s_add_u32 {sr(sT)}, {sr(sT)}, {PROF_OFF}"); I(f"v_add_u32 {vr(vStA)}, {sr(sT)}, {vr(vL4)}")
            I("s_memrealtime s[88:89]"); I("s_memtime s[90:91]"); I("s_waitcnt lgkmcnt(0)")
            I(f"v_mov_b32 {vr(vStD)}, s88"); I(f"v_writelane_b32 {vr(vStD)}, s90, 1")
            I(f"s_getreg_b32 {sr(sT)}, hwreg(HW_REG_HW_ID)"); I(f"v_writelane_b32 {vr(vStD)}, {sr(sT)}, 2")
            I("s_mov_b64 exec, 7")
            I(f"buffer_store_dword {vr(vStD)}, {vr(vStA)}, {sr(SRD['WS'],4)}, 0 offen offset:512")
            I("s_mov_b64 exec, -1")
        self.dbgtime(5, invert=True)
        if self.cfg.get("dbgtime"):
            l = self.newlab("DT")
            I(f"s_cmp_lg_u32 {sr(sV)}, 0"); I(f"s_cbranch_scc1 {l}")
            I(f"s_cmp_lg_u32 {sr(sWG)}, {self.cfg.get('dbgwg', 0)}"); I(f"s_cbranch_scc1 {l}")
            I("v_mov_b32 v77, 56"); I("s_mov_b64 exec, 1")
            I(f"global_store_dwordx2 v77, v[78:79], {sr(sDBG,2)}")
            I("s_mov_b64 exec, -1")
            self.label(l)
        self.vm("xold", f"buffer_load_dwordx2 v[{vXold}:{vXold+1}], v30, s[44:47], 0 offen")

    def layer(self, T, plan):
        I = self.I
        last = (T == "B")
        lg = (lambda n: 0) if self.profile else (lambda n: n)
        X, W, DQ, DS = 24, 40, 56, 60
        self.stamp("start")
        self.p1_site(lambda: plan("D0"))
        for k in range(4):
            for t in range(2):
                I(f"ds_read_b64_tr_b16 {vr(W+4*k+2*t,2)}, {vr(vL8w)} offset:{WQ_OFF[T] + k*1024 + t*512}")
        for i in range(16): I(f"v_mov_b32 {vr(X+i)}, 0x3f803f80")
        I(f"v_and_b32 v66, 15, {vr(vLane)}"); I(f"v_lshrrev_b32 v67, 4, {vr(vLane)}")
        I("v_lshlrev_b32 v64, 6, v66"); I("v_lshl_add_u32 v64, v67, 4, v64")
        I(f"s_mul_i32 {sr(sT)}, {sr(sV)}, 192"); I(f"s_add_u32 {sr(sT)}, {sr(sT)}, {QB}"); I(f"v_add_u32 v64, {sr(sT)}, v64")
        I(f"s_lshl_b32 {sr(sT)}, {sr(sV)}, 4"); I(f"s_add_u32 {sr(sT)}, {sr(sT)}, {SB}")
        I(f"v_lshlrev_b32 v65, 3, {vr(vLane)}"); I(f"v_add_u32 v65, {sr(sT)}, v65")
        I(f"v_add_u32 v68, {QB}, {vr(vL4)}")
        I("v_lshlrev_b32 v66, 2, v66"); I(f"v_add_u32 v66, {QB+128}, v66")
        I("v_and_b32 v67, 1, v67"); I("v_lshlrev_b32 v67, 3, v67"); I(f"v_add_u32 v67, {SB}, v67")
        def d_issue(track):
            I(f"s_mov_b64 exec, {sr(mJ2,2)}")
            for k in range(4):
                t = f"buffer_load_dwordx4 {vr(X+4*k,4)}, {vr(vXoff)}, {sr(SRD['XSRC'],4)}, 0 offen offset:{128*k} sc1"
                self.vm("pollD", t) if track else I(t)
            I("s_mov_b64 exec, -1")
        def chk16(base, extra=None, ta=69, tb=70, mask="exec"):
            def f():
                a, b = vr(ta), vr(tb)
                I(f"v_max3_u32 {a}, {vr(base)}, {vr(base+1)}, {vr(base+2)}")
                I(f"v_max3_u32 {b}, {vr(base+3)}, {vr(base+4)}, {vr(base+5)}")
                I(f"v_max3_u32 {a}, {a}, {vr(base+6)}, {vr(base+7)}")
                I(f"v_max3_u32 {b}, {b}, {vr(base+8)}, {vr(base+9)}")
                I(f"v_max3_u32 {a}, {a}, {vr(base+10)}, {vr(base+11)}")
                I(f"v_max3_u32 {b}, {b}, {vr(base+12)}, {vr(base+13)}")
                I(f"v_max3_u32 {a}, {a}, {vr(base+14)}, {vr(base+15)}")
                if extra is not None: I(f"v_max3_u32 {a}, {a}, {b}, {vr(extra)}")
                else: I(f"v_max_u32 {a}, {a}, {b}")
                I(f"v_cmp_eq_u32 vcc, -1, {a}")
                I(f"s_and_b64 vcc, vcc, {mask}")
            return f
        self.hop(d_issue, chk16(X), lambda iss, chk: plan("D", iss, chk))
        self.stamp("Dok")
        I("s_waitcnt lgkmcnt(0)")
        for k in range(4):
            c = "0" if k == 0 else vr(DQ, 4)
            I(f"v_mfma_f32_16x16x32_bf16 {vr(DQ,4)}, {vr(W+4*k,4)}, {vr(X+4*k,4)}, {c}")
            c = "0" if k == 0 else vr(DS, 4)
            I(f"v_mfma_f32_16x16x32_bf16 {vr(DS,4)}, {vr(X+4*k,4)}, {vr(X+4*k,4)}, {c}")
        I(f"v_cmp_eq_u32 vcc, 1, {vr(vLane)}")
        I(f"s_mov_b64 exec, {sr(mJ3,2)}")
        I(f"ds_write_b128 v64, {vr(DQ,4)}")
        I("s_mov_b64 exec, 3")
        I(f"v_cndmask_b32 {vr(DS)}, {vr(DS)}, {vr(DS+1)}, vcc")
        I(f"v_mov_b32 {vr(DS+1)}, {vr(DS+2)}")
        I(f"ds_write_b64 v65, v[{DS}:{DS+1}]")
        I("s_mov_b64 exec, -1")
        I("s_waitcnt lgkmcnt(0)")
        I("s_barrier")
        self.stamp("Qbar")
        lf = self.newlab("FQ")
        I(f"s_cmp_lg_u32 {sr(sV)}, 0"); I(f"s_cbranch_scc1 {lf}")
        I("ds_read2_b32 v[24:25], v68 offset0:0 offset1:48")
        I("ds_read2_b32 v[26:27], v68 offset0:96 offset1:144")
        I("ds_read2_b32 v[28:29], v66 offset0:0 offset1:48")
        I("ds_read2_b32 v[30:31], v66 offset0:96 offset1:144")
        for w in range(4): I(f"ds_read_b64 v[{32+2*w}:{33+2*w}], v67 offset:{16*w}")
        I("s_waitcnt lgkmcnt(0)")
        I("v_add_f32 v33, v33, v35"); I("v_add_f32 v37, v37, v39"); I("v_add_f32 v32, v32, v34"); I("v_add_f32 v36, v36, v38")
        I("v_add_f32 v24, v24, v25"); I("v_add_f32 v33, v33, v37"); I("v_add_f32 v26, v26, v27"); I("v_add_f32 v32, v32, v36")
        I(f"v_mul_f32 v33, {f2u(1/512):#x}, v33"); I("v_add_f32 v28, v28, v29")
        I(f"v_mul_f32 v32, {f2u(1/512):#x}, v32"); I("v_add_f32 v30, v30, v31")
        I("v_fma_f32 v32, -v33, v33, v32"); I("v_add_f32 v24, v24, v26")
        I("v_max_f32 v32, 0, v32"); I("v_add_f32 v28, v28, v30")
        I(f"v_add_f32 v32, {f2u(1e-5):#x}, v32")
        I("v_fma_f32 v24, -v33, v28, v24")
        I("v_rsq_f32 v32, v32")
        I("v_mul_f32 v24, v24, v32")
        I("v_mov_b32_dpp v25, v24 quad_perm:[1,1,3,3] row_mask:0xf bank_mask:0xf")
        I("v_cvt_pk_bf16_f32 v24, v24, v25")
        I("s_mov_b64 exec, 0x55555555")
        self.pub(lambda fl: f"buffer_store_dword v24, {vr(vQpub)}, {sr(SRD['WS'],4)}, {sr(sQpub)} offen {fl}")
        I("s_mov_b64 exec, -1")
        self.label(lf)
        self.stamp("Qpub")
        Q = 76
        def a_issue(track):
            t = f"buffer_load_dwordx4 {vr(Q,4)}, {vr(vQoff)}, {sr(SRD['WS'],4)}, {sr(sQpoll)} offen sc1"
            self.vm("pollA", t) if track else I(t)
        def a_check():
            I(f"v_max3_u32 v69, {vr(Q)}, {vr(Q+1)}, {vr(Q+2)}")
            I(f"v_max_u32 v69, v69, {vr(Q+3)}")
            I("v_cmp_eq_u32 vcc, -1, v69")
            I("s_and_b64 vcc, vcc, exec")
        self.hop(a_issue, a_check, lambda iss, chk: plan("A", iss, chk))
        self.stamp("Aok")
        S = 24; kb = KBASE[T]
        for cc in range(8):
            for u in range(2):
                for tl in range(4):
                    c = "0" if (cc == 0 and u == 0) else vr(S+4*tl, 4)
                    I(f"v_mfma_f32_4x4x4_16b_bf16 {vr(S+4*tl,4)}, {vr(Q+2*u,2)}, {ar(kb+32*tl+4*cc+2*u,2)}, {c} cbsz:3 abid:{cc}")
        VT = 40
        def vtemp_reads():
            for n in range(NVLDS):
                I(f"ds_read_b64_tr_b16 {vr(VT+4*n,2)}, {vr(vTrLo)} offset:{VL_OFF[T] + n*1024}")
                I(f"ds_read_b64_tr_b16 {vr(VT+4*n+2,2)}, {vr(vTrHi)} offset:{VL_OFF[T] + n*1024}")
        vtemp_reads()
        I(f"v_permlane32_swap_b32 {vr(S)}, {vr(S+4)}")
        I(f"v_permlane32_swap_b32 {vr(S+8)}, {vr(S+12)}")
        I(f"v_add_f32 {vr(S)}, {vr(S)}, {vr(S+4)}")
        I(f"v_add_f32 {vr(S+8)}, {vr(S+8)}, {vr(S+12)}")
        M_, TM = 25, 26
        I(f"v_max_f32 {vr(M_)}, {vr(S)}, {vr(S+8)}")
        for rr in (8, 4, 2, 1):
            I(f"v_max_f32_dpp {vr(M_)}, {vr(M_)}, {vr(M_)} row_ror:{rr} row_mask:0xf bank_mask:0xf")
        I(f"v_mov_b32 {vr(TM)}, {vr(M_)}"); I(f"v_permlane16_swap_b32 {vr(M_)}, {vr(TM)}"); I(f"v_max_f32 {vr(M_)}, {vr(M_)}, {vr(TM)}")
        I(f"v_mov_b32 {vr(TM)}, {vr(M_)}"); I(f"v_permlane32_swap_b32 {vr(M_)}, {vr(TM)}"); I(f"v_max_f32 {vr(M_)}, {vr(M_)}, {vr(TM)}")
        I(f"v_mul_f32 v36, {sr(sC)}, {vr(M_)}")
        I(f"v_fma_f32 {vr(S)}, {vr(S)}, {sr(sC)}, -v36")
        I(f"v_fma_f32 {vr(S+8)}, {vr(S+8)}, {sr(sC)}, -v36")
        I(f"v_exp_f32 {vr(S)}, {vr(S)}")
        I(f"v_exp_f32 {vr(S+8)}, {vr(S+8)}")
        P0, P1 = 34, 38
        I(f"v_mov_b32_dpp {vr(TM)}, {vr(S)} quad_perm:[1,1,3,3] row_mask:0xf bank_mask:0xf")
        I(f"v_mov_b32_dpp v27, {vr(S+8)} quad_perm:[1,1,3,3] row_mask:0xf bank_mask:0xf")
        I(f"v_cvt_pk_bf16_f32 {vr(P0)}, {vr(S)}, {vr(TM)}")
        I(f"v_cvt_pk_bf16_f32 {vr(P1)}, {vr(S+8)}, v27")
        I(f"v_add_f32 v33, {vr(S)}, {vr(S+8)}")
        I(f"v_mov_b32_dpp {vr(P0+1)}, {vr(P0)} quad_perm:[2,2,2,2] row_mask:0xf bank_mask:0xf")
        I(f"v_mov_b32_dpp {vr(P1+1)}, {vr(P1)} quad_perm:[2,2,2,2] row_mask:0xf bank_mask:0xf")
        self.stamp("SM")
        def pv_p1():
            I("s_waitcnt lgkmcnt(0)")
            plan("PV")
            vtemp_reads()
        self.p1_site(pv_p1)
        self.stamp("Vok")
        self.dbgtime(6 if T == "A" else 8)
        OL, OH = 28, 24
        lsum = [f"v_add_f32_dpp v33, v33, v33 row_ror:{rr} row_mask:0xf bank_mask:0xf" for rr in (8, 4, 2, 1)]
        lsum += ["v_mov_b32 v37, v33", "v_permlane16_swap_b32 v33, v37", "v_add_f32 v33, v33, v37",
                 "v_mov_b32 v37, v33", "v_permlane32_swap_b32 v33, v37", "v_add_f32 v37, v33, v37"]
        extra = [f"s_lshl_b32 {sr(sT)}, {sr(sV)}, 9", f"s_add_u32 {sr(sT)}, {sr(sT)}, {OB}"]
        first = True; cnt = 0
        for n in range(32):
            J, b = n >> 4, n & 15
            Pp = P0 if J == 0 else P1
            src = VBASE[T] + 4 * n if n < NVREG else VT + 4 * (n - NVREG)
            if n == NVREG: I("s_waitcnt lgkmcnt(0)")
            c = "0" if first else vr(OL, 4)
            I(f"v_mfma_f32_4x4x4_16b_bf16 {vr(OL,4)}, {vr(Pp,2)}, {vr(src,2)}, {c} cbsz:4 abid:{b}")
            c = "0" if first else vr(OH, 4)
            I(f"v_mfma_f32_4x4x4_16b_bf16 {vr(OH,4)}, {vr(Pp,2)}, {vr(src+2,2)}, {c} cbsz:4 abid:{b}")
            first = False
            if cnt % 2 == 0 and lsum and n >= 1: I(lsum.pop(0))
            else: I("s_nop 0")
            cnt += 1
        assert not lsum
        I(f"s_lshl_b32 {sr(sT)}, {sr(sV)}, 9"); I(f"s_add_u32 {sr(sT)}, {sr(sT)}, {OB}"); I(f"v_add_u32 v40, {sr(sT)}, {vr(vL4)}")
        I(f"s_lshl_b32 {sr(sT)}, {sr(sV)}, 3"); I(f"s_add_u32 {sr(sT)}, {sr(sT)}, {MB}"); I(f"v_mov_b32 v41, {sr(sT)}")
        I(f"ds_write_b32 v40, {vr(OL)}")
        I(f"ds_write_b32 v40, {vr(OH)} offset:256")
        I("s_mov_b64 exec, 1")
        I("ds_write_b64 v41, v[36:37]")
        I("s_mov_b64 exec, -1")
        I(f"v_lshlrev_b32 v42, 3, {vr(vLane)}"); I(f"v_add_u32 v42, {OB}, v42"); I(f"v_mov_b32 v43, {MB}")
        self.stamp("PV")
        self.p1_site(lambda: plan("B0"))
        I("s_waitcnt lgkmcnt(0)")
        I("s_barrier")
        self.stamp("Obar")
        W2 = 56
        for k in range(4):
            for t in range(2):
                I(f"ds_read_b64_tr_b16 {vr(W2+4*k+2*t,2)}, {vr(vWoRd)} offset:{WO_OFF[T] + k*4096 + t*512}")
        lc = self.newlab("CB")
        I(f"s_cmp_lg_u32 {sr(sV)}, 0"); I(f"s_cbranch_scc1 {lc}")
        I("ds_read_b128 v[24:27], v43"); I("ds_read_b128 v[28:31], v43 offset:16")
        for w in range(4): I(f"ds_read_b64 v[{32+2*w}:{33+2*w}], v42 offset:{512*w}")
        I(f"s_waitcnt lgkmcnt({lg(4)})")
        I("v_max3_f32 v44, v24, v26, v28"); I("v_max_f32 v44, v44, v30")
        I("v_sub_f32 v24, v24, v44"); I("v_sub_f32 v26, v26, v44"); I("v_sub_f32 v28, v28, v44"); I("v_sub_f32 v30, v30, v44")
        I("v_exp_f32 v24, v24"); I("v_exp_f32 v26, v26"); I("v_exp_f32 v28, v28"); I("v_exp_f32 v30, v30")
        I("v_mul_f32 v45, v24, v25"); I("v_fmac_f32 v45, v26, v27"); I("v_fmac_f32 v45, v28, v29"); I("v_fmac_f32 v45, v30, v31")
        I("s_waitcnt lgkmcnt(0)")
        I("v_rcp_f32 v46, v45")
        I("v_mul_f32 v48, v24, v32"); I("v_mul_f32 v49, v24, v33")
        I("v_fmac_f32 v48, v26, v34"); I("v_fmac_f32 v49, v26, v35")
        I("v_fmac_f32 v48, v28, v36"); I("v_fmac_f32 v49, v28, v37")
        I("v_fmac_f32 v48, v30, v38"); I("v_fmac_f32 v49, v30, v39")
        I("v_log_f32 v47, v45")
        I("v_mul_f32 v48, v48, v46"); I("v_mul_f32 v49, v49, v46")
        I("v_cvt_pk_bf16_f32 v48, v48, v49")
        I("v_add_f32 v47, v47, v44")
        I("v_mov_b32 v50, 0")
        lf2, le2 = self.newlab("PF"), self.newlab("PE")
        I(f"s_cmp_lg_u32 {sr(sFast)}, 0"); I(f"s_cbranch_scc1 {lf2}")
        I(f"buffer_store_dword v48, {vr(vOpub)}, {sr(SRD['WS'],4)}, {sr(sOpub)} offen sc1")
        I("s_mov_b64 exec, 1")
        I(f"buffer_store_dword v47, v50, {sr(SRD['WS'],4)}, {sr(sLpub)} offen sc1")
        I(f"s_branch {le2}")
        self.label(lf2)
        I(f"buffer_store_dword v48, {vr(vOpub)}, {sr(SRD['WS'],4)}, {sr(sOpub)} offen")
        I("s_mov_b64 exec, 1")
        I(f"buffer_store_dword v47, v50, {sr(SRD['WS'],4)}, {sr(sLpub)} offen")
        self.label(le2)
        I("s_mov_b64 exec, -1")
        self.label(lc)
        self.stamp("Opub")
        O_, LS = 24, 40
        def b_issue(track):
            I(f"s_mov_b64 exec, {sr(mJ8,2)}")
            for k in range(4):
                t = f"buffer_load_dwordx4 {vr(O_+4*k,4)}, {vr(vOoff)}, {sr(SRD['WS'],4)}, {sr(sOpoll)} offen offset:{512*k} sc1"
                self.vm("pollB", t) if track else I(t)
            t = f"buffer_load_dword {vr(LS)}, {vr(vLoff)}, {sr(SRD['WS'],4)}, {sr(sLpoll)} offen sc1"
            self.vm("pollB", t) if track else I(t)
            I("s_mov_b64 exec, -1")
        self.hop(b_issue, chk16(O_, LS, 46, 47, mask=sr(mJ8,2)), lambda iss, chk: plan("B", iss, chk))
        self.stamp("Bok")
        DY = 48
        I("s_waitcnt lgkmcnt(0)")
        for k in range(4):
            c = "0" if k == 0 else vr(DY, 4)
            I(f"v_mfma_f32_16x16x32_bf16 {vr(DY,4)}, {vr(W2+4*k,4)}, {vr(O_+4*k,4)}, {c}")
        I(f"v_mov_b32_dpp v41, {vr(LS)} quad_perm:[1,0,3,2] row_mask:0xf bank_mask:0xf")
        I(f"v_max_f32 v41, v41, {vr(LS)}")
        I("v_mov_b32_dpp v42, v41 quad_perm:[2,3,0,1] row_mask:0xf bank_mask:0xf")
        I("v_max_f32 v41, v41, v42")
        I(f"v_sub_f32 v41, {vr(LS)}, v41")
        I("v_exp_f32 v41, v41")
        I("v_add_f32_dpp v42, v41, v41 quad_perm:[1,0,3,2] row_mask:0xf bank_mask:0xf")
        I("v_add_f32_dpp v42, v42, v42 quad_perm:[2,3,0,1] row_mask:0xf bank_mask:0xf")
        I("v_rcp_f32 v42, v42")
        I("v_mul_f32 v41, v41, v42")
        for i in range(4): I(f"v_mul_f32 {vr(DY+i)}, {vr(DY+i)}, v41")
        for i in range(4): I(f"v_add_f32_dpp {vr(DY+i)}, {vr(DY+i)}, {vr(DY+i)} quad_perm:[1,0,3,2] row_mask:0xf bank_mask:0xf")
        for i in range(4): I(f"v_add_f32_dpp {vr(DY+i)}, {vr(DY+i)}, {vr(DY+i)} quad_perm:[2,3,0,1] row_mask:0xf bank_mask:0xf")
        I(f"s_mov_b64 exec, {sr(mJ04,2)}")
        I(f"buffer_store_dwordx4 {vr(DY,4)}, {vr(vYpub)}, {sr(SRD['WS'],4)}, {sr(sYpub)} offen sc1")
        I("s_mov_b64 exec, -1")
        self.stamp("Ypub")
        I(f"s_add_u32 {sr(sT)}, {sr(sLay)}, {sr(sXS)}")
        I(f"s_add_u32 s44, {sr(sWSlo)}, {sr(sT)}"); I(f"s_addc_u32 s45, {sr(sWShi)}, 0")
        I("s_mov_b32 s48, s44"); I("s_mov_b32 s49, s45"); I("s_mov_b32 s50, 2048")
        if last:
            I(f"s_cmp_eq_u32 {sr(sPass)}, 1")
            I(f"s_cselect_b32 s48, {sr(sOUT)}, s48"); I(f"s_cselect_b32 s49, {sr(sOUT+1)}, s49")
            I(f"s_cselect_b32 {sr(sT)}, {sr(sG)}, 0")
            I(f"s_cmp_eq_u32 {sr(sT)}, 0")
            I("s_cselect_b32 s50, 2048, 0")
            I(f"v_bfe_u32 v52, {vr(vLane)}, 2, 1"); I("v_lshlrev_b32 v52, 10, v52")
            I(f"v_and_b32 v53, 3, {vr(vLane)}"); I("v_lshl_add_u32 v52, v53, 3, v52")
            I(f"s_lshl_b32 {sr(sT)}, {sr(sR)}, 5"); I(f"v_add_u32 v52, {sr(sT)}, v52")
            I(f"s_cmp_eq_u32 {sr(sPass)}, 1"); I("s_cselect_b64 vcc, -1, 0")
            I(f"v_cndmask_b32 v52, {vr(vXpub)}, v52, vcc")
        lx = self.newlab("CX"); lnz = self.newlab("CNZ")
        I(f"s_cmp_lg_u32 {sr(sV)}, 0"); I(f"s_cbranch_scc1 {lnz}")
        Y = 24
        def c_issue(track):
            for i in range(4):
                t = f"buffer_load_dwordx4 {vr(Y+4*i,4)}, {vr(vL16)}, {sr(SRD['WS'],4)}, {sr(sYpoll)} offen offset:{1024*i} sc1"
                self.vm("pollC", t) if track else I(t)
        st_before = self.state()
        self.hop(c_issue, chk16(Y), lambda iss, chk: plan("C", iss, chk))
        self.stamp("Cok")
        for i in range(4): I(f"v_add_f32 {vr(Y+i)}, {vr(Y+i)}, {vr(Y+4+i)}")
        for i in range(4): I(f"v_add_f32 {vr(Y+8+i)}, {vr(Y+8+i)}, {vr(Y+12+i)}")
        for i in range(4): I(f"v_add_f32 {vr(Y+i)}, {vr(Y+i)}, {vr(Y+8+i)}")
        for i in range(4): I(f"v_add_f32_dpp {vr(Y+i)}, {vr(Y+i)}, {vr(Y+i)} row_ror:8 row_mask:0xf bank_mask:0xf")
        for i in range(4): I(f"v_mov_b32 v{32+i}, {vr(Y+i)}")
        for i in range(4): I(f"v_permlane16_swap_b32 {vr(Y+i)}, v{32+i}")
        for i in range(4): I(f"v_add_f32 {vr(Y+i)}, {vr(Y+i)}, v{32+i}")
        for i in range(4): I(f"v_mov_b32 v{32+i}, {vr(Y+i)}")
        for i in range(4): I(f"v_permlane32_swap_b32 {vr(Y+i)}, v{32+i}")
        for i in range(4): I(f"v_add_f32 {vr(Y+i)}, {vr(Y+i)}, v{32+i}")
        I(f"v_cvt_pk_bf16_f32 v32, {vr(Y)}, {vr(Y+1)}"); I(f"v_cvt_pk_bf16_f32 v33, {vr(Y+2)}, {vr(Y+3)}")
        I("v_lshlrev_b32 v34, 16, v32"); I("v_and_b32 v35, 0xffff0000, v32"); I("v_lshlrev_b32 v36, 16, v33"); I("v_and_b32 v37, 0xffff0000, v33")
        for i in range(4): I(f"v_add_f32 v{34+i}, v{34+i}, {vr(vXold+i)}")
        I("v_cvt_pk_bf16_f32 v32, v34, v35"); I("v_cvt_pk_bf16_f32 v33, v36, v37")
        I("s_mov_b64 exec, 0xff")
        self.pub(lambda fl: f"buffer_store_dwordx2 v[32:33], {vr(52 if last else vXpub)}, {sr(SRD['XDST'],4)}, 0 offen {fl}")
        I("s_mov_b64 exec, -1")
        I(f"v_lshlrev_b32 {vr(vXold)}, 16, v32"); I(f"v_and_b32 {vr(vXold+1)}, 0xffff0000, v32")
        I(f"v_lshlrev_b32 {vr(vXold+2)}, 16, v33"); I(f"v_and_b32 {vr(vXold+3)}, 0xffff0000, v33")
        self.stamp("Xpub")
        self.dbgtime(7 if T == "A" else 9)
        I(f"s_branch {lx}")
        st_after = self.state()
        self.label(lnz)
        self.set_state(st_before)
        self.p1_site(lambda: plan("C", None, None))
        assert self.state()[1:] == st_after[1:], (self.state()[1:], st_after[1:])
        self.label(lx)
        for s_ in (sLay, sQpub, sQpoll, sOpub, sLpub, sOpoll, sLpoll, sYpub, sYpoll):
            I(f"s_add_u32 {sr(s_)}, {sr(s_)}, {LAYER_STRIDE}")
        self.flush_stamps(T)

    def build(self, plan_factory):
        self.build_items()
        self.prologue()
        plan = plan_factory(self)
        self.label("L_LOOP")
        self.layer("A", lambda site, iss=None, chk=None: plan("A", site, iss, chk))
        self.layer("B", lambda site, iss=None, chk=None: plan("B", site, iss, chk))
        assert self.next_item == len(self.items), (self.next_item, len(self.items))
        assert self.kdone == {"A": 4, "B": 4} and self.vdone == {"A": NVREG, "B": NVREG}
        self.I(f"s_add_u32 {sr(sPass)}, {sr(sPass)}, 1")
        self.I(f"s_cmp_lt_u32 {sr(sPass)}, 2")
        self.I("s_cbranch_scc1 L_LOOP")
        if self.profile:
            self.I("s_memrealtime s[88:89]"); self.I("s_memtime s[90:91]"); self.I("s_waitcnt lgkmcnt(0)")
            self.I(f"v_mov_b32 {vr(vStD)}, s88"); self.I(f"v_writelane_b32 {vr(vStD)}, s90, 1")
            self.I("s_mov_b64 exec, 3")
            self.I(f"buffer_store_dword {vr(vStD)}, {vr(vStA)}, {sr(SRD['WS'],4)}, 0 offen offset:768")
            self.I("s_mov_b64 exec, -1")
        if self.cfg.get("diag_delay"):
            self.I(f"s_mov_b32 {sr(sCnt)}, 0")
            self.label("L_DLY")
            for _ in range(16): self.I("s_nop 15")
            self.I(f"s_add_u32 {sr(sCnt)}, {sr(sCnt)}, 1"); self.I(f"s_cmp_lt_u32 {sr(sCnt)}, {self.cfg['diag_delay']}"); self.I("s_cbranch_scc1 L_DLY")
        self.dbgtime(4)
        self.label("L_END")
        self.I("s_endpgm")
        hdr = [f"; @launch grid=(256,1,1) block=(256,1,1) lds={LDS_BYTES}", '.amdgcn_target "amdgcn-amd-amdhsa--gfx950"',
               ".text", f".globl {KNAME}", ".p2align 8", f".type {KNAME},@function", f"{KNAME}:"]
        tail = ['.section .rodata,"a"', ".p2align 6", f".amdhsa_kernel {KNAME}",
                "  .amdhsa_next_free_vgpr 512", "  .amdhsa_next_free_sgpr 102", "  .amdhsa_accum_offset 256",
                "  .amdhsa_group_segment_fixed_size 0", "  .amdhsa_kernarg_size 104", "  .amdhsa_user_sgpr_count 2",
                "  .amdhsa_user_sgpr_kernarg_segment_ptr 1", "  .amdhsa_system_sgpr_workgroup_id_x 1",
                "  .amdhsa_float_denorm_mode_32 3", ".end_amdhsa_kernel"]
        return "\n".join(hdr + self.main.lines + self.ool.lines + tail) + "\n"

def startup_check(G):
    I = G.I
    l = G.newlab("SC"); lp = G.newlab("SCL"); dn = G.newlab("SCD")
    I(f"s_cmp_lg_u32 {sr(sV)}, 0"); I(f"s_cbranch_scc1 {l}")
    I(f"v_lshrrev_b32 v72, 1, {vr(vLane)}"); I("v_lshlrev_b32 v72, 6, v72")
    I(f"v_and_b32 v73, 1, {vr(vLane)}"); I("v_lshl_add_u32 v72, v73, 3, v72")
    I(f"s_mov_b32 {sr(sCnt)}, 0")
    I("s_mov_b64 exec, 0xff")
    G.label(lp)
    I(f"global_load_dwordx2 v[74:75], v72, {sr(sDBG,2)} sc1")
    I("s_waitcnt vmcnt(0)")
    I("v_sad_u8 v73, v74, 0, 0"); I("v_sad_u8 v73, v75, 0, v73")
    I("v_cmp_ne_u32 vcc, 32, v73")
    I(f"s_cbranch_vccz {dn}")
    I(f"s_add_u32 {sr(sCnt)}, {sr(sCnt)}, 1")
    I(f"s_cmp_lt_u32 {sr(sCnt)}, {G.cfg.get('spin', 40000)}")
    I(f"s_cbranch_scc1 {lp}")
    G.label(dn)
    I(f"v_readlane_b32 {sr(sT2)}, v74, {sr(sG)}")
    I(f"v_readlane_b32 {sr(sT3)}, v75, {sr(sG)}")
    I("s_mov_b64 exec, -1")
    I(f"s_lshl_b32 {sr(sT)}, {sr(sXcc)}, 3")
    I(f"s_lshr_b64 s[{sT2}:{sT3}], s[{sT2}:{sT3}], {sr(sT)}")
    I(f"s_and_b32 {sr(sT2)}, {sr(sT2)}, 0xff")
    I(f"s_cmp_eq_u32 {sr(sT2)}, 32")
    I(f"s_cselect_b32 {sr(sFast)}, {0 if G.cfg.get('force_slow') else 1}, 0")
    G.label(l)

def make_plan(G):
    c = G.cfg
    d1 = c.get("d1", 24)
    allW = lambda m, T: all(G.landed(("W", m, T, k)) for k in range(4))
    def hop_p1(tag, iss, chk, name, dflt):
        pre, low, n, ch = c.get(name, dflt)
        G.bg(pre, depth=c.get("d2", 10), allow=(() if name == "hC" else ("K", "V")))
        G.wait_out(low) if iss is not None else None
        if iss is None:
            for _ in range(n): G.step(ch, depth=c.get("d2", 10), allow=())
        else:
            G.attempts(tag, iss, chk, n, ch)
    def plan(T, site, iss=None, chk=None):
        I = G.I
        if T == "A":
            if site == "D0":
                G.bg_until(lambda: allW("q", "A"), depth=d1, allow=())
            elif site == "D":
                I(f"v_lshrrev_b32 v72, 4, {vr(vLane)}"); I(f"v_and_b32 v73, 1, {vr(vLane)}")
                I("v_lshlrev_b32 v73, 10, v73"); I("v_lshl_add_u32 v72, v72, 4, v73")
                I(f"s_lshl_b32 {sr(sT)}, {sr(sV)}, 8"); I(f"v_add_u32 v72, {sr(sT)}, v72")
                I(f"s_mov_b64 exec, {sr(mJ2,2)}")
                for k in range(4):
                    G.vm("pollD", f"buffer_load_dwordx4 {vr(24+4*k,4)}, v72, {sr(SRD['XSRC'],4)}, 0 offen offset:{64*k}")
                I("s_mov_b64 exec, -1")
                G.issue(c.get("dA_after", 8))
                G.need("pollD"); G.need("xold")
                I(f"v_and_b32 {vr(vXold+3)}, 0xffff0000, {vr(vXold+1)}"); I(f"v_lshlrev_b32 {vr(vXold+2)}, 16, {vr(vXold+1)}")
                I(f"v_and_b32 {vr(vXold+1)}, 0xffff0000, {vr(vXold)}"); I(f"v_lshlrev_b32 {vr(vXold)}, 16, {vr(vXold)}")
                startup_check(G)
                G.relayout_ready()
            elif site == "A":
                G.bg_until(lambda: G.kdone["A"] >= 3, depth=d1)
                G.attempts("pollA", iss, chk, 1, c.get("aA_after", 8))
                G.bg_until(lambda: G.kdone["A"] == 4, depth=d1)
            elif site == "PV":
                G.bg_until(lambda: G.issued(("V", "A", 31)), depth=d1)
                G.bg_until(lambda: G.vdone["A"] == NVREG and G.landed(("V", "A", 31)), depth=c.get("d2", 10))
            elif site == "B0":
                G.bg_until(lambda: allW("o", "A"), depth=c.get("d2", 10))
            elif site == "B": hop_p1("pollB", iss, chk, "hB", [1, 4, 2, 4])
            elif site == "C": hop_p1("pollC", iss, chk, "hC", [1, 4, 3, 4])
        else:
            if site == "D0":
                G.bg_until(lambda: allW("q", "B"), depth=c.get("d2", 10))
            elif site == "D": hop_p1("pollD", iss, chk, "hD", [0, 4, 3, 4])
            elif site == "A":
                hop_p1("pollA", iss, chk, "hA", [0, 4, 3, 4])
                G.bg_until(lambda: G.kdone["B"] == 4, depth=d1)
            elif site == "PV":
                G.bg_until(lambda: G.vdone["B"] == NVREG and G.landed(("V", "B", 31)) and G.next_item == len(G.items), depth=d1)
            elif site == "B0":
                G.bg_until(lambda: allW("o", "B"))
            elif site == "B": G.need("pollB")
            elif site == "C":
                if iss: G.need("pollC")
    return plan

def generate(cfg):
    G = Gen(cfg)
    return G.build(make_plan), G

if __name__ == "__main__":
    cfg = json.loads(sys.argv[2]) if len(sys.argv) > 2 else {}
    txt, G = generate(cfg)
    open(sys.argv[1], "w").write(txt)
    if cfg.get("profile"): json.dump(cfg.get("stamps", []), open(sys.argv[1] + ".stamps.json", "w"))
    print("lines", txt.count("\n"), "bytes", len(txt), "items", [ (i, it) for i, it in enumerate(G.items) if it[0] == "W"])
```

```python
import re

REG_RE = re.compile(r'(?<![\w.])([vas])(?:(\d+)|\[(\d+):(\d+)\])(?![\w])')
TRANS = ("v_exp_f32", "v_log_f32", "v_rcp_f32", "v_rsq_f32", "v_sqrt_f32", "v_sin_f32", "v_cos_f32", "v_rcp_iflag_f32")

def regs_of(tok):
    tok = tok.strip()
    out = []
    neg = tok.lstrip('-')
    if neg.startswith('abs(') : neg = neg[4:-1]
    if neg.startswith('|'): neg = neg.strip('|')
    if neg in ("vcc", "vcc_lo", "vcc_hi"): return [("s", "vcc")]
    if neg in ("exec", "exec_lo", "exec_hi"): return [("s", "exec")]
    if neg == "m0": return [("s", "m0")]
    m = REG_RE.fullmatch(neg)
    if m:
        k = m.group(1)
        if m.group(2) is not None: return [(k, int(m.group(2)))]
        return [(k, i) for i in range(int(m.group(3)), int(m.group(4)) + 1)]
    return out

class Ins:
    __slots__ = ("text", "op", "kind", "w", "r", "passes", "dpp", "trans", "storedata", "srcc", "states")
    def __init__(self, text):
        self.text = text
        t = text.split(";")[0].strip()
        parts = t.split(None, 1)
        op = parts[0]; self.op = op
        rest = parts[1] if len(parts) > 1 else ""
        ops = []; depth = 0; cur = ""
        for ch in rest:
            if ch == '[': depth += 1
            if ch == ']': depth -= 1
            if ch == ',' and depth == 0: ops.append(cur.strip()); cur = ""
            else: cur += ch
        if cur.strip(): ops.append(cur.strip())
        mods = ""
        if ops:
            sp = ops[-1].split(None, 1)
            ops[-1] = sp[0]
            if len(sp) > 1: mods = sp[1]
        self.w = set(); self.r = set(); self.passes = 0; self.dpp = False; self.trans = False
        self.storedata = set(); self.srcc = set(); self.states = 1
        R = [regs_of(o) for o in ops]
        def allr(lst):
            s = set()
            for x in lst: s.update(x)
            return s
        if op == "s_nop":
            self.kind = "nop"; self.states = int(ops[0], 0) + 1
        elif op.startswith("v_mfma"):
            self.kind = "mfma"
            self.passes = 2 if "4x4x4" in op else (4 if "16x16x32" in op else (8 if "32x32x16" in op else None))
            assert self.passes, op
            self.w = set(R[0]); self.r = allr(R[1:]); self.srcc = set(R[3])
        elif op.startswith("v_"):
            self.kind = "valu"
            self.trans = op.replace("_e32", "").replace("_e64", "") in TRANS
            self.dpp = ("quad_perm" in mods or "row_" in mods or "_dpp" in op)
            if op.startswith("v_cmp"):
                self.w = set(R[0]); self.r = allr(R[1:])
                if op.startswith("v_cmpx"): self.w.add(("s", "exec"))
            elif op.startswith("v_permlane") and "swap" in op:
                self.w = allr(R[:2]); self.r = allr(R[:2])
            elif op.startswith("v_readfirstlane") or op.startswith("v_readlane"):
                self.w = set(R[0]); self.r = allr(R[1:])
            else:
                self.w = set(R[0]); self.r = allr(R[1:])
                if op.startswith(("v_fmac", "v_mac", "v_dot2c", "v_writelane")) or self.dpp: self.r.update(R[0])
                if op.startswith(("v_add_co", "v_sub_co", "v_addc_co", "v_subb_co")):
                    self.w.update(R[1]);
                if op.startswith("v_cndmask") and len(ops) == 3: self.r.add(("s", "vcc"))
        elif op.startswith("ds_"):
            self.kind = "ds"
            if op.startswith(("ds_read", "ds_bpermute", "ds_permute", "ds_swizzle")):
                self.w = set(R[0]); self.r = allr(R[1:])
            else:
                self.r = allr(R)
        elif op.startswith(("buffer_", "global_")):
            self.kind = "vmem"
            islds = " lds" in (" " + mods) or mods.startswith("lds")
            if op.startswith("buffer_load") or op.startswith("global_load"):
                if islds: self.r = allr(R); self.r.add(("s", "m0lds"))
                else: self.w = set(R[0]); self.r = allr(R[1:])
            elif op in ("buffer_inv", "buffer_wbl2"):
                pass
            else:
                self.r = allr(R)
                if op.startswith("buffer_store") and ("x4" in op or "x3" in op): self.storedata = set(R[0])
                if op.startswith("global_store") and ("x4" in op or "x3" in op): self.storedata = set(R[1])
                if "atomic" in op and " sc0" in (" " + mods): self.w = set(R[0])
        elif op.startswith("s_"):
            self.kind = "salu"
            if op.startswith(("s_cmp", "s_cbranch", "s_branch", "s_waitcnt", "s_barrier", "s_endpgm", "s_sleep", "s_setprio", "s_bitcmp")):
                self.r = allr(R)
            else:
                self.w = set(R[0]) if R else set(); self.r = allr(R[1:])
                if "saveexec" in op: self.w.add(("s", "exec")); self.r.add(("s", "exec"))
        else:
            raise ValueError("unknown instr: " + text)

def need_states(prev, cur):
    n = 0
    vw = {x for x in prev.w if x[0] in "va"}
    sw = {x for x in prev.w if x[0] == "s"}
    if prev.kind == "mfma":
        ov_r = vw & cur.r; ov_w = vw & cur.w
        if cur.kind == "mfma":
            if vw & cur.srcc:
                if vw == cur.srcc and prev.passes == cur.passes: n = max(n, 2 if prev.passes == 2 else 0)
                else: n = max(n, {2: 4, 4: 6, 8: 10}[prev.passes])
            if vw & (cur.r - cur.srcc) or (vw & cur.srcc & (cur.r - cur.srcc)):
                n = max(n, {2: 5, 4: 8, 8: 12}[prev.passes])
        elif ov_r or ov_w:
            n = max(n, {2: 5, 4: 8, 8: 12}[prev.passes])
        if cur.kind == "valu" and (prev.srcc & cur.w):
            n = max(n, {2: 1, 4: 3, 8: 7}[prev.passes])
    if prev.kind == "valu":
        if cur.kind == "mfma" and (vw & cur.r): n = max(n, 2)
        if cur.kind == "valu":
            if cur.dpp and (vw & cur.r): n = max(n, 2)
            if cur.op.startswith("v_permlane") and (vw & cur.r): n = max(n, 2)
            if prev.trans and (vw & cur.r): n = max(n, 1)
            if cur.op.startswith(("v_readfirstlane", "v_readlane")) and (vw & cur.r): n = max(n, 1)
            if sw & cur.r:
                n = max(n, 4 if cur.op.startswith(("v_readlane", "v_writelane")) else 2)
            if ("s", "exec") in prev.w and cur.dpp: n = max(n, 5)
        if cur.kind == "vmem" and (sw & cur.r): n = max(n, 5)
        if cur.kind == "mfma" and ("s", "exec") in prev.w: n = max(n, 4)
    if prev.kind == "salu" and ("s", "m0") in prev.w and ("s", "m0lds") in cur.r: n = max(n, 1)
    if prev.storedata and (prev.storedata & cur.w):
        n = max(n, 2 if cur.kind == "valu" else 1)
    return n

class Stream:
    def __init__(self):
        self.lines = []
        self.hists = [[]]
        self.snap = {}
    @property
    def hist(self): return self.hists[0]
    @hist.setter
    def hist(self, h): self.hists = [list(h)]
    def raw(self, s): self.lines.append(s)
    def label(self, name):
        self.lines.append(name + ":")
        for h in self.snap.get(name, []):
            self.hists.append(list(h))
    def peek(self, text):
        c = Ins(text); need = 0
        for hist in self.hists:
            dist = 0
            for p in reversed(hist):
                req = need_states(p, c)
                if req - dist > need: need = req - dist
                dist += p.states
                if dist >= 16: break
        return need
    def ins(self, text):
        c = Ins(text)
        if c.kind != "nop":
            need = 0
            for hist in self.hists:
                dist = 0
                for p in reversed(hist):
                    req = need_states(p, c)
                    if req - dist > need: need = req - dist
                    dist += p.states
                    if dist >= 16: break
            while need > 0:
                k = min(need, 8)
                self.lines.append(f"s_nop {k-1}")
                n = Ins(f"s_nop {k-1}")
                for h in self.hists: h.append(n)
                need -= k
        self.lines.append(text)
        for h in self.hists: h.append(c)
        newh = []
        for i, h in enumerate(self.hists):
            if len(h) > 40: del h[:-24]
            newh.append(h)
        if len(newh) > 1:
            keep = [newh[0]]
            for h in newh[1:]:
                if len(h) >= 20 and len(newh[0]) >= 20 and all(a is b for a, b in zip(h[-20:], newh[0][-20:])): continue
                keep.append(h)
            newh = keep
        self.hists = newh
        if c.op.startswith(("s_cbranch", "s_branch")):
            tgt = text.split()[1]
            self.snap.setdefault(tgt, []).extend([list(h[-24:]) for h in self.hists])
```

```python
import struct, sys, json
from emit import Stream, Ins

KNAME = "interleave_layers__sliding_block_cached__sliding_block_cached__decode_kernel"
def f2u(x): return struct.unpack("<I", struct.pack("<f", x))[0]

LAYER_STRIDE = 0x80000
XS_OFF   = 0x00000
LSE_OFF  = 0x04000
ST_OFF   = 0x04800
CS_OFF   = 0x08000
OS_OFF   = 0x18000
YS_OFF   = 0x28000
QS_OFF   = 0x48000
SLOT_BYTES = 4 * LAYER_STRIDE
PROF_OFF = 0x200000
WS_SRD_BYTES = 0x300000
WAVE_BLK = 23552
VL_OFF = {"A": 0, "B": 10240}
STG_OFF = 20480
KST_OFF = VL_OFF["B"]
W_BASE = 4 * WAVE_BLK
WQ_IMG, WO_IMG, W_T = 0, 16384, 32768
COMMON = W_BASE + 65536
OB, MB, CSB = COMMON + 0, COMMON + 2048, COMMON + 2112
LDS_BYTES = 163840
NVREG = 22
NVLDS = 32 - NVREG
sWG, sV, sL, sLay, sFast, sT = 2, 3, 4, 5, 6, 7
SRD = {"KA": 8, "VA": 12, "KB": 16, "VB": 20, "WqA": 24, "WoA": 28, "WqB": 32, "WoB": 36, "WS": 40, "XSRC": 44, "XDST": 48}
sDBG, sOUT = 52, 54
sG, sR, sH, sJ8 = 56, 57, 58, 59
sQs, sQpoll, sOs, sLpub, sStpoll, sLpoll, sYpub, sYpoll = 60, 61, 62, 63, 64, 65, 66, 67
mJ2, mI0, mJ04 = 68, 70, 72
sWB, sCnt, sT2, sT3 = 74, 75, 76, 77
sWqB0, sWoB0 = 78, 79
sC, sXS, sWM0, sKV = 80, 81, 82, 83
sXcc, sWd = 84, 85
sK = 84
sWSlo, sWShi = 86, 87
mI1, mStat = 88, 90
sStpub, sCsd = 92, 93
STAMP0 = 94
STAMPS = [94, 96, 98, 0]
FLG_OFF = 2080
HOP_OFF = 2084
mJ8 = 100
vLane, vL16, vWRd, vTrLo, vTrHi, vXoff, vSoff, vOoff, vLoff, vXpub, vQpub, vL4 = range(12)
vXold = 12
vVswz, vWoffQ, vWoffO = 16, 17, 18
vStD, vStA = 19, 20
vCsRd, vYpub, vOpub = 21, 22, 23
KBASE = {"A": 0, "B": 128}
VBASE = {"A": 80, "B": 168}
SCR = 72

def vr(a, n=1): return f"v{a}" if n == 1 else f"v[{a}:{a+n-1}]"
def ar(a, n=1): return f"a{a}" if n == 1 else f"a[{a}:{a+n-1}]"
def sr(a, n=1): return f"s{a}" if n == 1 else f"s[{a}:{a+n-1}]"
DPP = "row_mask:0xf bank_mask:0xf"

class Null:
    hists = [[]]
    def ins(self, t): pass
    def label(self, n): pass
    def peek(self, t): return 0

class Gen:
    def __init__(self, cfg):
        self.cfg = cfg
        self.main = Stream(); self.ool = Stream(); self.ool.snap = self.main.snap
        self.null = Null()
        self.line = self.main
        self.cur = self.main
        self.vmq = []; self.nlab = 0
        self.items = []; self.next_item = 0
        self.kdone = {"A": 0, "B": 0}; self.vdone = {"A": 0, "B": 0}
        self.site_hist = {}
        self.T = "A"
        self.profile = cfg.get("profile", False)
        self.kvflags = cfg.get("kvflags", "nt"); self.wflags = cfg.get("wflags", "nt")
        self.depth = cfg.get("depth", 8)
    def I(self, t):
        for line in t.split("\n"):
            line = line.strip()
            if line: self.cur.ins(line)
    def label(self, n): self.cur.label(n)
    def slot(self, fill):
        if fill and self.cur.peek(fill[0]) == 0:
            self.I(fill.pop(0)); return True
        return False
    def newlab(self, p):
        self.nlab += 1
        return f"{p}_{self.nlab}"
    def vm(self, tag, t):
        self.I(t); self.vmq.append(tag)
    def enter(self, cls): self.set_state(self.cst[cls])
    def leave(self, cls): self.cst[cls] = self.state()
    def need(self, tag):
        idx = [i for i, x in enumerate(self.vmq) if x == tag]
        if not idx: return
        n = len(self.vmq) - 1 - idx[-1]
        assert n <= 63
        self.I(f"s_waitcnt vmcnt({n})")
        self.vmq = self.vmq[idx[-1] + 1:]
    def wait_out(self, n):
        if len(self.vmq) > n:
            self.I(f"s_waitcnt vmcnt({n})")
            self.vmq = self.vmq[len(self.vmq) - n:] if n else []
    def issued(self, item): return item in self.items[:self.next_item]
    def landed(self, item): return self.issued(item) and item not in self.vmq
    def state(self): return (list(self.vmq), self.next_item, dict(self.kdone), dict(self.vdone))
    def set_state(self, s): self.vmq, self.next_item, self.kdone, self.vdone = list(s[0]), s[1], dict(s[2]), dict(s[3])
    def stamp(self, key):
        if not self.profile: return
        sel = self.cfg.get("stamps", [])
        if key in sel:
            k = sel.index(key)
            self.I(f"s_memtime s[{STAMPS[k]}:{STAMPS[k]+1}]")
    def flush_stamps(self):
        if not self.profile: return
        sel = self.cfg.get("stamps", [])
        self.I("s_waitcnt lgkmcnt(0)")
        for k in range(len(sel)):
            self.I(f"v_writelane_b32 {vr(vStD)}, s{STAMPS[k]}, {k}")
        self.I(f"s_lshl_b32 {sr(sT3)}, {sr(sL)}, 5")
        self.I("s_mov_b64 exec, 0x7f")
        self.I(f"buffer_store_dword {vr(vStD)}, {vr(vStA)}, {sr(SRD['WS'],4)}, {sr(sT3)} offen")
        self.I("s_mov_b64 exec, -1")
    def build_items(self):
        def inter(main, extra, first, every):
            out = []; ex = list(extra); pos = first
            for i, x in enumerate(main):
                if ex and i == pos:
                    out.append(ex.pop(0)); pos += every
                out.append(x)
            return out + ex
        c = self.cfg
        KV = lambda k, T: [(k, T, n) for n in range(32)]
        W = lambda m, T: [("W", m, T, k) for k in range(4)]
        it = W("q", "A") + KV("K", "A")
        it += inter(inter(KV("V", "A"), W("o", "A"), c.get("woa_first", 4), c.get("woa_every", 3)), W("q", "B"), c.get("wqb_first", 18), c.get("wqb_every", 3))
        it += KV("K", "B")
        it += inter(KV("V", "B"), W("o", "B"), c.get("wob_first", 4), c.get("wob_every", 4))
        self.items = it
    def emit_item(self, it):
        if it[0] == "K":
            _, T, n = it
            self.I(f"s_mov_b32 {sr(sT)}, {n*4096}")
            self.vm(it, f"buffer_load_dwordx4 {ar(KBASE[T]+4*n,4)}, {vr(vL16)}, {sr(SRD['K'+T],4)}, {sr(sT)} offen {self.kvflags}")
        elif it[0] == "V":
            _, T, n = it
            self.I(f"s_mov_b32 {sr(sT)}, {n*4096}")
            if n < NVREG:
                self.vm(it, f"buffer_load_dwordx4 {vr(VBASE[T]+4*n,4)}, {vr(vL16)}, {sr(SRD['V'+T],4)}, {sr(sT)} offen {self.kvflags}")
            else:
                if T == "B": assert self.kdone["B"] == 4, "VB LDS DMA before KB relayout finished"
                self.I(f"s_add_u32 m0, {sr(sWB)}, {VL_OFF[T] + (n-NVREG)*1024}")
                self.vm(it, f"buffer_load_dwordx4 {vr(vVswz)}, {sr(SRD['V'+T],4)}, {sr(sT)} offen {self.kvflags} lds")
        else:
            _, m, T, k = it
            img = (W_T if T == "B" else 0) + (WQ_IMG if m == "q" else WO_IMG)
            if m == "q":
                self.I(f"s_add_u32 {sr(sT)}, {sr(sWqB0)}, {k*8*8192}")
                self.I(f"s_add_u32 m0, {sr(sWM0)}, {img + k*1024}")
                self.vm(it, f"buffer_load_dwordx4 {vr(vWoffQ)}, {sr(SRD['Wq'+T],4)}, {sr(sT)} offen {self.wflags} lds")
            else:
                self.I(f"s_add_u32 {sr(sT)}, {sr(sWoB0)}, {k*8*1024}")
                self.I(f"s_add_u32 m0, {sr(sWM0)}, {img + k*1024}")
                self.vm(it, f"buffer_load_dwordx4 {vr(vWoffO)}, {sr(SRD['Wo'+T],4)}, {sr(sT)} offen {self.wflags} lds")
    def can_issue(self, it):
        if it[0] == "V" and it[1] == "B" and it[2] >= NVREG: return self.kdone["B"] == 4
        return True
    def issue(self, cnt):
        out = []
        for _ in range(cnt):
            if self.next_item >= len(self.items): break
            it = self.items[self.next_item]
            if not self.can_issue(it): break
            self.next_item += 1
            self.emit_item(it); out.append(it)
        return out
    def relayout_ready(self, allow=("K", "V")):
        prog = True
        while prog:
            prog = False
            for T in "AB":
                if "K" in allow and self.kdone[T] < 4:
                    t = self.kdone[T]
                    if all(self.landed(("K", T, 8*t+i)) for i in range(8)):
                        self.k_relayout(T, t); prog = True
                if "V" in allow and self.vdone[T] < NVREG:
                    n0 = self.vdone[T]; grp = list(range(n0, min(n0 + 3, NVREG)))
                    if all(self.landed(("V", T, n)) for n in grp):
                        self.v_relayout(T, grp); prog = True
    def step(self, chunk=4, depth=None, allow=("K", "V")):
        depth = depth or self.depth
        self.wait_out(max(depth - chunk, 0))
        self.issue(chunk)
        self.relayout_ready(allow)
    def bg(self, n, chunk=4, depth=None, allow=("K", "V")):
        for _ in range(n): self.step(chunk, depth, allow)
    def bg_until(self, cond, chunk=4, depth=None, allow=("K", "V")):
        guard = 0
        while not cond():
            self.relayout_ready(allow)
            if cond(): break
            if self.next_item >= len(self.items) or not self.can_issue(self.items[self.next_item]):
                assert self.vmq, "bg_until stuck"
                self.wait_out(max(len(self.vmq) - chunk, 0)); self.relayout_ready(allow)
            else:
                self.step(chunk, depth, allow)
            guard += 1; assert guard < 200
    def k_relayout(self, T, tile):
        b = KBASE[T] + 32 * tile
        w0, r0, t0, t1 = SCR, SCR + 1, SCR + 2, SCR + 3
        I = self.I
        I(f"v_lshrrev_b32 {vr(t0)}, 4, {vr(vLane)}")
        I(f"v_and_b32 {vr(t1)}, 15, {vr(vLane)}")
        I(f"v_xor_b32 {vr(t1)}, {vr(t1)}, {vr(t0)}")
        I(f"v_lshlrev_b32 {vr(t1)}, 4, {vr(t1)}")
        I(f"v_lshl_add_u32 {vr(w0)}, {vr(t0)}, 8, {vr(t1)}")
        I(f"s_add_u32 {sr(sT)}, {sr(sWB)}, {KST_OFF}")
        I(f"v_add_u32 {vr(w0)}, {sr(sT)}, {vr(w0)}")
        I(f"v_and_b32 {vr(t0)}, 31, {vr(vLane)}")
        I(f"v_lshrrev_b32 {vr(t1)}, 5, {vr(vLane)}")
        I(f"v_lshlrev_b32 {vr(t1)}, 3, {vr(t1)}")
        I(f"v_and_b32 {vr(r0)}, 15, {vr(vLane)}")
        I(f"v_xor_b32 {vr(r0)}, {vr(r0)}, {vr(t1)}")
        I(f"v_lshlrev_b32 {vr(r0)}, 4, {vr(r0)}")
        I(f"v_lshl_add_u32 {vr(r0)}, {vr(t0)}, 8, {vr(r0)}")
        I(f"v_add_u32 {vr(r0)}, {sr(sT)}, {vr(r0)}")
        for i in range(8):
            m = i & 3; a = w0
            if m:
                a = t0 if (i & 1) else t1
                I(f"v_xor_b32 {vr(a)}, {m<<6}, {vr(w0)}")
            I(f"ds_write_b128 {vr(a)}, {ar(b+4*i,4)} offset:{i*1024}")
        I("s_waitcnt lgkmcnt(0)")
        for cc in range(8):
            a = r0
            if cc:
                a = t0 if (cc & 1) else t1
                I(f"v_xor_b32 {vr(a)}, {cc<<4}, {vr(r0)}")
            I(f"ds_read_b128 {ar(b+4*cc,4)}, {vr(a)}")
        I("s_waitcnt lgkmcnt(0)")
        self.kdone[T] += 1
    def v_relayout(self, T, grp):
        w0 = SCR; I = self.I
        I(f"s_add_u32 {sr(sT)}, {sr(sWB)}, {STG_OFF}")
        I(f"v_add_u32 {vr(w0)}, {sr(sT)}, {vr(vVswz)}")
        for s, n in enumerate(grp):
            I(f"ds_write_b128 {vr(w0)}, {vr(VBASE[T]+4*n,4)} offset:{s*1024}")
        I("s_waitcnt lgkmcnt(0)")
        for s, n in enumerate(grp):
            d = VBASE[T] + 4 * n
            I(f"ds_read_b64_tr_b16 {vr(d,2)}, {vr(vTrLo)} offset:{STG_OFF + s*1024}")
            I(f"ds_read_b64_tr_b16 {vr(d+2,2)}, {vr(vTrHi)} offset:{STG_OFF + s*1024}")
        I("s_waitcnt lgkmcnt(0)")
        self.vdone[T] += len(grp)
    def attempts(self, tag, iss, check, n, chunk):
        rest = [self.newlab("RS") for _ in range(n + 1)]
        chunks = []
        for k in range(n):
            iss()
            c = self.issue(chunk); chunks.append(c)
            self.need(tag)
            if k < n - 1:
                check()
                self.I(f"s_cbranch_scc0 {rest[k+1]}")
        self.I(f"s_branch {rest[n]}")
        save = self.state()
        for k in range(1, n):
            self.label(rest[k])
            for it in chunks[k]: self.emit_item(it)
        self.label(rest[n])
        self.set_state(save)
        self.vmq = [it for c in chunks for it in c]
    def prologue(self):
        I = self.I
        KVN = 128 * 1024
        I(f"s_cmp_ge_u32 {sr(sWG)}, 256")
        I("s_cbranch_scc1 L_END")
        I("s_load_dwordx8 s[88:95], s[0:1], 0")
        I("s_load_dwordx2 s[96:97], s[0:1], 32")
        I("s_load_dwordx2 s[98:99], s[0:1], 96")
        I("s_load_dwordx4 s[16:19], s[0:1], 48")
        I("s_load_dwordx4 s[32:35], s[0:1], 64")
        I("s_load_dwordx4 s[52:55], s[0:1], 80")
        I("v_lshrrev_b32 v1, 6, v0")
        I("v_and_b32 v0, 63, v0")
        I(f"v_readfirstlane_b32 {sr(sV)}, v1")
        I(f"s_and_b32 {sr(sG)}, {sr(sWG)}, 7")
        I(f"s_lshr_b32 {sr(sR)}, {sr(sWG)}, 3")
        I(f"s_lshr_b32 {sr(sT)}, {sr(sR)}, 3")
        I(f"s_lshl_b32 {sr(sH)}, {sr(sG)}, 2")
        I(f"s_add_u32 {sr(sH)}, {sr(sH)}, {sr(sT)}")
        I(f"s_and_b32 {sr(sJ8)}, {sr(sR)}, 7")
        I(f"v_lshlrev_b32 {vr(vL16)}, 4, {vr(vLane)}")
        I(f"s_lshr_b32 {sr(sT)}, {sr(sJ8)}, 2"); I(f"s_lshl_b32 {sr(sT)}, {sr(sT)}, 5"); I(f"s_add_u32 {sr(sT)}, {sr(sT)}, {sr(sH)}")
        I(f"s_lshl_b32 {sr(sT)}, {sr(sT)}, 21")
        I(f"s_and_b32 {sr(sT2)}, {sr(sJ8)}, 3"); I(f"s_lshl_b32 {sr(sT2)}, {sr(sT2)}, 17"); I(f"s_add_u32 {sr(sT)}, {sr(sT)}, {sr(sT2)}")
        I(f"s_lshl_b32 {sr(sT2)}, {sr(sV)}, 10"); I(f"s_add_u32 {sr(sT)}, {sr(sT)}, {sr(sT2)}")
        I(f"s_add_u32 {sr(sKV)}, {sr(sT)}, {6144*256}")
        I(f"s_mul_i32 {sr(sWB)}, {sr(sV)}, {WAVE_BLK}")
        I(f"v_lshrrev_b32 v44, 3, {vr(vLane)}"); I(f"v_and_b32 v45, 7, {vr(vLane)}"); I("v_lshlrev_b32 v45, 4, v45")
        I(f"v_lshl_add_u32 {vr(vWoffQ)}, v44, 13, v45"); I(f"v_lshl_add_u32 {vr(vWoffO)}, v44, 10, v45")
        I(f"s_and_b32 {sr(sT)}, {sr(sJ8)}, 3"); I(f"s_lshl_b32 {sr(sT)}, {sr(sT)}, 2"); I(f"s_add_u32 {sr(sT)}, {sr(sT)}, {sr(sV)}")
        I(f"s_lshl_b32 {sr(sWqB0)}, {sr(sT)}, 18")
        I(f"s_lshl_b32 {sr(sT3)}, {sr(sH)}, 8"); I(f"s_lshr_b32 {sr(sT2)}, {sr(sJ8)}, 2"); I(f"s_lshl_b32 {sr(sT2)}, {sr(sT2)}, 7")
        I(f"s_add_u32 {sr(sT3)}, {sr(sT3)}, {sr(sT2)}")
        I(f"s_lshl_b32 {sr(sWM0)}, {sr(sV)}, 12"); I(f"s_add_u32 {sr(sWM0)}, {sr(sWM0)}, {W_BASE}")
        I(f"s_getreg_b32 {sr(sXcc)}, hwreg(HW_REG_XCC_ID, 0, 4)")
        I(f"s_and_b32 {sr(sXcc)}, {sr(sXcc)}, 7")
        I("s_waitcnt lgkmcnt(0)")
        I(f"s_add_u32 s8, s90, {sr(sKV)}"); I("s_addc_u32 s9, s91, 0"); I(f"s_mov_b32 s10, {KVN}"); I("s_mov_b32 s11, 0x20000")
        I(f"s_add_u32 s24, s94, {sr(sT3)}"); I("s_addc_u32 s25, s95, 0"); I(f"s_sub_u32 s26, {512*8192}, {sr(sT3)}"); I("s_mov_b32 s27, 0x20000")
        I(f"s_add_u32 s32, s32, {sr(sT3)}"); I("s_addc_u32 s33, s33, 0")
        I(f"s_mov_b32 {sr(sCnt)}, s26")
        I("s_mov_b32 s40, s98"); I("s_mov_b32 s41, s99"); I(f"s_mov_b32 s42, {WS_SRD_BYTES}"); I("s_mov_b32 s43, 0x20000")
        def clear_block(part='both'):
            lskip = self.newlab("NOCLR")
            I(f"s_cmp_lg_u32 {sr(sV)}, 3"); I(f"s_cbranch_scc1 {lskip}")
            I("v_mov_b32 v48, -1"); I("v_mov_b32 v49, -1"); I("v_mov_b32 v50, -1"); I("v_mov_b32 v51, -1")
            I(f"s_mul_i32 {sr(sT)}, {sr(sWG)}, {SLOT_BYTES//256}")
            for o in range(0, SLOT_BYTES // 256, 1024):
                if o and o % 4096 == 0: I(f"s_add_u32 {sr(sT)}, {sr(sT)}, 4096")
                I(f"buffer_store_dwordx4 v[48:51], {vr(vL16)}, s[40:43], {sr(sT)} offen offset:{o % 4096} sc1")
            I(f"s_lshl_b32 {sr(sT)}, {sr(sXcc)}, 3")
            I(f"s_lshl_b64 s[76:77], 1, {sr(sT)}")
            I("v_mov_b32 v48, s76"); I("v_mov_b32 v49, s77")
            I(f"s_lshr_b32 {sr(sT)}, {sr(sG)}, 1"); I(f"s_lshl_b32 {sr(sT)}, {sr(sT)}, 6")
            I(f"s_and_b32 s76, {sr(sG)}, 1"); I("s_lshl_b32 s76, s76, 3"); I(f"s_add_u32 {sr(sT)}, {sr(sT)}, s76")
            I(f"v_mov_b32 v50, {sr(sT)}")
            if part == "both":
                I("s_waitcnt vmcnt(0)")
                I("s_mov_b64 exec, 1")
                I(f"global_atomic_add_x2 v50, v[48:49], {dbgp}")
                I("s_mov_b64 exec, -1")
            self.label(lskip)
        def arrive_block(nyounger):
            lskip = self.newlab("NOARR")
            I(f"s_cmp_lg_u32 {sr(sV)}, 3"); I(f"s_cbranch_scc1 {lskip}")
            I(f"s_lshl_b32 {sr(sT)}, {sr(sXcc)}, 3")
            I(f"s_lshl_b64 s[76:77], 1, {sr(sT)}")
            I("v_mov_b32 v54, s76"); I("v_mov_b32 v55, s77")
            I(f"s_lshr_b32 {sr(sT)}, {sr(sG)}, 1"); I(f"s_lshl_b32 {sr(sT)}, {sr(sT)}, 6")
            I(f"s_and_b32 s76, {sr(sG)}, 1"); I("s_lshl_b32 s76, s76, 3"); I(f"s_add_u32 {sr(sT)}, {sr(sT)}, s76")
            I(f"v_mov_b32 v56, {sr(sT)}")
            I(f"s_waitcnt vmcnt({nyounger})")
            I("s_mov_b64 exec, 1")
            I(f"global_atomic_add_x2 v56, v[54:55], {dbgp}")
            I("s_mov_b64 exec, -1")
            self.label(lskip)
        dbgp = "s[54:55]"
        arr2 = self.cfg.get("arrive2", True)
        if not self.cfg.get("clear_late", False): clear_block("stores" if arr2 else "both")
        nq0 = len(self.vmq)
        I(f"v_mov_b32 v48, {COMMON + HOP_OFF}"); I("v_mov_b32 v49, 0")
        I(f"s_cmp_eq_u32 {sr(sV)}, 0"); I("s_cselect_b64 exec, 1, 0"); I("ds_write_b32 v48, v49"); I("s_mov_b64 exec, -1")
        self.issue(self.cfg.get("pro_a", 4))
        I("s_mov_b32 s44, s88"); I("s_mov_b32 s45, s89"); I("s_mov_b32 s46, 2048"); I("s_mov_b32 s47, 0x20000")
        I(f"v_lshrrev_b32 v52, 4, {vr(vLane)}"); I(f"v_and_b32 v53, 1, {vr(vLane)}")
        I("v_lshlrev_b32 v53, 10, v53"); I("v_lshl_add_u32 v52, v52, 4, v53")
        I(f"s_and_b32 {sr(sT)}, {sr(sJ8)}, 3"); I(f"s_lshl_b32 {sr(sT)}, {sr(sT)}, 8"); I(f"v_add_u32 v52, {sr(sT)}, v52")
        for i in range(16): I(f"v_mov_b32 v{24+i}, 0x3f803f80")
        I("s_mov_b32 exec_lo, 0x00030003"); I("s_mov_b32 exec_hi, 0x00030003")
        for k in range(4):
            self.vm("x0", f"buffer_load_dwordx4 {vr(24+4*k,4)}, v52, s[44:47], 0 offen offset:{64*k}")
        I("s_mov_b64 exec, -1")
        self.issue(self.cfg.get("pro_n", 12) - self.cfg.get("pro_a", 4))
        if self.cfg.get("clear_late", False): clear_block()
        if arr2 and not self.cfg.get("clear_late", False): arrive_block(len(self.vmq) - nq0)
        I(f"s_mov_b32 {sr(sWSlo)}, s98"); I(f"s_mov_b32 {sr(sWShi)}, s99")
        I(f"s_add_u32 s12, s92, {sr(sKV)}"); I("s_addc_u32 s13, s93, 0"); I(f"s_mov_b32 s14, {KVN}"); I("s_mov_b32 s15, 0x20000")
        I(f"s_add_u32 s20, s18, {sr(sKV)}"); I("s_addc_u32 s21, s19, 0"); I(f"s_mov_b32 s22, {KVN}"); I("s_mov_b32 s23, 0x20000")
        I(f"s_add_u32 s16, s16, {sr(sKV)}"); I("s_addc_u32 s17, s17, 0"); I(f"s_mov_b32 s18, {KVN}"); I("s_mov_b32 s19, 0x20000")
        I(f"s_lshl_b32 {sr(sT)}, {sr(sH)}, 17"); I(f"s_lshl_b32 {sr(sT2)}, {sr(sJ8)}, 7"); I(f"s_add_u32 {sr(sT)}, {sr(sT)}, {sr(sT2)}")
        I(f"s_add_u32 s28, s96, {sr(sT)}"); I("s_addc_u32 s29, s97, 0"); I(f"s_sub_u32 s30, {4096*1024}, {sr(sT)}"); I("s_mov_b32 s31, 0x20000")
        I(f"s_add_u32 s36, s34, {sr(sT)}"); I("s_addc_u32 s37, s35, 0"); I(f"s_sub_u32 s38, {4096*1024}, {sr(sT)}"); I("s_mov_b32 s39, 0x20000")
        I(f"s_mov_b32 s34, {sr(sCnt)}"); I("s_mov_b32 s35, 0x20000")
        I("s_mov_b32 s76, s52"); I("s_mov_b32 s77, s53"); I("s_mov_b32 s52, s54"); I("s_mov_b32 s53, s55"); I("s_mov_b32 s54, s76"); I("s_mov_b32 s55, s77")
        I("s_mov_b32 s51, 0x20000"); I("s_mov_b32 s48, s98"); I("s_mov_b32 s49, s99"); I("s_mov_b32 s50, 0")
        for (m, val) in ((mJ2, 0x00030003), (mI0, 0x11111111), (mJ04, 0x00110011), (mJ8, 0x00ff00ff), (mI1, 0x22222222)):
            I(f"s_mov_b32 {sr(m)}, {val:#x}"); I(f"s_mov_b32 {sr(m+1)}, {val:#x}")
        I(f"s_cmp_eq_u32 {sr(sV)}, 0"); I(f"s_cselect_b32 {sr(mStat)}, 3, 0"); I(f"s_mov_b32 {sr(mStat+1)}, 0")
        I(f"s_mov_b32 {sr(sC)}, {f2u(128**-0.5 * 1.4426950408889634):#x}")
        I(f"s_mov_b32 {sr(sL)}, 0"); I(f"s_mov_b32 {sr(sLay)}, 0"); I(f"s_mov_b32 {sr(sFast)}, 0")
        I(f"s_mov_b32 {sr(sWd)}, {W_T}"); I(f"s_mov_b32 {sr(sCsd)}, 512")
        I(f"s_lshl_b32 {sr(sWoB0)}, {sr(sV)}, 15")
        I(f"s_lshl_b32 {sr(sQs)}, {sr(sH)}, 12"); I(f"s_add_u32 {sr(sQs)}, {sr(sQs)}, {QS_OFF}")
        I(f"s_lshr_b32 {sr(sT)}, {sr(sJ8)}, 2"); I(f"s_lshl_b32 {sr(sT2)}, {sr(sT)}, 11")
        I(f"s_add_u32 {sr(sQpoll)}, {sr(sQs)}, {sr(sT2)}")
        I(f"s_lshl_b32 {sr(sStpoll)}, {sr(sH)}, 6"); I(f"s_add_u32 {sr(sStpoll)}, {sr(sStpoll)}, {ST_OFF}")
        I(f"s_and_b32 {sr(sT2)}, {sr(sJ8)}, 3"); I(f"s_lshl_b32 {sr(sT2)}, {sr(sT2)}, 4")
        I(f"s_add_u32 {sr(sStpub)}, {sr(sStpoll)}, {sr(sT2)}")
        I(f"s_lshl_b32 {sr(sT)}, {sr(sT)}, 3"); I(f"s_add_u32 {sr(sStpoll)}, {sr(sStpoll)}, {sr(sT)}")
        I(f"s_lshl_b32 {sr(sOs)}, {sr(sH)}, 11"); I(f"s_add_u32 {sr(sOs)}, {sr(sOs)}, {OS_OFF}")
        I(f"s_lshl_b32 {sr(sLpoll)}, {sr(sH)}, 5"); I(f"s_add_u32 {sr(sLpoll)}, {sr(sLpoll)}, {LSE_OFF}")
        I(f"s_lshl_b32 {sr(sT)}, {sr(sJ8)}, 2"); I(f"s_add_u32 {sr(sLpub)}, {sr(sLpoll)}, {sr(sT)}")
        I(f"s_lshl_b32 {sr(sYpoll)}, {sr(sR)}, 12"); I(f"s_add_u32 {sr(sYpoll)}, {sr(sYpoll)}, {YS_OFF}")
        I(f"s_lshl_b32 {sr(sT)}, {sr(sJ8)}, 2"); I(f"s_add_u32 {sr(sT)}, {sr(sT)}, {sr(sV)}"); I(f"s_lshl_b32 {sr(sT)}, {sr(sT)}, 12")
        I(f"s_lshl_b32 {sr(sT2)}, {sr(sH)}, 7"); I(f"s_add_u32 {sr(sT)}, {sr(sT)}, {sr(sT2)}"); I(f"s_add_u32 {sr(sYpub)}, {sr(sT)}, {YS_OFF}")
        I(f"s_lshl_b32 {sr(sXS)}, {sr(sG)}, 11"); I(f"s_add_u32 {sr(sXS)}, {sr(sXS)}, {XS_OFF}")
        I(f"v_lshlrev_b32 {vr(vL4)}, 2, {vr(vLane)}")
        I(f"v_lshrrev_b32 v44, 4, {vr(vLane)}")
        I(f"v_and_b32 v45, 15, {vr(vLane)}")
        I("v_lshlrev_b32 v46, 2, v44"); I("v_xor_b32 v46, v46, v45"); I("v_lshlrev_b32 v46, 4, v46")
        I(f"v_lshl_add_u32 {vr(vVswz)}, v44, 8, v46")
        I(f"v_bfe_u32 v46, {vr(vLane)}, 2, 2")
        I(f"v_bfe_u32 v47, {vr(vLane)}, 1, 1")
        I("v_lshl_add_u32 v47, v44, 1, v47")
        I("v_lshlrev_b32 v48, 2, v46"); I("v_xor_b32 v47, v47, v48"); I("v_lshlrev_b32 v47, 4, v47")
        I("v_lshl_add_u32 v47, v46, 8, v47")
        I(f"v_and_b32 v48, 1, {vr(vLane)}"); I("v_lshl_add_u32 v47, v48, 3, v47")
        I(f"v_add_u32 {vr(vTrLo)}, {sr(sWB)}, v47")
        I(f"v_xor_b32 {vr(vTrHi)}, 0x80, {vr(vTrLo)}")
        I("v_lshl_add_u32 v47, v44, 3, v46"); I("v_lshlrev_b32 v47, 7, v47")
        I(f"v_and_b32 v48, 3, {vr(vLane)}"); I("v_lshl_add_u32 v47, v48, 3, v47")
        I(f"s_lshl_b32 {sr(sT)}, {sr(sV)}, 5"); I(f"s_add_u32 {sr(sT)}, {sr(sT)}, {W_BASE}"); I(f"v_add_u32 {vr(vWRd)}, {sr(sT)}, v47")
        I("v_and_b32 v46, 1, v45"); I("v_lshlrev_b32 v46, 4, v46"); I("v_lshl_add_u32 v46, v44, 5, v46")
        I(f"s_and_b32 {sr(sT)}, {sr(sJ8)}, 3"); I(f"s_lshl_b32 {sr(sT)}, {sr(sT)}, 9"); I(f"v_add_u32 {vr(vXoff)}, {sr(sT)}, v46")
        I(f"v_lshlrev_b32 {vr(vSoff)}, 4, v48")
        I(f"v_lshrrev_b32 v46, 2, {vr(vLane)}"); I("v_lshlrev_b32 v46, 5, v46"); I(f"v_add_u32 {vr(vCsRd)}, {CSB}, v46")
        I("v_and_b32 v46, 7, v45"); I(f"v_lshlrev_b32 {vr(vLoff)}, 2, v46")
        I("v_lshlrev_b32 v46, 4, v46"); I(f"v_lshl_add_u32 {vr(vOoff)}, v44, 7, v46")
        I(f"v_lshrrev_b32 v46, 2, {vr(vLane)}"); I("v_lshlrev_b32 v46, 7, v46"); I("v_lshl_add_u32 v46, v48, 2, v46")
        I(f"s_lshl_b32 {sr(sT)}, {sr(sJ8)}, 4"); I(f"v_add_u32 {vr(vOpub)}, {sr(sT)}, v46")
        I(f"v_bfe_u32 v46, {vr(vLane)}, 2, 1"); I("v_lshlrev_b32 v47, 6, v46"); I(f"v_lshl_add_u32 {vr(vYpub)}, v44, 4, v47")
        I("v_lshlrev_b32 v47, 10, v46"); I("v_lshl_add_u32 v47, v48, 3, v47")
        I(f"s_lshl_b32 {sr(sT)}, {sr(sR)}, 5"); I(f"v_add_u32 v50, {sr(sT)}, v47")
        I("v_lshlrev_b32 v46, 4, v46")
        I("v_lshrrev_b32 v47, 1, v48"); I("v_lshl_add_u32 v46, v47, 5, v46")
        I("v_and_b32 v47, 1, v48"); I("v_lshl_add_u32 v46, v47, 3, v46")
        I(f"s_lshl_b32 {sr(sT)}, {sr(sR)}, 6"); I(f"v_add_u32 {vr(vXpub)}, {sr(sT)}, v46")
        I("v_lshlrev_b32 v46, 1, v45"); I("v_and_b32 v47, 1, v44"); I("v_add_u32 v46, v46, v47"); I("v_lshlrev_b32 v46, 10, v46")
        I("v_lshrrev_b32 v47, 1, v44"); I("v_lshl_add_u32 v46, v47, 6, v46")
        I(f"s_lshr_b32 {sr(sT)}, {sr(sJ8)}, 2"); I(f"s_lshl_b32 {sr(sT)}, {sr(sT)}, 3"); I(f"s_lshl_b32 {sr(sT2)}, {sr(sV)}, 1"); I(f"s_add_u32 {sr(sT)}, {sr(sT)}, {sr(sT2)}")
        I(f"s_lshl_b32 {sr(sT)}, {sr(sT)}, 2"); I(f"s_and_b32 {sr(sT2)}, {sr(sJ8)}, 3"); I(f"s_add_u32 {sr(sT)}, {sr(sT)}, {sr(sT2)}"); I(f"s_lshl_b32 {sr(sT)}, {sr(sT)}, 4")
        I(f"v_add_u32 {vr(vQpub)}, {sr(sT)}, v46")
        if self.profile:
            I(f"s_lshl_b32 {sr(sT)}, {sr(sWG)}, 2"); I(f"s_add_u32 {sr(sT)}, {sr(sT)}, {sr(sV)}"); I(f"s_lshl_b32 {sr(sT)}, {sr(sT)}, 10")
            I(f"s_add_u32 {sr(sT)}, {sr(sT)}, {PROF_OFF}"); I(f"v_add_u32 {vr(vStA)}, {sr(sT)}, {vr(vL4)}")
            I("s_memrealtime s[94:95]"); I("s_memtime s[96:97]"); I("s_waitcnt lgkmcnt(0)")
            I(f"v_mov_b32 {vr(vStD)}, s94"); I(f"v_writelane_b32 {vr(vStD)}, s96, 1")
            I("s_mov_b64 exec, 3")
            I(f"buffer_store_dword {vr(vStD)}, {vr(vStA)}, {sr(SRD['WS'],4)}, 0 offen offset:512")
            I("s_mov_b64 exec, -1")
        self.vm("xold", f"buffer_load_dwordx2 v[{vXold}:{vXold+1}], v50, s[44:47], 0 offen")

    def both_T(self, name, fn):
        self.I(f"s_bitcmp1_b32 {sr(sL)}, 0")
        self.I(f"s_cbranch_scc1 {name}_B")
        fn("A")
        self.I(f"s_branch {name}_E")
        self.label(f"{name}_B")
        fn("B")
        self.label(f"{name}_E")

    def chk(self, regs, ta, tb, mask="exec"):
        def f():
            I = self.I; a, b = vr(ta), vr(tb)
            R = list(regs)
            I(f"v_max3_u32 {a}, {vr(R[0])}, {vr(R[1])}, {vr(R[2])}"); R = R[3:]
            useb = False
            if len(R) >= 3:
                I(f"v_max3_u32 {b}, {vr(R[0])}, {vr(R[1])}, {vr(R[2])}"); R = R[3:]; useb = True
            t = [a, b]; k = 0
            while len(R) >= 2:
                I(f"v_max3_u32 {t[k]}, {t[k]}, {vr(R[0])}, {vr(R[1])}"); R = R[2:]
                if useb: k ^= 1
            if useb and R: I(f"v_max3_u32 {a}, {a}, {b}, {vr(R[0])}")
            elif useb: I(f"v_max_u32 {a}, {a}, {b}")
            elif R: I(f"v_max_u32 {a}, {a}, {vr(R[0])}")
            I(f"v_cmp_eq_u32 vcc, -1, {a}")
            I(f"s_and_b64 vcc, vcc, {mask}")
        return f

    def site(self, name, cond):
        self.I(f"s_cmp_{cond[0]}_u32 {sr(sL)}, {cond[1]}")
        self.I(f"s_cbranch_scc1 S_{name}")
        self.label(f"R_{name}")
    def block(self, label):
        self.cur = self.ool; self.ool.hists = [[]]
        self.label(label); self.I("s_nop 7")
    def jump(self, label):
        self.I("s_nop 7"); self.I(f"s_branch {label}")
    def hop(self, name, issue_fn, check_fn, spec_fn=None, shadow_fn=None, site=None):
        if site: self.site(name, site)
        issue_fn()
        if shadow_fn: shadow_fn()
        self.I("s_waitcnt vmcnt(0)")
        self.hop_tail(name, issue_fn, check_fn, spec_fn)
    def hop_tail(self, name, issue_fn, check_fn, spec_fn=None):
        self.label(f"C_{name}")
        if spec_fn: spec_fn()
        check_fn()
        self.I(f"s_cbranch_scc1 Y_{name}")
        self.block(f"Y_{name}")
        self.I(f"s_mov_b32 {sr(sCnt)}, 0")
        lp = self.newlab("HL"); dn = self.newlab("HD")
        self.label(lp)
        issue_fn()
        self.I("s_waitcnt vmcnt(0)")
        check_fn()
        self.I(f"s_cbranch_scc0 {dn}")
        self.I(f"s_add_u32 {sr(sCnt)}, {sr(sCnt)}, 1")
        self.I(f"s_cmp_lt_u32 {sr(sCnt)}, {self.cfg.get('spin', 40000)}")
        self.I(f"s_cbranch_scc1 {lp}")
        self.jump(f"K_{name}")
        self.label(dn)
        self.jump(f"{'C' if spec_fn else 'K'}_{name}")
        self.cur = self.main
        self.label(f"K_{name}")
    def pub2(self, name, text_fn):
        self.I(f"s_cmp_lg_u32 {sr(sFast)}, 0")
        self.I(f"s_cbranch_scc1 L_PF{name}")
        self.I(text_fn("sc1"))
        self.I(f"s_branch L_PE{name}")
        self.label(f"L_PF{name}")
        self.I(text_fn(""))
        self.label(f"L_PE{name}")

    X, W, DQ, DS = 24, 40, 56, 60
    RAW, ST, CS, Q = 24, 32, 34, 76
    O_, LS, DY, W2 = 24, 40, 48, 56
    Y = 56
    VT = 44
    def wq_reads(self):
        for k in range(4):
            for t in range(2):
                self.I(f"ds_read_b64_tr_b16 {vr(self.W+4*k+2*t,2)}, {vr(vWRd)} offset:{WQ_IMG + k*4096 + t*512}")
    def wo_reads(self):
        for k in range(4):
            for t in range(2):
                self.I(f"ds_read_b64_tr_b16 {vr(self.W2+4*k+2*t,2)}, {vr(vWRd)} offset:{WO_IMG + k*4096 + t*512}")
    def prefill(self):
        for i in range(16): self.I(f"v_mov_b32 {vr(self.X+i)}, 0x3f803f80")
    def d_issue(self):
        I = self.I
        I(f"s_mov_b64 exec, {sr(mJ2,2)}")
        for k in range(4): I(f"buffer_load_dwordx4 {vr(self.X+4*k,4)}, {vr(vXoff)}, {sr(SRD['XSRC'],4)}, 0 offen offset:{128*k} sc1")
        I("s_mov_b64 exec, -1")
    def d_check(self): self.chk(range(self.X, self.X+16), 69, 70)()
    def a_issue(self):
        I = self.I
        for e in range(2): I(f"buffer_load_dwordx4 {vr(self.RAW+4*e,4)}, {vr(vL16)}, {sr(SRD['WS'],4)}, {sr(sQpoll)} offen offset:{1024*e} sc1")
        I(f"buffer_load_dwordx2 {vr(self.ST,2)}, {vr(vSoff)}, {sr(SRD['WS'],4)}, {sr(sStpoll)} offen sc1")
    def a_check(self): self.chk(list(range(self.RAW, self.RAW+10)), 69, 70)()
    def b_issue(self):
        I = self.I
        I(f"s_mov_b64 exec, {sr(mJ8,2)}")
        for k in range(4): I(f"buffer_load_dwordx4 {vr(self.O_+4*k,4)}, {vr(vOoff)}, {sr(SRD['WS'],4)}, {sr(sOs)} offen offset:{512*k} sc1")
        I(f"buffer_load_dword {vr(self.LS)}, {vr(vLoff)}, {sr(SRD['WS'],4)}, {sr(sLpoll)} offen sc1")
        I("s_mov_b64 exec, -1")
    def b_check(self): self.chk(list(range(self.O_, self.O_+16)) + [self.LS], 46, 47, mask=sr(mJ8,2))()
    def c_issue(self):
        for i in range(4):
            self.I(f"buffer_load_dwordx4 {vr(self.Y+4*i,4)}, {vr(vL16)}, {sr(SRD['WS'],4)}, {sr(sYpoll)} offen offset:{1024*i} sc1")
    def c_check(self): self.chk(range(self.Y, self.Y+16), 72, 73)()
    def bookkeeping(self):
        I = self.I
        I(f"s_add_u32 {sr(sT)}, {sr(sLay)}, {sr(sXS)}")
        I(f"s_add_u32 s44, {sr(sWSlo)}, {sr(sT)}"); I(f"s_addc_u32 s45, {sr(sWShi)}, 0")
        I(f"s_cmp_eq_u32 {sr(sL)}, 3")
        I(f"s_cselect_b32 s48, {sr(sOUT)}, s44"); I(f"s_cselect_b32 s49, {sr(sOUT+1)}, s45")
        I("s_cselect_b64 vcc, -1, 0")
        I(f"s_cselect_b32 {sr(sT)}, {sr(sG)}, 0")
        I(f"s_cmp_eq_u32 {sr(sT)}, 0")
        I("s_cselect_b32 s50, 2048, 0")
        I(f"v_bfe_u32 v79, {vr(vLane)}, 2, 1"); I("v_lshlrev_b32 v79, 10, v79")
        I(f"v_and_b32 v78, 3, {vr(vLane)}"); I("v_lshl_add_u32 v79, v78, 3, v79")
        I(f"s_lshl_b32 {sr(sT)}, {sr(sR)}, 5"); I(f"v_add_u32 v79, {sr(sT)}, v79")
        I(f"v_cndmask_b32 v79, {vr(vXpub)}, v79, vcc")
    def advance(self):
        I = self.I
        for s_ in (sLay, sQs, sQpoll, sOs, sLpub, sStpoll, sStpub, sLpoll, sYpub):
            I(f"s_add_u32 {sr(s_)}, {sr(s_)}, {LAYER_STRIDE}")
        I(f"v_add_u32 {vr(vWRd)}, {sr(sWd)}, {vr(vWRd)}"); I(f"s_sub_u32 {sr(sWd)}, 0, {sr(sWd)}")
        I(f"v_add_u32 {vr(vCsRd)}, {sr(sCsd)}, {vr(vCsRd)}"); I(f"s_sub_u32 {sr(sCsd)}, 0, {sr(sCsd)}")
    def vt_reads(self, Tt, first):
        VT = self.VT; out = []
        for n in range(5):
            out.append(f"ds_read_b64_tr_b16 {vr(VT+4*n,2)}, {vr(vTrLo)} offset:{VL_OFF[Tt] + (first+n)*1024}")
            out.append(f"ds_read_b64_tr_b16 {vr(VT+4*n+2,2)}, {vr(vTrHi)} offset:{VL_OFF[Tt] + (first+n)*1024}")
        return out

    def mainline(self):
        I = self.I
        X, W, DQ, DS = self.X, self.W, self.DQ, self.DS
        RAW, ST, CS, Q = self.RAW, self.ST, self.CS, self.Q
        O_, LS, DY, W2, Y = self.O_, self.LS, self.DY, self.W2, self.Y
        self.label("L_LOOP")
        self.stamp("start")
        def d_spec():
            I("s_waitcnt lgkmcnt(0)")
            for k in range(4):
                c = "0" if k == 0 else vr(DQ, 4)
                I(f"v_mfma_f32_16x16x32_bf16 {vr(DQ,4)}, {vr(W+4*k,4)}, {vr(X+4*k,4)}, {c}")
            for k in range(4):
                c = "0" if k == 0 else vr(DS, 4)
                I(f"v_mfma_f32_16x16x32_bf16 {vr(DS,4)}, {vr(X+4*k,4)}, {vr(X+4*k,4)}, {c}")
        self.hop("D", self.d_issue, self.d_check, d_spec)
        self.stamp("Dok")
        I(f"v_cmp_eq_u32 vcc, 1, {vr(vLane)}")
        I(f"v_lshlrev_b32 v64, 3, {vr(vLane)}")
        I(f"s_mov_b64 exec, {sr(mJ2,2)}")
        self.pub2("q", lambda fl: f"buffer_store_dwordx4 {vr(DQ,4)}, {vr(vQpub)}, {sr(SRD['WS'],4)}, {sr(sQs)} offen {fl}")
        I(f"s_mov_b64 exec, {sr(mStat,2)}")
        I(f"v_cndmask_b32 {vr(DS)}, {vr(DS)}, {vr(DS+1)}, vcc")
        I(f"v_mov_b32 {vr(DS+1)}, {vr(DS+2)}")
        self.pub2("s", lambda fl: f"buffer_store_dwordx2 v[{DS}:{DS+1}], v64, {sr(SRD['WS'],4)}, {sr(sStpub)} offen {fl}")
        I("s_mov_b64 exec, -1")
        self.stamp("Qpub")
        self.site("A0", ("lt", 2))
        def a_shadow():
            I(f"ds_read_b128 {vr(CS,4)}, {vr(vCsRd)}"); I(f"ds_read_b128 {vr(CS+4,4)}, {vr(vCsRd)} offset:16")
        self.hop("A", self.a_issue, self.a_check, shadow_fn=a_shadow)
        self.stamp("Aok")
        qs = lambda r, p: f"v_add_f32_dpp {vr(r)}, {vr(r)}, {vr(r)} quad_perm:{p} {DPP}"
        I(qs(ST+1, "[1,0,3,2]")); I(qs(ST, "[1,0,3,2]"))
        for i in range(2): I(qs(RAW+i, "[1,0,3,2]"))
        I(qs(ST+1, "[2,3,0,1]")); I(qs(ST, "[2,3,0,1]"))
        for i in range(2, 4): I(qs(RAW+i, "[1,0,3,2]"))
        I(f"v_mul_f32 {vr(ST+1)}, {f2u(1/512):#x}, {vr(ST+1)}")
        I(f"v_mul_f32 {vr(ST)}, {f2u(1/512):#x}, {vr(ST)}")
        for i in range(4, 6): I(qs(RAW+i, "[1,0,3,2]"))
        I(f"v_fma_f32 {vr(ST)}, -{vr(ST+1)}, {vr(ST+1)}, {vr(ST)}")
        I(qs(RAW+6, "[1,0,3,2]"))
        I(f"v_max_f32 {vr(ST)}, 0, {vr(ST)}")
        I(qs(RAW+7, "[1,0,3,2]"))
        I(f"v_add_f32 {vr(ST)}, {f2u(1e-5):#x}, {vr(ST)}")
        I(qs(RAW, "[2,3,0,1]"))
        I(f"v_rsq_f32 {vr(ST)}, {vr(ST)}")
        for i in range(1, 8): I(qs(RAW+i, "[2,3,0,1]"))
        I("s_waitcnt lgkmcnt(0)")
        for i in range(8): I(f"v_fma_f32 {vr(RAW+i)}, -{vr(ST+1)}, {vr(CS+i)}, {vr(RAW+i)}")
        for i in range(8): I(f"v_mul_f32 {vr(RAW+i)}, {vr(RAW+i)}, {vr(ST)}")
        for i in range(4): I(f"v_cvt_pk_bf16_f32 {vr(Q+i)}, {vr(RAW+2*i)}, {vr(RAW+2*i+1)}")
        self.site("Q1", ("eq", 1))
        self.label("L_QK")
        self.stamp("Qok")
        T = None
        S = 24
        VT = self.VT
        P0, P1 = 40, 42
        M0, M1, TM, TR, LP = 25, 33, 29, 30, 31
        def softmax_ops(Sa, Sb, M, P, row, t1, t2, t3):
            ops = [f"v_permlane32_swap_b32 {vr(Sa)}, {vr(Sb)}",
                   f"v_add_f32 {vr(Sa)}, {vr(Sa)}, {vr(Sb)}",
                   f"v_max_f32_dpp {vr(M)}, {vr(Sa)}, {vr(Sa)} row_ror:8 {DPP}"]
            for rr in (4, 2, 1): ops.append(f"v_max_f32_dpp {vr(M)}, {vr(M)}, {vr(M)} row_ror:{rr} {DPP}")
            ops += [f"v_mov_b32 {vr(t1)}, {vr(M)}", f"v_permlane16_swap_b32 {vr(M)}, {vr(t1)}", f"v_max_f32 {vr(M)}, {vr(M)}, {vr(t1)}",
                    f"v_mov_b32 {vr(t1)}, {vr(M)}", f"v_permlane32_swap_b32 {vr(M)}, {vr(t1)}", f"v_max_f32 {vr(M)}, {vr(M)}, {vr(t1)}",
                    f"v_mul_f32 {vr(M)}, {sr(sC)}, {vr(M)}",
                    f"v_fma_f32 {vr(Sa)}, {vr(Sa)}, {sr(sC)}, -{vr(M)}",
                    f"v_exp_f32 {vr(Sa)}, {vr(Sa)}",
                    f"v_mov_b32_dpp {vr(t1)}, {vr(Sa)} quad_perm:[1,1,3,3] {DPP}",
                    f"v_cvt_pk_bf16_f32 {vr(t1)}, {vr(Sa)}, {vr(t1)}",
                    f"v_mov_b32_dpp {vr(t2)}, {vr(t1)} quad_perm:[2,2,2,2] {DPP}"]
            if row == 0:
                ops += [f"v_cndmask_b32 {vr(P)}, 0, {vr(t1)}, {sr(mI0,2)}", f"v_cndmask_b32 {vr(P+1)}, 0, {vr(t2)}, {sr(mI0,2)}"]
            else:
                ops += [f"v_mov_b32_dpp {vr(t3)}, {vr(t1)} quad_perm:[0,0,0,0] {DPP}",
                        f"v_cndmask_b32 {vr(P)}, 0, {vr(t3)}, {sr(mI1,2)}", f"v_cndmask_b32 {vr(P+1)}, 0, {vr(t2)}, {sr(mI1,2)}"]
            return ops
        vt_reads = self.vt_reads
        def qk_block(Tt):
            kb = KBASE[Tt]
            def half(tiles, fill):
                for cc in range(8):
                    for u in range(2):
                        for tl in tiles:
                            c = "0" if (cc == 0 and u == 0) else vr(S+4*tl, 4)
                            I(f"v_mfma_f32_4x4x4_16b_bf16 {vr(S+4*tl,4)}, {vr(Q+2*u,2)}, {ar(kb+32*tl+4*cc+2*u,2)}, {c} cbsz:3 abid:{cc}")
                            self.slot(fill)
            f0 = vt_reads(Tt, 0)
            half((0, 1), f0)
            f0 += softmax_ops(24, 28, 25, P0, 0, 26, 27, None)
            half((2, 3), f0)
            for x in f0: I(x)
        self.both_T("QK", qk_block)
        self.stamp("SM")
        self.site("PV", ("lt", 2))
        self.stamp("Vok")
        OL, OH = 64, 68
        F0, F1, MW, LW = 26, 27, 28, 29
        def pv_block(Tt):
            def src(n): return VBASE[Tt] + 4 * n if n < NVREG else VT + 4 * ((n - NVREG) % 5)
            def mm(n, first, fill):
                J, b = n >> 4, n & 15
                Pp = P0 if J == 0 else P1
                c = "0" if first else vr(OL, 4)
                I(f"v_mfma_f32_4x4x4_16b_bf16 {vr(OL,4)}, {vr(Pp,2)}, {vr(src(n),2)}, {c} cbsz:4 abid:{b}")
                self.slot(fill)
                c = "0" if first else vr(OH, 4)
                I(f"v_mfma_f32_4x4x4_16b_bf16 {vr(OH,4)}, {vr(Pp,2)}, {vr(src(n)+2,2)}, {c} cbsz:4 abid:{b}")
                self.slot(fill)
            f1 = softmax_ops(32, 36, 33, P1, 1, 34, 35, 37)
            for n in range(16): mm(n, n == 0, f1)
            for x in f1: I(x)
            f2 = [f"v_max_f32 {vr(MW)}, v25, v33", f"v_sub_f32 {vr(F0)}, v25, {vr(MW)}", f"v_sub_f32 {vr(F1)}, v33, {vr(MW)}",
                  f"v_exp_f32 {vr(F0)}, {vr(F0)}", f"v_exp_f32 {vr(F1)}, {vr(F1)}",
                  f"v_mul_f32 {vr(LW)}, {vr(F0)}, v24", f"v_fmac_f32 {vr(LW)}, {vr(F1)}, v32"]
            f3 = []
            for rr in (8, 4, 2, 1): f3.append(f"v_add_f32_dpp {vr(LW)}, {vr(LW)}, {vr(LW)} row_ror:{rr} {DPP}")
            f3 += [f"v_mov_b32 v30, {vr(LW)}", f"v_permlane16_swap_b32 {vr(LW)}, v30", f"v_add_f32 {vr(LW)}, {vr(LW)}, v30",
                   f"v_mov_b32 v30, {vr(LW)}", f"v_permlane32_swap_b32 {vr(LW)}, v30", f"v_add_f32 {vr(LW)}, {vr(LW)}, v30"]
            I("s_waitcnt lgkmcnt(0)")
            f2 += f3[:2]; f3 = f3[2:]
            for n in range(22, 27): mm(n, False, f2)
            rd = vt_reads(Tt, 5)
            f4 = rd + f2
            for n in range(16, 22): mm(n, False, f4)
            nrd_left = len([x for x in f4 if x.startswith("ds_read")])
            rest = []
            for x in f4:
                if x.startswith("ds_read"): I(x)
                else: rest.append(x)
            f5 = rest + f3
            for n in range(27, 32):
                I(f"s_waitcnt lgkmcnt({0 if self.profile else 2*(31-n)})")
                mm(n, False, f5)
            for x in f5: I(x)
        self.both_T("PV", pv_block)
        I(f"s_lshl_b32 {sr(sT)}, {sr(sV)}, 9"); I(f"s_add_u32 {sr(sT)}, {sr(sT)}, {OB}"); I(f"v_add_u32 v40, {sr(sT)}, {vr(vL4)}")
        I(f"s_lshl_b32 {sr(sT)}, {sr(sV)}, 3"); I(f"s_add_u32 {sr(sT)}, {sr(sT)}, {MB}"); I(f"v_mov_b32 v41, {sr(sT)}")
        I("s_mov_b64 exec, 1")
        I(f"ds_write_b64 v41, v[{MW}:{MW+1}]")
        I("s_mov_b64 exec, -1")
        I(f"v_mul_f32 v30, {vr(F0)}, {vr(OL)}"); I(f"v_mul_f32 v31, {vr(F0)}, {vr(OH)}")
        I(f"v_fmac_f32 v30, {vr(F1)}, {vr(OL+1)}"); I(f"v_fmac_f32 v31, {vr(F1)}, {vr(OH+1)}")
        I("ds_write_b32 v40, v30"); I("ds_write_b32 v40, v31 offset:256")
        I(f"v_lshlrev_b32 v42, 3, {vr(vLane)}"); I(f"v_add_u32 v42, {OB}, v42"); I(f"v_mov_b32 v43, {MB}")
        self.stamp("PV")
        I("s_waitcnt lgkmcnt(0)")
        I("s_barrier")
        self.stamp("Obar")
        self.wo_reads()
        I(f"s_cmp_lg_u32 {sr(sV)}, 0"); I("s_cbranch_scc1 L_CB")
        I("ds_read_b128 v[24:27], v43"); I("ds_read_b128 v[28:31], v43 offset:16")
        for w in range(4): I(f"ds_read_b64 v[{32+2*w}:{33+2*w}], v42 offset:{512*w}")
        I(f"s_waitcnt lgkmcnt({0 if self.profile else 4})")
        I("v_max3_f32 v44, v24, v26, v28"); I("v_max_f32 v44, v44, v30")
        I("v_sub_f32 v24, v24, v44"); I("v_sub_f32 v26, v26, v44"); I("v_sub_f32 v28, v28, v44"); I("v_sub_f32 v30, v30, v44")
        I("v_exp_f32 v24, v24"); I("v_exp_f32 v26, v26"); I("v_exp_f32 v28, v28"); I("v_exp_f32 v30, v30")
        I("v_mul_f32 v45, v24, v25"); I("v_fmac_f32 v45, v26, v27"); I("v_fmac_f32 v45, v28, v29"); I("v_fmac_f32 v45, v30, v31")
        I("s_waitcnt lgkmcnt(0)")
        I("v_rcp_f32 v46, v45")
        I("v_mul_f32 v48, v24, v32"); I("v_mul_f32 v49, v24, v33")
        I("v_fmac_f32 v48, v26, v34"); I("v_fmac_f32 v49, v26, v35")
        I("v_fmac_f32 v48, v28, v36"); I("v_fmac_f32 v49, v28, v37")
        I("v_fmac_f32 v48, v30, v38"); I("v_fmac_f32 v49, v30, v39")
        I("v_log_f32 v47, v45")
        I("v_mul_f32 v48, v48, v46"); I("v_mul_f32 v49, v49, v46")
        I("v_cvt_pk_bf16_f32 v48, v48, v49")
        I("v_add_f32 v47, v47, v44")
        I("v_mov_b32 v50, 0")
        I(f"s_cmp_lg_u32 {sr(sFast)}, 0"); I("s_cbranch_scc1 L_CBF")
        I(f"buffer_store_dword v48, {vr(vOpub)}, {sr(SRD['WS'],4)}, {sr(sOs)} offen sc1")
        I("s_mov_b64 exec, 1")
        I(f"buffer_store_dword v47, v50, {sr(SRD['WS'],4)}, {sr(sLpub)} offen sc1")
        I("s_branch L_CBE")
        self.label("L_CBF")
        I(f"buffer_store_dword v48, {vr(vOpub)}, {sr(SRD['WS'],4)}, {sr(sOs)} offen")
        I("s_mov_b64 exec, 1")
        I(f"buffer_store_dword v47, v50, {sr(SRD['WS'],4)}, {sr(sLpub)} offen")
        self.label("L_CBE")
        I("s_mov_b64 exec, -1")
        self.label("L_CB")
        self.stamp("Opub")
        def b_spec():
            I("s_waitcnt lgkmcnt(0)")
            for k in range(4):
                c = "0" if k == 0 else vr(DY, 4)
                I(f"v_mfma_f32_16x16x32_bf16 {vr(DY,4)}, {vr(W2+4*k,4)}, {vr(O_+4*k,4)}, {c}")
        self.hop("B", self.b_issue, self.b_check, b_spec, shadow_fn=self.bookkeeping, site=("eq", 0))
        self.stamp("Bok")
        I(f"v_mov_b32_dpp v41, {vr(LS)} quad_perm:[1,0,3,2] {DPP}")
        I(f"v_max_f32 v41, v41, {vr(LS)}")
        I(f"v_mov_b32_dpp v42, v41 quad_perm:[2,3,0,1] {DPP}")
        I("v_max_f32 v41, v41, v42")
        I(f"v_sub_f32 v41, {vr(LS)}, v41")
        I("v_exp_f32 v41, v41")
        I(f"v_add_f32_dpp v42, v41, v41 quad_perm:[1,0,3,2] {DPP}")
        I(f"v_add_f32_dpp v42, v42, v42 quad_perm:[2,3,0,1] {DPP}")
        I("v_rcp_f32 v42, v42")
        I("v_mul_f32 v41, v41, v42")
        for i in range(4): I(f"v_mul_f32 {vr(DY+i)}, {vr(DY+i)}, v41")
        for i in range(4): I(f"v_add_f32_dpp {vr(DY+i)}, {vr(DY+i)}, {vr(DY+i)} quad_perm:[1,0,3,2] {DPP}")
        for i in range(4): I(f"v_add_f32_dpp {vr(DY+i)}, {vr(DY+i)}, {vr(DY+i)} quad_perm:[2,3,0,1] {DPP}")
        I(f"s_mov_b64 exec, {sr(mJ04,2)}")
        I(f"buffer_store_dwordx4 {vr(DY,4)}, {vr(vYpub)}, {sr(SRD['WS'],4)}, {sr(sYpub)} offen sc1")
        I("s_mov_b64 exec, -1")
        self.stamp("Ypub")
        self.site("YL", ("eq", 0))
        I(f"s_cmp_lg_u32 {sr(sV)}, 0"); I("s_cbranch_scc1 L_C0")
        self.c_issue()
        self.label("L_C0")
        self.advance()
        self.wq_reads()
        self.prefill()
        I(f"s_cmp_lg_u32 {sr(sV)}, 0"); I("s_cbranch_scc1 L_CX")
        I("s_waitcnt vmcnt(0)")
        self.hop_tail("C", self.c_issue, self.c_check)
        self.stamp("Cok")
        Tm = 72
        for i in range(4): I(f"v_add_f32 {vr(Y+i)}, {vr(Y+i)}, {vr(Y+4+i)}")
        for i in range(4): I(f"v_add_f32 {vr(Y+8+i)}, {vr(Y+8+i)}, {vr(Y+12+i)}")
        for i in range(4): I(f"v_add_f32 {vr(Y+i)}, {vr(Y+i)}, {vr(Y+8+i)}")
        for i in range(4): I(f"v_add_f32_dpp {vr(Y+i)}, {vr(Y+i)}, {vr(Y+i)} row_ror:8 {DPP}")
        for i in range(4): I(f"v_mov_b32 v{Tm+i}, {vr(Y+i)}")
        for i in range(4): I(f"v_permlane16_swap_b32 {vr(Y+i)}, v{Tm+i}")
        for i in range(4): I(f"v_add_f32 {vr(Y+i)}, {vr(Y+i)}, v{Tm+i}")
        for i in range(4): I(f"v_mov_b32 v{Tm+i}, {vr(Y+i)}")
        for i in range(4): I(f"v_permlane32_swap_b32 {vr(Y+i)}, v{Tm+i}")
        for i in range(4): I(f"v_add_f32 {vr(Y+i)}, {vr(Y+i)}, v{Tm+i}")
        I(f"v_cvt_pk_bf16_f32 v60, {vr(Y)}, {vr(Y+1)}"); I(f"v_cvt_pk_bf16_f32 v61, {vr(Y+2)}, {vr(Y+3)}")
        I("v_lshlrev_b32 v62, 16, v60"); I("v_and_b32 v63, 0xffff0000, v60"); I("v_lshlrev_b32 v64, 16, v61"); I("v_and_b32 v65, 0xffff0000, v61")
        for i in range(4): I(f"v_add_f32 v{62+i}, v{62+i}, {vr(vXold+i)}")
        I("v_cvt_pk_bf16_f32 v60, v62, v63"); I("v_cvt_pk_bf16_f32 v61, v64, v65")
        I("s_mov_b64 exec, 0xff")
        self.pub2("x", lambda fl: f"buffer_store_dwordx2 v[60:61], v79, {sr(SRD['XDST'],4)}, 0 offen {fl}")
        I("s_mov_b64 exec, -1")
        I(f"v_lshlrev_b32 {vr(vXold)}, 16, v60"); I(f"v_and_b32 {vr(vXold+1)}, 0xffff0000, v60")
        I(f"v_lshlrev_b32 {vr(vXold+2)}, 16, v61"); I(f"v_and_b32 {vr(vXold+3)}, 0xffff0000, v61")
        self.stamp("Xpub")
        self.site("X1", ("eq", 0))
        self.label("L_CX")
        I(f"s_add_u32 {sr(sYpoll)}, {sr(sYpoll)}, {LAYER_STRIDE}")
        self.flush_stamps()
        I(f"s_add_u32 {sr(sL)}, {sr(sL)}, 1")
        I(f"s_cmp_lt_u32 {sr(sL)}, 4")
        I("s_cbranch_scc1 L_LOOP")

    def build(self):
        self.build_items()
        self.prologue()
        self.I("s_branch S_START")
        st0 = self.state()
        self.cur = self.main
        self.mainline()
        if self.profile:
            self.I("s_memrealtime s[94:95]"); self.I("s_memtime s[96:97]"); self.I("s_waitcnt lgkmcnt(0)")
            self.I(f"v_mov_b32 {vr(vStD)}, s94"); self.I(f"v_writelane_b32 {vr(vStD)}, s96, 1")
            self.I("s_mov_b64 exec, 3")
            self.I(f"buffer_store_dword {vr(vStD)}, {vr(vStA)}, {sr(SRD['WS'],4)}, 0 offen offset:768")
            self.I("s_mov_b64 exec, -1")
        self.label("L_END")
        self.I("s_endpgm")
        self.set_state(st0)
        (programs_rot if self.cfg.get('plan', 'rot') == 'rot' else programs)(self)
        hdr = [f"; @launch grid=(256,1,1) block=(256,1,1) lds={LDS_BYTES}", '.amdgcn_target "amdgcn-amd-amdhsa--gfx950"',
               ".text", f".globl {KNAME}", ".p2align 8", f".type {KNAME},@function", f"{KNAME}:"]
        tail = ['.section .rodata,"a"', ".p2align 6", f".amdhsa_kernel {KNAME}",
                "  .amdhsa_next_free_vgpr 512", "  .amdhsa_next_free_sgpr 102", "  .amdhsa_accum_offset 256",
                "  .amdhsa_group_segment_fixed_size 0", "  .amdhsa_kernarg_size 104", "  .amdhsa_user_sgpr_count 2",
                "  .amdhsa_user_sgpr_kernarg_segment_ptr 1", "  .amdhsa_system_sgpr_workgroup_id_x 1",
                "  .amdhsa_float_denorm_mode_32 3", ".end_amdhsa_kernel"]
        return "\n".join(hdr + self.main.lines + self.ool.lines + tail) + "\n"

BCQ = COMMON + 3200
def startup_check(G, skip_role=False):
    I = G.I
    lo = G.newlab("SCO"); lp = G.newlab("SCL"); dn = G.newlab("SCD")
    if not skip_role:
        I(f"s_cmp_lg_u32 {sr(sV)}, 0"); I(f"s_cbranch_scc1 {lo}")
        I(f"v_lshrrev_b32 v72, 1, {vr(vLane)}"); I("v_lshlrev_b32 v72, 6, v72")
        I(f"v_and_b32 v73, 1, {vr(vLane)}"); I("v_lshl_add_u32 v72, v73, 3, v72")
    I(f"s_mov_b32 {sr(sCnt)}, 0")
    if skip_role:
        I("v_sad_u8 v73, v74, 0, 0"); I("v_sad_u8 v73, v75, 0, v73")
        I("v_cmp_ne_u32 vcc, 32, v73"); I("s_and_b64 vcc, vcc, 0xff")
        I(f"s_cbranch_scc0 {dn}")
    G.label(lp)
    I("s_mov_b64 exec, 0xff")
    I(f"global_load_dwordx2 v[74:75], v72, {sr(sDBG,2)} sc1")
    I("s_mov_b64 exec, -1")
    I("s_waitcnt vmcnt(0)")
    I("v_sad_u8 v73, v74, 0, 0"); I("v_sad_u8 v73, v75, 0, v73")
    I("v_cmp_ne_u32 vcc, 32, v73"); I("s_and_b64 vcc, vcc, 0xff")
    I(f"s_cbranch_scc0 {dn}")
    I(f"s_add_u32 {sr(sCnt)}, {sr(sCnt)}, 1")
    I(f"s_cmp_lt_u32 {sr(sCnt)}, {G.cfg.get('spin', 40000)}")
    I(f"s_cbranch_scc1 {lp}")
    G.label(dn)
    I(f"v_readlane_b32 {sr(sT2)}, v74, {sr(sG)}")
    I(f"v_readlane_b32 {sr(sT3)}, v75, {sr(sG)}")
    I(f"s_lshl_b32 {sr(sT)}, {sr(sXcc)}, 3")
    I(f"s_lshr_b64 s[{sT2}:{sT3}], s[{sT2}:{sT3}], {sr(sT)}")
    I(f"s_and_b32 {sr(sT2)}, {sr(sT2)}, 0xff")
    I(f"s_cmp_eq_u32 {sr(sT2)}, 32")
    I(f"s_cselect_b32 {sr(sT2)}, {0 if G.cfg.get('force_slow') else 1}, 0")
    I(f"v_mov_b32 v72, {COMMON + FLG_OFF}"); I(f"v_mov_b32 v73, {sr(sT2)}")
    I("ds_write_b32 v72, v73"); I("s_waitcnt lgkmcnt(0)")
    G.label(lo)

def arrive(G):
    I = G.I
    assert "clear" not in G.vmq
    l = G.newlab("ARR")
    I(f"s_cmp_lg_u32 {sr(sV)}, 3"); I(f"s_cbranch_scc1 {l}")
    I(f"s_lshl_b32 {sr(sT)}, {sr(sXcc)}, 3")
    I(f"s_lshl_b64 s[76:77], 1, {sr(sT)}")
    I("v_mov_b32 v72, s76"); I("v_mov_b32 v73, s77")
    I(f"s_lshr_b32 {sr(sT)}, {sr(sG)}, 1"); I(f"s_lshl_b32 {sr(sT)}, {sr(sT)}, 6")
    I(f"s_and_b32 s76, {sr(sG)}, 1"); I("s_lshl_b32 s76, s76, 3"); I(f"s_add_u32 {sr(sT)}, {sr(sT)}, s76")
    I(f"v_mov_b32 v74, {sr(sT)}")
    I("s_mov_b64 exec, 1")
    I(f"global_atomic_add_x2 v74, v[72:73], {sr(sDBG,2)}")
    I("s_mov_b64 exec, -1")
    G.label(l)

def read_flag(G):
    I = G.I
    I(f"v_mov_b32 v72, {COMMON + FLG_OFF}"); I("ds_read_b32 v73, v72"); I("s_waitcnt lgkmcnt(0)")
    I(f"v_readfirstlane_b32 {sr(sFast)}, v73")

def colsum_publish(G):
    I = G.I
    I(f"v_and_b32 v72, 0x7ff, {vr(vQpub)}")
    I(f"s_sub_u32 {sr(sT)}, {sr(sQs)}, {QS_OFF}"); I(f"s_lshr_b32 {sr(sT2)}, {sr(sH)}, 0")
    I(f"s_lshl_b32 {sr(sT2)}, {sr(sH)}, 11"); I(f"s_sub_u32 {sr(sT)}, {sr(sT)}, {sr(sT2)}"); I(f"s_add_u32 {sr(sT)}, {sr(sT)}, {CS_OFF}")
    I("s_mov_b32 exec_lo, 0x00040004"); I("s_mov_b32 exec_hi, 0x00040004")
    G.vm("cspub", f"buffer_store_dwordx4 v[56:59], v72, {sr(SRD['WS'],4)}, {sr(sT)} offen sc1")
    I("s_mov_b64 exec, -1")

def cs_soff(G):
    I = G.I
    I(f"s_sub_u32 {sr(sT)}, {sr(sQs)}, {QS_OFF}"); I(f"s_lshl_b32 {sr(sT2)}, {sr(sH)}, 11"); I(f"s_sub_u32 {sr(sT)}, {sr(sT)}, {sr(sT2)}"); I(f"s_add_u32 {sr(sT)}, {sr(sT)}, {CS_OFF}")
def cs_issue(G, track):
    cs_soff(G)
    for e in range(2):
        t = f"buffer_load_dwordx4 {vr(44+4*e,4)}, {vr(vL16)}, {sr(SRD['WS'],4)}, {sr(sT)} offen offset:{1024*e} sc1"
        G.vm("pollA", t) if track else G.I(t)
def colsum_finish(G):
    I = G.I
    lp = G.newlab("CSL"); dn = G.newlab("CSD")
    I(f"s_mov_b32 {sr(sCnt)}, 0")
    G.label(lp)
    G.chk(range(44, 52), 52, 53)()
    I(f"s_cbranch_scc0 {dn}")
    cs_issue(G, False)
    I("s_waitcnt vmcnt(0)")
    I(f"s_add_u32 {sr(sCnt)}, {sr(sCnt)}, 1"); I(f"s_cmp_lt_u32 {sr(sCnt)}, {G.cfg.get('spin', 40000)}"); I(f"s_cbranch_scc1 {lp}")
    G.label(dn)
    for i in range(8): I(f"v_add_f32_dpp {vr(44+i)}, {vr(44+i)}, {vr(44+i)} quad_perm:[1,0,3,2] {DPP}")
    for i in range(8): I(f"v_add_f32_dpp {vr(44+i)}, {vr(44+i)}, {vr(44+i)} quad_perm:[2,3,0,1] {DPP}")
    I("s_waitcnt lgkmcnt(0)")
    I(f"s_mov_b64 exec, {sr(mI0,2)}")
    I(f"ds_write_b128 {vr(vCsRd)}, v[44:47]"); I(f"ds_write_b128 {vr(vCsRd)}, v[48:51] offset:16")
    I("s_mov_b64 exec, -1")
    for i in range(8): I(f"v_mov_b32 {vr(34+i)}, {vr(44+i)}")
    I("s_waitcnt lgkmcnt(0)")

BC, BC2 = OB, COMMON + 3136

def poll_loop(G, iss, chk):
    I = G.I
    lp = G.newlab("PL"); dn = G.newlab("PD")
    I(f"s_mov_b32 {sr(sCnt)}, 0")
    G.label(lp)
    iss()
    I("s_waitcnt vmcnt(0)")
    chk()
    I(f"s_cbranch_scc0 {dn}")
    I(f"s_add_u32 {sr(sCnt)}, {sr(sCnt)}, 1"); I(f"s_cmp_lt_u32 {sr(sCnt)}, {G.cfg.get('spin', 40000)}"); I(f"s_cbranch_scc1 {lp}")
    G.label(dn)
    G.vmq = []

def set_flag(G, n):
    I = G.I
    I("s_waitcnt lgkmcnt(0)")
    I(f"v_mov_b32 v72, {COMMON + HOP_OFF}"); I(f"v_mov_b32 v73, {n}")
    I("s_mov_b64 exec, 1"); I("ds_write_b32 v72, v73"); I("s_mov_b64 exec, -1")

def flag_check(G, n):
    I = G.I
    I(f"v_mov_b32 v72, {COMMON + HOP_OFF}"); I("ds_read_b32 v73, v72"); I("s_waitcnt lgkmcnt(0)")
    I(f"v_readfirstlane_b32 {sr(sT)}, v73"); I(f"s_cmp_lt_u32 {sr(sT)}, {n}")

def s_wait(G, n, steps, chunk, depth):
    I = G.I
    rest = [G.newlab("SW") for _ in range(steps + 1)]
    chunks = []; first = None
    for k in range(steps):
        G.wait_out(max(depth - chunk, 0))
        if first is None: first = list(G.vmq)
        chunks.append(G.issue(chunk))
        flag_check(G, n)
        I(f"s_cbranch_scc0 {rest[k+1]}")
    lp = G.newlab("SWL"); dn = G.newlab("SWD")
    I(f"s_mov_b32 {sr(sCnt)}, 0")
    G.label(lp)
    flag_check(G, n)
    I(f"s_cbranch_scc0 {dn}")
    I(f"s_add_u32 {sr(sCnt)}, {sr(sCnt)}, 1"); I(f"s_cmp_lt_u32 {sr(sCnt)}, {4 * G.cfg.get('spin', 40000)}"); I(f"s_cbranch_scc1 {lp}")
    I(f"s_branch {dn}")
    save = G.state()
    seen = list(G.vmq)
    for k in range(1, steps):
        G.label(rest[k])
        for it in chunks[k]: G.emit_item(it)
    G.label(rest[steps])
    G.label(dn)
    G.set_state(save)
    allc = [it for ch in chunks for it in ch]
    G.vmq = (first + allc) if chunks else seen


def programs(G):
    c = G.cfg; I = G.I
    dA = c.get("dA", 24); dS = c.get("dS", 10); ch = c.get("ch", 2)
    allW = lambda m, T: all(G.landed(("W", m, T, k)) for k in range(4))
    G.block("S_START")
    G.bg_until(lambda: allW("q", "A"), depth=dA, allow=())
    G.issue(max(c.get("d0", 32) - len(G.vmq), 0))
    startup_check(G)
    I("s_barrier")
    read_flag(G)
    G.need("x0"); G.need("xold")
    I(f"v_and_b32 {vr(vXold+3)}, 0xffff0000, {vr(vXold+1)}"); I(f"v_lshlrev_b32 {vr(vXold+2)}, 16, {vr(vXold+1)}")
    I(f"v_and_b32 {vr(vXold+1)}, 0xffff0000, {vr(vXold)}"); I(f"v_lshlrev_b32 {vr(vXold)}, 16, {vr(vXold)}")
    G.wq_reads()
    G.jump("C_D")
    G.block("S_A0")
    I(f"s_cmp_eq_u32 {sr(sL)}, 0"); I("s_cbranch_scc0 S_A0_1")
    colsum_publish(G)
    G.bg_until(lambda: G.kdone["A"] == 4, depth=dA)
    cs_issue(G, True)
    n0 = len(G.vmq)
    G.a_issue(); G.vmq += ["pollA"] * 3
    G.issue(c.get("aA_after", 8))
    G.need("pollA")
    I("s_waitcnt lgkmcnt(0)")
    colsum_finish(G)
    G.jump("C_A")
    G.block("S_PV")
    I(f"s_cmp_eq_u32 {sr(sL)}, 0"); I("s_cbranch_scc0 S_PV_1")
    I("s_waitcnt lgkmcnt(0)")
    lastA = max(G.items.index(("V", "A", 31)), G.items.index(("W", "q", "B", 3)), G.items.index(("W", "o", "A", 3)))
    G.bg_until(lambda: G.next_item > lastA, depth=dA)
    G.bg_until(lambda: G.vdone["A"] == NVREG and G.landed(("V", "A", 31)) and allW("o", "A") and allW("q", "B"), depth=dS, chunk=ch)
    for x in G.vt_reads("A", 0): I(x)
    G.jump("R_PV")
    common = G.state()
    ws = {}
    def seg(n):
        tgt = min(G.next_item + n, len(G.items))
        G.bg_until(lambda: G.next_item >= tgt or not G.can_issue(G.items[G.next_item]) and G.kdone["B"] == 4, depth=dS, chunk=ch)
    def transition():
        G.flush_stamps()
        G.advance()
        I(f"s_add_u32 {sr(sYpoll)}, {sr(sYpoll)}, {LAYER_STRIDE}")
        I(f"s_add_u32 {sr(sL)}, {sr(sL)}, 1")
    def finish(have_q):
        G.bg_until(lambda: G.kdone["B"] == 4 and G.next_item == len(G.items), depth=c.get("dF", 12), chunk=c.get("chF", 4))
        if not have_q:
            lp = G.newlab("QW"); dn = G.newlab("QD")
            I(f"s_mov_b32 {sr(sCnt)}, 0")
            G.label(lp)
            flag_check(G, 1)
            I(f"s_cbranch_scc0 {dn}")
            I(f"s_add_u32 {sr(sCnt)}, {sr(sCnt)}, 1"); I(f"s_cmp_lt_u32 {sr(sCnt)}, {8 * c.get('spin', 40000)}"); I(f"s_cbranch_scc1 {lp}")
            G.label(dn)
            I(f"v_lshrrev_b32 v68, 2, {vr(vLane)}"); I("v_lshlrev_b32 v68, 4, v68"); I(f"v_add_u32 v68, {BCQ}, v68")
            I("ds_read_b128 v[76:79], v68")
            I("s_waitcnt lgkmcnt(0)")
        G.jump("L_QK")
    G.block("S_B")
    I(f"s_cmp_eq_u32 {sr(sV)}, 1"); I("s_cbranch_scc1 P_W1")
    I(f"s_cmp_eq_u32 {sr(sV)}, 2"); I("s_cbranch_scc1 P_W2")
    I(f"s_cmp_eq_u32 {sr(sV)}, 3"); I("s_cbranch_scc1 P_W3")
    G.set_state(common)
    seg(c.get("n0", 8))
    G.bookkeeping()
    G.advance()
    I("s_waitcnt lgkmcnt(0)")
    poll_loop(G, G.c_issue, G.c_check)
    G.jump("K_C")
    G.block("S_X1")
    G.flush_stamps()
    I(f"s_add_u32 {sr(sYpoll)}, {sr(sYpoll)}, {LAYER_STRIDE}")
    I(f"s_add_u32 {sr(sL)}, {sr(sL)}, 1")
    finish(False)
    ws[0] = G.state()
    G.block("P_W1")
    G.set_state(common)
    poll_loop(G, G.b_issue, G.b_check)
    I(f"s_mov_b32 {sr(sK)}, 0")
    G.jump("C_B")
    G.block("S_YL")
    I(f"s_add_u32 {sr(sK)}, {sr(sK)}, 1")
    I(f"s_cmp_eq_u32 {sr(sK)}, 3"); I(f"s_cselect_b32 {sr(sT)}, -3, 1")
    I(f"s_lshl_b32 {sr(sT2)}, {sr(sT)}, 12"); I(f"s_add_u32 {sr(sYpub)}, {sr(sYpub)}, {sr(sT2)}")
    I(f"s_lshl_b32 {sr(sT2)}, {sr(sT)}, 5"); I(f"v_add_u32 {vr(vWRd)}, {sr(sT2)}, {vr(vWRd)}")
    I(f"s_cmp_eq_u32 {sr(sK)}, 4"); I("s_cbranch_scc1 P_W1B")
    G.wo_reads()
    G.jump("C_B")
    G.label("P_W1B")
    G.bookkeeping()
    transition()
    finish(False)
    ws[1] = G.state()
    G.block("P_W2")
    G.set_state(common)
    seg(c.get("n2", 20))
    G.bookkeeping()
    transition()
    G.prefill()
    G.wq_reads()
    poll_loop(G, G.d_issue, G.d_check)
    I(f"s_mov_b32 {sr(sK)}, 0")
    I(f"s_mov_b32 {sr(mStat)}, 3")
    G.jump("C_D")
    G.block("S_A0_1")
    colsum_publish(G)
    I(f"s_mov_b32 {sr(mStat)}, 0")
    I(f"s_add_u32 {sr(sK)}, {sr(sK)}, 1")
    I(f"s_cmp_eq_u32 {sr(sK)}, 2"); I(f"s_cselect_b32 {sr(sT)}, -3, 1")
    I(f"s_lshl_b32 {sr(sT2)}, {sr(sT)}, 7"); I(f"v_add_u32 {vr(vQpub)}, {sr(sT2)}, {vr(vQpub)}")
    I(f"s_lshl_b32 {sr(sT2)}, {sr(sT)}, 5"); I(f"v_add_u32 {vr(vWRd)}, {sr(sT2)}, {vr(vWRd)}")
    I(f"s_cmp_eq_u32 {sr(sK)}, 4"); I("s_cbranch_scc1 P_W2B")
    G.wq_reads()
    G.jump("C_D")
    G.label("P_W2B")
    G.vmq = []
    finish(False)
    ws[2] = G.state()
    G.block("P_W3")
    G.set_state(common)
    seg(c.get("n3", 30))
    G.bookkeeping()
    transition()
    def iss3():
        cs_issue(G, False); G.a_issue()
    poll_loop(G, iss3, G.chk(list(range(24, 34)) + list(range(44, 52)), 69, 70))
    colsum_finish(G)
    G.jump("C_A")
    G.block("S_Q1")
    I(f"v_lshrrev_b32 v68, 2, {vr(vLane)}"); I("v_lshlrev_b32 v68, 4, v68"); I(f"v_add_u32 v68, {BCQ}, v68")
    I(f"s_mov_b64 exec, {sr(mI0,2)}")
    I("ds_write_b128 v68, v[76:79]")
    I("s_mov_b64 exec, -1")
    set_flag(G, 1)
    finish(True)
    ws[3] = G.state()
    G.block("S_PV_1")
    I("s_waitcnt lgkmcnt(0)")
    labs = [G.newlab("PV1") for _ in range(4)]
    for w in (1, 2, 3):
        I(f"s_cmp_eq_u32 {sr(sV)}, {w}"); I(f"s_cbranch_scc1 {labs[w]}")
    for w in range(4):
        G.label(labs[w])
        G.set_state(ws[w])
        G.bg_until(lambda: G.vdone["B"] == NVREG and not G.vmq, depth=16)
        assert G.next_item == len(G.items) and G.kdone == {"A": 4, "B": 4} and G.vdone == {"A": NVREG, "B": NVREG}
        for x in G.vt_reads("B", 0): I(x)
        G.jump("R_PV")


def programs_rot(G):
    c = G.cfg; I = G.I
    dA = c.get("dA", 24); dS = c.get("dS", 10); ch = c.get("ch", 2); d1 = c.get("d1", 16)
    w_after = c.get("w_after", False)
    allW = lambda m, T: all(G.landed(("W", m, T, k)) for k in range(4))
    BC, BC2 = OB, COMMON + 3136
    G.block("S_START")
    G.bg_until(lambda: allW("q", "A"), depth=dA, allow=())
    G.issue(max(c.get("d0", 32) - len(G.vmq), 0))
    startup_check(G)
    I("s_barrier")
    read_flag(G)
    G.need("x0"); G.need("xold")
    I(f"v_and_b32 {vr(vXold+3)}, 0xffff0000, {vr(vXold+1)}"); I(f"v_lshlrev_b32 {vr(vXold+2)}, 16, {vr(vXold+1)}")
    I(f"v_and_b32 {vr(vXold+1)}, 0xffff0000, {vr(vXold)}"); I(f"v_lshlrev_b32 {vr(vXold)}, 16, {vr(vXold)}")
    G.wq_reads()
    G.jump("C_D")
    G.block("S_A0")
    I(f"s_cmp_eq_u32 {sr(sL)}, 0"); I("s_cbranch_scc0 S_A0_1")
    colsum_publish(G)
    G.bg_until(lambda: G.kdone["A"] == 4, depth=dA)
    cs_issue(G, True)
    G.a_issue(); G.vmq += ["pollA"] * 3
    G.bg_until(lambda: G.vdone["A"] >= c.get("vA_pre", 15) and "pollA" not in G.vmq, depth=dA)
    I("s_waitcnt lgkmcnt(0)")
    colsum_finish(G)
    G.jump("C_A")
    G.block("S_PV")
    I(f"s_cmp_eq_u32 {sr(sL)}, 0"); I("s_cbranch_scc0 S_PV_1")
    I("s_waitcnt lgkmcnt(0)")
    lastA = max(G.items.index(("V", "A", 31)), G.items.index(("W", "q", "B", 3)), G.items.index(("W", "o", "A", 3)))
    G.bg_until(lambda: G.next_item > lastA, depth=dA)
    if w_after:
        G.bg_until(lambda: G.vdone["A"] == NVREG and G.landed(("V", "A", 31)), depth=max(dS, 10), chunk=ch)
    else:
        G.bg_until(lambda: G.vdone["A"] == NVREG and G.landed(("V", "A", 31)) and allW("o", "A") and allW("q", "B"), depth=dS, chunk=ch)
    for x in G.vt_reads("A", 0): I(x)
    G.jump("R_PV")
    def s_relayout(limit_item):
        doneK, doneV = [], []
        while True:
            t = G.kdone["B"]
            if t < 4 and G.items.index(("K", "B", 8*t+7)) < limit_item and all(G.landed(("K", "B", 8*t+i)) for i in range(8)):
                G.k_relayout("B", t); doneK.append(t); continue
            n0 = G.vdone["B"]; grp = list(range(n0, min(n0 + 3, NVREG)))
            if grp and G.items.index(("V", "B", grp[-1])) < limit_item and all(G.landed(("V", "B", n)) for n in grp):
                G.v_relayout("B", grp); doneV.append(grp); continue
            break
        return doneK, doneV
    def pay(d):
        keep = G.state()
        lds_items = any(it[0] == "V" and it[1] == "B" and it[2] >= NVREG for it in d["items"])
        if not lds_items:
            for it in d["items"]: G.emit_item(it)
        for t in d["K"]:
            G.kdone["B"] = t; G.k_relayout("B", t)
        for grp in d["V"]:
            G.vdone["B"] = grp[0]; G.v_relayout("B", grp)
        if lds_items:
            G.kdone = dict(keep[2]); G.kdone["B"] = 4
            for it in d["items"]: G.emit_item(it)
        G.set_state(keep)
        I(f"s_waitcnt vmcnt({min(len(G.vmq), 63)})")
    def s_part(n, pre, steps):
        start = G.next_item; dK, dV = [], []
        for _ in range(pre):
            G.wait_out(max(dS - ch, 0)); G.issue(ch)
            a, b = s_relayout(start); dK += a; dV += b
        if n: s_wait(G, n, steps, ch, dS)
        return dict(items=G.items[start:G.next_item], K=dK, V=dV)
    G.block("S_B")
    I(f"s_cmp_eq_u32 {sr(sV)}, 1"); I("s_cbranch_scc1 P_B")
    dB = s_part(1, c.get("preB", 0), c.get("nB", 5))
    G.need(("W", "q", "B", 3))
    G.label("J_B")
    I(f"v_add_u32 v46, {BC}, {vr(vOoff)}"); I(f"v_add_u32 v47, {BC2}, {vr(vLoff)}")
    I("s_waitcnt lgkmcnt(0)")
    I(f"s_mov_b64 exec, {sr(mJ8,2)}")
    for k in range(4): I(f"ds_read_b128 {vr(24+4*k,4)}, v46 offset:{512*k}")
    I("ds_read_b32 v40, v47")
    I("s_mov_b64 exec, -1")
    I("s_waitcnt lgkmcnt(0)")
    I("s_barrier")
    if w_after: G.wo_reads()
    G.bookkeeping()
    G.jump("C_B")
    stB = G.state()
    G.block("P_B")
    def issB():
        I(f"buffer_load_dwordx4 v[24:27], {vr(vL16)}, {sr(SRD['WS'],4)}, {sr(sOs)} offen sc1")
        I(f"buffer_load_dwordx4 v[28:31], {vr(vL16)}, {sr(SRD['WS'],4)}, {sr(sOs)} offen offset:1024 sc1")
        I(f"buffer_load_dword v32, {vr(vLoff)}, {sr(SRD['WS'],4)}, {sr(sLpoll)} offen sc1")
    poll_loop(G, issB, G.chk(range(24, 33), 46, 47))
    I(f"v_add_u32 v46, {BC}, {vr(vL16)}"); I(f"v_add_u32 v47, {BC2}, {vr(vLoff)}")
    I("ds_write_b128 v46, v[24:27]"); I("ds_write_b128 v46, v[28:31] offset:1024"); I("ds_write_b32 v47, v32")
    set_flag(G, 1)
    G.jump("J_B")
    G.set_state(stB)
    G.block("S_YL")
    I(f"s_cmp_eq_u32 {sr(sV)}, 0"); I("s_cbranch_scc1 P_C")
    I(f"s_cmp_eq_u32 {sr(sV)}, 1"); I("s_cbranch_scc1 D_B")
    G.label("J_C")
    G.advance()
    dC = s_part(None, c.get("preC", 5), 0)
    G.cst_afterC = G.state()
    G.wq_reads(); G.prefill()
    G.flush_stamps()
    I(f"s_add_u32 {sr(sYpoll)}, {sr(sYpoll)}, {LAYER_STRIDE}"); I(f"s_add_u32 {sr(sL)}, {sr(sL)}, 1")
    I(f"s_cmp_eq_u32 {sr(sV)}, 2"); I("s_cbranch_scc1 P_D")
    G.label("J_DS")
    dD = s_part(2, c.get("preD", 3), c.get("nD", 5))
    G.label("J_D")
    I(f"s_and_b32 {sr(sT)}, {sr(sJ8)}, 3"); I(f"s_lshl_b32 {sr(sT)}, {sr(sT)}, 9"); I(f"s_sub_u32 {sr(sT)}, {BC}, {sr(sT)}")
    I(f"v_add_u32 v68, {sr(sT)}, {vr(vXoff)}")
    I("s_waitcnt lgkmcnt(0)")
    I(f"s_mov_b64 exec, {sr(mJ2,2)}")
    for k in range(4): I(f"ds_read_b128 {vr(24+4*k,4)}, v68 offset:{128*k}")
    I("s_mov_b64 exec, -1")
    I("s_waitcnt lgkmcnt(0)")
    I("s_barrier")
    G.jump("C_D")
    stD = G.state()
    G.block("D_B")
    G.set_state(stB); pay(dB); G.jump("J_C")
    G.block("P_C")
    G.advance()
    I("s_waitcnt lgkmcnt(0)")
    poll_loop(G, G.c_issue, G.c_check)
    G.jump("K_C")
    G.block("S_X1")
    G.flush_stamps()
    I(f"s_add_u32 {sr(sYpoll)}, {sr(sYpoll)}, {LAYER_STRIDE}"); I(f"s_add_u32 {sr(sL)}, {sr(sL)}, 1")
    G.wq_reads(); G.prefill()
    keep = G.state()
    G.set_state(after_C(G, stB, dC))
    if c.get("w0_late", True):
        assert not any(it[0] == "V" and it[1] == "B" and it[2] >= NVREG for it in dC["items"])
        for it in dC["items"]: G.emit_item(it)
        lp = G.newlab("W0L"); dn = G.newlab("W0D")
        I(f"s_mov_b32 {sr(sCnt)}, 0")
        G.label(lp)
        flag_check(G, 2)
        I(f"s_cbranch_scc0 {dn}")
        I(f"s_add_u32 {sr(sCnt)}, {sr(sCnt)}, 1"); I(f"s_cmp_lt_u32 {sr(sCnt)}, {8 * c.get('spin', 40000)}"); I(f"s_cbranch_scc1 {lp}")
        G.label(dn)
        G.jump("J_D")
    else:
        pay(dC); G.jump("J_DS")
    G.block("P_D")
    def issD():
        I(f"s_and_b32 {sr(sT)}, {sr(sJ8)}, 3"); I(f"s_lshl_b32 {sr(sT)}, {sr(sT)}, 9")
        I("s_mov_b32 exec_hi, 0")
        I(f"buffer_load_dwordx4 v[64:67], {vr(vL16)}, {sr(SRD['XSRC'],4)}, {sr(sT)} offen sc1")
        I("s_mov_b64 exec, -1")
    I("s_mov_b32 s76, -1"); I("s_mov_b32 s77, 0")
    poll_loop(G, issD, G.chk(range(64, 68), 69, 70, mask="s[76:77]"))
    I(f"v_add_u32 v68, {BC}, {vr(vL16)}")
    I("ds_write_b128 v68, v[64:67]")
    set_flag(G, 2)
    G.jump("J_D")
    G.set_state(stD)
    G.block("S_A0_1")
    colsum_publish(G)
    G.vmq = [x for x in G.vmq if x != "cspub"]
    I(f"s_cmp_eq_u32 {sr(sV)}, 3"); I("s_cbranch_scc1 P_A")
    I(f"s_cmp_eq_u32 {sr(sV)}, 2"); I("s_cbranch_scc1 D_D")
    if c.get("w0_late", True):
        I(f"s_cmp_eq_u32 {sr(sV)}, 0"); I("s_cbranch_scc1 D_0")
    G.label("J_A")
    dA_ = s_part(3, c.get("preA", 1), c.get("nA", 5))
    I(f"v_lshrrev_b32 v68, 2, {vr(vLane)}"); I("v_lshlrev_b32 v68, 4, v68"); I(f"v_add_u32 v68, {BCQ}, v68")
    I("ds_read_b128 v[76:79], v68")
    I("s_waitcnt lgkmcnt(0)")
    stA = G.state()
    G.label("J_F")
    G.bg_until(lambda: G.kdone["B"] == 4, depth=d1)
    G.jump("L_QK")
    stF = G.state()
    G.block("D_D")
    G.set_state(stD); G.vmq = [x for x in G.vmq if x != "cspub"]; pay(dD); G.jump("J_A")
    if c.get("w0_late", True):
        G.block("D_0")
        G.set_state(stD); G.vmq = [x for x in G.vmq if x != "cspub"]
        if not any(it[0] == "V" and it[1] == "B" and it[2] >= NVREG for it in dD["items"]):
            keep = G.state()
            for it in dD["items"]: G.emit_item(it)
            G.set_state(keep)
            I(f"s_waitcnt vmcnt({len(dD['items'])})")
            pay(dict(items=[], K=dC["K"] + dD["K"], V=dC["V"] + dD["V"]))
        else:
            I("s_waitcnt vmcnt(0)")
            pay(dict(items=[], K=dC["K"], V=dC["V"]))
            pay(dD)
        G.jump("J_A")
    G.block("P_A")
    def iss3():
        cs_issue(G, False); G.a_issue()
    poll_loop(G, iss3, G.chk(list(range(24, 34)) + list(range(44, 52)), 69, 70))
    colsum_finish(G)
    G.jump("C_A")
    G.block("S_Q1")
    I(f"v_lshrrev_b32 v68, 2, {vr(vLane)}"); I("v_lshlrev_b32 v68, 4, v68"); I(f"v_add_u32 v68, {BCQ}, v68")
    I(f"s_mov_b64 exec, {sr(mI0,2)}")
    I("ds_write_b128 v68, v[76:79]")
    I("s_mov_b64 exec, -1")
    set_flag(G, 3)
    G.set_state(stA); pay(dA_); G.jump("J_F")
    G.set_state(stF)
    G.block("S_PV_1")
    I("s_waitcnt lgkmcnt(0)")
    G.bg_until(lambda: G.vdone["B"] == NVREG and G.next_item == len(G.items) and not G.vmq, depth=d1)
    assert G.kdone == {"A": 4, "B": 4} and G.vdone == {"A": NVREG, "B": NVREG}
    for x in G.vt_reads("B", 0): I(x)
    G.jump("R_PV")

def after_C(G, stB, dC):
    return G.cst_afterC

def generate(cfg):
    G = Gen(cfg)
    return G.build(), G

if __name__ == "__main__":
    cfg = json.loads(sys.argv[2]) if len(sys.argv) > 2 else {}
    txt, G = generate(cfg)
    open(sys.argv[1], "w").write(txt)
    if cfg.get("profile"): json.dump(cfg.get("stamps", []), open(sys.argv[1] + ".stamps.json", "w"))
    print("lines", txt.count("\n"), "bytes", len(txt))
```

```python
import struct, sys, json
from emit import Stream, Ins

KNAME = "interleave_layers__sliding_block_cached__sliding_block_cached__decode_kernel"
def f2u(x): return struct.unpack("<I", struct.pack("<f", x))[0]

LAYER_STRIDE = 0x80000
XS_OFF   = 0x00000
LSE_OFF  = 0x04000
ST_OFF   = 0x04800
CS_OFF   = 0x08000
OS_OFF   = 0x18000
YS_OFF   = 0x28000
QS_OFF   = 0x48000
SLOT_BYTES = 4 * LAYER_STRIDE
PROF_OFF = 0x200000
WS_SRD_BYTES = 0x300000
WAVE_BLK = 23552
VL_OFF = {"A": 0, "B": 10240}
STG_OFF = 20480
KST_OFF = VL_OFF["B"]
W_BASE = 4 * WAVE_BLK
WQ_IMG, WO_IMG, W_T = 0, 16384, 32768
COMMON = W_BASE + 65536
OB, MB, CSB = COMMON + 0, COMMON + 2048, COMMON + 2112
LDS_BYTES = 163840
NVREG = 22
NVLDS = 32 - NVREG
sWG, sV, sL, sLay, sFast, sT = 2, 3, 4, 5, 6, 7
SRD = {"KA": 8, "VA": 12, "KB": 16, "VB": 20, "WqA": 24, "WoA": 28, "WqB": 32, "WoB": 36, "WS": 40, "XSRC": 44, "XDST": 48}
sDBG, sOUT = 52, 54
sG, sR, sH, sJ8 = 56, 57, 58, 59
sQs, sQpoll, sOs, sLpub, sStpoll, sLpoll, sYpub, sYpoll = 60, 61, 62, 63, 64, 65, 66, 67
mJ2, mI0, mJ04 = 68, 70, 72
sWB, sCnt, sT2, sT3 = 74, 75, 76, 77
sWqB0, sWoB0 = 78, 79
sC, sXS, sWM0, sKV = 80, 81, 82, 83
sXcc, sWd = 84, 85
sK = 84
sWSlo, sWShi = 86, 87
mI1, mStat = 88, 90
sStpub, sCsd = 92, 93
STAMP0 = 94
STAMPS = [94, 96, 98, 0]
FLG_OFF = 2080
HOP_OFF = 2084
mJ8 = 100
vLane, vL16, vWRd, vTrLo, vTrHi, vXoff, vSoff, vOoff, vLoff, vXpub, vQpub, vL4 = range(12)
vXold = 12
vVswz, vWoffQ, vWoffO = 16, 17, 18
vStD, vStA = 19, 20
vCsRd, vYpub, vOpub = 21, 22, 23
KBASE = {"A": 0, "B": 128}
VBASE = {"A": 80, "B": 168}
SCR = 72

def vr(a, n=1): return f"v{a}" if n == 1 else f"v[{a}:{a+n-1}]"
def ar(a, n=1): return f"a{a}" if n == 1 else f"a[{a}:{a+n-1}]"
def sr(a, n=1): return f"s{a}" if n == 1 else f"s[{a}:{a+n-1}]"
DPP = "row_mask:0xf bank_mask:0xf"

class Null:
    hists = [[]]
    def ins(self, t): pass
    def label(self, n): pass
    def peek(self, t): return 0

class Gen:
    def __init__(self, cfg):
        self.cfg = cfg
        self.main = Stream(); self.ool = Stream(); self.ool.snap = self.main.snap
        self.null = Null()
        self.line = self.main
        self.cur = self.main
        self.vmq = []; self.nlab = 0
        self.items = []; self.next_item = 0
        self.kdone = {"A": 0, "B": 0}; self.vdone = {"A": 0, "B": 0}
        self.site_hist = {}
        self.T = "A"
        self.profile = cfg.get("profile", False)
        self.kvflags = cfg.get("kvflags", "nt"); self.wflags = cfg.get("wflags", "nt")
        self.depth = cfg.get("depth", 8)
    def I(self, t):
        for line in t.split("\n"):
            line = line.strip()
            if line: self.cur.ins(line)
    def label(self, n): self.cur.label(n)
    def slot(self, fill):
        if fill and self.cur.peek(fill[0]) == 0:
            self.I(fill.pop(0)); return True
        return False
    def newlab(self, p):
        self.nlab += 1
        return f"{p}_{self.nlab}"
    def vm(self, tag, t):
        self.I(t); self.vmq.append(tag)
    def enter(self, cls): self.set_state(self.cst[cls])
    def leave(self, cls): self.cst[cls] = self.state()
    def need(self, tag):
        idx = [i for i, x in enumerate(self.vmq) if x == tag]
        if not idx: return
        n = len(self.vmq) - 1 - idx[-1]
        assert n <= 63
        self.I(f"s_waitcnt vmcnt({n})")
        self.vmq = self.vmq[idx[-1] + 1:]
    def wait_out(self, n):
        if len(self.vmq) > n:
            self.I(f"s_waitcnt vmcnt({n})")
            self.vmq = self.vmq[len(self.vmq) - n:] if n else []
    def issued(self, item): return item in self.items[:self.next_item]
    def landed(self, item): return self.issued(item) and item not in self.vmq
    def state(self): return (list(self.vmq), self.next_item, dict(self.kdone), dict(self.vdone))
    def set_state(self, s): self.vmq, self.next_item, self.kdone, self.vdone = list(s[0]), s[1], dict(s[2]), dict(s[3])
    def stamp(self, key):
        if not self.profile: return
        sel = self.cfg.get("stamps", [])
        if key in sel:
            k = sel.index(key)
            self.I(f"s_memtime s[{STAMPS[k]}:{STAMPS[k]+1}]")
    def flush_stamps(self):
        if not self.profile: return
        sel = self.cfg.get("stamps", [])
        self.I("s_waitcnt lgkmcnt(0)")
        for k in range(len(sel)):
            self.I(f"v_writelane_b32 {vr(vStD)}, s{STAMPS[k]}, {k}")
        self.I(f"s_lshl_b32 {sr(sT3)}, {sr(sL)}, 5")
        self.I("s_mov_b64 exec, 0x7f")
        self.I(f"buffer_store_dword {vr(vStD)}, {vr(vStA)}, {sr(SRD['WS'],4)}, {sr(sT3)} offen")
        self.I("s_mov_b64 exec, -1")
    def build_items(self):
        def inter(main, extra, first, every):
            out = []; ex = list(extra); pos = first
            for i, x in enumerate(main):
                if ex and i == pos:
                    out.append(ex.pop(0)); pos += every
                out.append(x)
            return out + ex
        c = self.cfg
        KV = lambda k, T: [(k, T, n) for n in range(32)]
        W = lambda m, T: [("W", m, T, k) for k in range(4)]
        it = W("q", "A") + KV("K", "A")
        it += inter(inter(KV("V", "A"), W("o", "A"), c.get("woa_first", 4), c.get("woa_every", 3)), W("q", "B"), c.get("wqb_first", 18), c.get("wqb_every", 3))
        it += KV("K", "B")
        it += inter(KV("V", "B"), W("o", "B"), c.get("wob_first", 4), c.get("wob_every", 4))
        self.items = it
    def emit_item(self, it):
        if it[0] == "K":
            _, T, n = it
            self.I(f"s_mov_b32 {sr(sT)}, {n*4096}")
            self.vm(it, f"buffer_load_dwordx4 {ar(KBASE[T]+4*n,4)}, {vr(vL16)}, {sr(SRD['K'+T],4)}, {sr(sT)} offen {self.kvflags}")
        elif it[0] == "V":
            _, T, n = it
            self.I(f"s_mov_b32 {sr(sT)}, {n*4096}")
            if n < NVREG:
                self.vm(it, f"buffer_load_dwordx4 {vr(VBASE[T]+4*n,4)}, {vr(vL16)}, {sr(SRD['V'+T],4)}, {sr(sT)} offen {self.kvflags}")
            else:
                if T == "B": assert self.kdone["B"] == 4, "VB LDS DMA before KB relayout finished"
                self.I(f"s_add_u32 m0, {sr(sWB)}, {VL_OFF[T] + (n-NVREG)*1024}")
                self.vm(it, f"buffer_load_dwordx4 {vr(vVswz)}, {sr(SRD['V'+T],4)}, {sr(sT)} offen {self.kvflags} lds")
        else:
            _, m, T, k = it
            img = (W_T if T == "B" else 0) + (WQ_IMG if m == "q" else WO_IMG)
            if m == "q":
                self.I(f"s_add_u32 {sr(sT)}, {sr(sWqB0)}, {k*8*8192}")
                self.I(f"s_add_u32 m0, {sr(sWM0)}, {img + k*1024}")
                self.vm(it, f"buffer_load_dwordx4 {vr(vWoffQ)}, {sr(SRD['Wq'+T],4)}, {sr(sT)} offen {self.wflags} lds")
            else:
                self.I(f"s_add_u32 {sr(sT)}, {sr(sWoB0)}, {k*8*1024}")
                self.I(f"s_add_u32 m0, {sr(sWM0)}, {img + k*1024}")
                self.vm(it, f"buffer_load_dwordx4 {vr(vWoffO)}, {sr(SRD['Wo'+T],4)}, {sr(sT)} offen {self.wflags} lds")
    def can_issue(self, it):
        if it[0] == "V" and it[1] == "B" and it[2] >= NVREG: return self.kdone["B"] == 4
        return True
    def issue(self, cnt):
        out = []
        for _ in range(cnt):
            if self.next_item >= len(self.items): break
            it = self.items[self.next_item]
            if not self.can_issue(it): break
            self.next_item += 1
            self.emit_item(it); out.append(it)
        return out
    def relayout_ready(self, allow=("K", "V")):
        prog = True
        while prog:
            prog = False
            for T in "AB":
                if "K" in allow and self.kdone[T] < 4:
                    t = self.kdone[T]
                    if all(self.landed(("K", T, 8*t+i)) for i in range(8)):
                        self.k_relayout(T, t); prog = True
                if "V" in allow and self.vdone[T] < NVREG:
                    n0 = self.vdone[T]; grp = list(range(n0, min(n0 + 3, NVREG)))
                    if all(self.landed(("V", T, n)) for n in grp):
                        self.v_relayout(T, grp); prog = True
    def step(self, chunk=4, depth=None, allow=("K", "V")):
        depth = depth or self.depth
        self.wait_out(max(depth - chunk, 0))
        self.issue(chunk)
        self.relayout_ready(allow)
    def bg(self, n, chunk=4, depth=None, allow=("K", "V")):
        for _ in range(n): self.step(chunk, depth, allow)
    def bg_until(self, cond, chunk=4, depth=None, allow=("K", "V")):
        guard = 0
        while not cond():
            self.relayout_ready(allow)
            if cond(): break
            if self.next_item >= len(self.items) or not self.can_issue(self.items[self.next_item]):
                assert self.vmq, "bg_until stuck"
                self.wait_out(max(len(self.vmq) - chunk, 0)); self.relayout_ready(allow)
            else:
                self.step(chunk, depth, allow)
            guard += 1; assert guard < 200
    def k_relayout(self, T, tile):
        b = KBASE[T] + 32 * tile
        w0, r0, t0, t1 = SCR, SCR + 1, SCR + 2, SCR + 3
        I = self.I
        I(f"v_lshrrev_b32 {vr(t0)}, 4, {vr(vLane)}")
        I(f"v_and_b32 {vr(t1)}, 15, {vr(vLane)}")
        I(f"v_xor_b32 {vr(t1)}, {vr(t1)}, {vr(t0)}")
        I(f"v_lshlrev_b32 {vr(t1)}, 4, {vr(t1)}")
        I(f"v_lshl_add_u32 {vr(w0)}, {vr(t0)}, 8, {vr(t1)}")
        I(f"s_add_u32 {sr(sT)}, {sr(sWB)}, {KST_OFF}")
        I(f"v_add_u32 {vr(w0)}, {sr(sT)}, {vr(w0)}")
        I(f"v_and_b32 {vr(t0)}, 31, {vr(vLane)}")
        I(f"v_lshrrev_b32 {vr(t1)}, 5, {vr(vLane)}")
        I(f"v_lshlrev_b32 {vr(t1)}, 3, {vr(t1)}")
        I(f"v_and_b32 {vr(r0)}, 15, {vr(vLane)}")
        I(f"v_xor_b32 {vr(r0)}, {vr(r0)}, {vr(t1)}")
        I(f"v_lshlrev_b32 {vr(r0)}, 4, {vr(r0)}")
        I(f"v_lshl_add_u32 {vr(r0)}, {vr(t0)}, 8, {vr(r0)}")
        I(f"v_add_u32 {vr(r0)}, {sr(sT)}, {vr(r0)}")
        for i in range(8):
            m = i & 3; a = w0
            if m:
                a = t0 if (i & 1) else t1
                I(f"v_xor_b32 {vr(a)}, {m<<6}, {vr(w0)}")
            I(f"ds_write_b128 {vr(a)}, {ar(b+4*i,4)} offset:{i*1024}")
        I("s_waitcnt lgkmcnt(0)")
        for cc in range(8):
            a = r0
            if cc:
                a = t0 if (cc & 1) else t1
                I(f"v_xor_b32 {vr(a)}, {cc<<4}, {vr(r0)}")
            I(f"ds_read_b128 {ar(b+4*cc,4)}, {vr(a)}")
        I("s_waitcnt lgkmcnt(0)")
        self.kdone[T] += 1
    def v_relayout(self, T, grp):
        w0 = SCR; I = self.I
        I(f"s_add_u32 {sr(sT)}, {sr(sWB)}, {STG_OFF}")
        I(f"v_add_u32 {vr(w0)}, {sr(sT)}, {vr(vVswz)}")
        for s, n in enumerate(grp):
            I(f"ds_write_b128 {vr(w0)}, {vr(VBASE[T]+4*n,4)} offset:{s*1024}")
        I("s_waitcnt lgkmcnt(0)")
        for s, n in enumerate(grp):
            d = VBASE[T] + 4 * n
            I(f"ds_read_b64_tr_b16 {vr(d,2)}, {vr(vTrLo)} offset:{STG_OFF + s*1024}")
            I(f"ds_read_b64_tr_b16 {vr(d+2,2)}, {vr(vTrHi)} offset:{STG_OFF + s*1024}")
        I("s_waitcnt lgkmcnt(0)")
        self.vdone[T] += len(grp)
    def attempts(self, tag, iss, check, n, chunk):
        rest = [self.newlab("RS") for _ in range(n + 1)]
        chunks = []
        for k in range(n):
            iss()
            c = self.issue(chunk); chunks.append(c)
            self.need(tag)
            if k < n - 1:
                check()
                self.I(f"s_cbranch_scc0 {rest[k+1]}")
        self.I(f"s_branch {rest[n]}")
        save = self.state()
        for k in range(1, n):
            self.label(rest[k])
            for it in chunks[k]: self.emit_item(it)
        self.label(rest[n])
        self.set_state(save)
        self.vmq = [it for c in chunks for it in c]
    def prologue(self):
        I = self.I
        KVN = 128 * 1024
        I(f"s_cmp_ge_u32 {sr(sWG)}, 256")
        I("s_cbranch_scc1 L_END")
        I("s_load_dwordx8 s[88:95], s[0:1], 0")
        I("s_load_dwordx2 s[96:97], s[0:1], 32")
        I("s_load_dwordx2 s[98:99], s[0:1], 96")
        I("s_load_dwordx4 s[16:19], s[0:1], 48")
        I("s_load_dwordx4 s[32:35], s[0:1], 64")
        I("s_load_dwordx4 s[52:55], s[0:1], 80")
        I("v_lshrrev_b32 v1, 6, v0")
        I("v_and_b32 v0, 63, v0")
        I(f"v_readfirstlane_b32 {sr(sV)}, v1")
        I(f"s_and_b32 {sr(sG)}, {sr(sWG)}, 7")
        I(f"s_lshr_b32 {sr(sR)}, {sr(sWG)}, 3")
        I(f"s_lshr_b32 {sr(sT)}, {sr(sR)}, 3")
        I(f"s_lshl_b32 {sr(sH)}, {sr(sG)}, 2")
        I(f"s_add_u32 {sr(sH)}, {sr(sH)}, {sr(sT)}")
        I(f"s_and_b32 {sr(sJ8)}, {sr(sR)}, 7")
        I(f"v_lshlrev_b32 {vr(vL16)}, 4, {vr(vLane)}")
        I(f"s_lshr_b32 {sr(sT)}, {sr(sJ8)}, 2"); I(f"s_lshl_b32 {sr(sT)}, {sr(sT)}, 5"); I(f"s_add_u32 {sr(sT)}, {sr(sT)}, {sr(sH)}")
        I(f"s_lshl_b32 {sr(sT)}, {sr(sT)}, 21")
        I(f"s_and_b32 {sr(sT2)}, {sr(sJ8)}, 3"); I(f"s_lshl_b32 {sr(sT2)}, {sr(sT2)}, 17"); I(f"s_add_u32 {sr(sT)}, {sr(sT)}, {sr(sT2)}")
        I(f"s_lshl_b32 {sr(sT2)}, {sr(sV)}, 10"); I(f"s_add_u32 {sr(sT)}, {sr(sT)}, {sr(sT2)}")
        I(f"s_add_u32 {sr(sKV)}, {sr(sT)}, {6144*256}")
        I(f"s_mul_i32 {sr(sWB)}, {sr(sV)}, {WAVE_BLK}")
        I(f"v_lshrrev_b32 v44, 3, {vr(vLane)}"); I(f"v_and_b32 v45, 7, {vr(vLane)}"); I("v_lshlrev_b32 v45, 4, v45")
        I(f"v_lshl_add_u32 {vr(vWoffQ)}, v44, 13, v45"); I(f"v_lshl_add_u32 {vr(vWoffO)}, v44, 10, v45")
        I(f"s_and_b32 {sr(sT)}, {sr(sJ8)}, 3"); I(f"s_lshl_b32 {sr(sT)}, {sr(sT)}, 2"); I(f"s_add_u32 {sr(sT)}, {sr(sT)}, {sr(sV)}")
        I(f"s_lshl_b32 {sr(sWqB0)}, {sr(sT)}, 18")
        I(f"s_lshl_b32 {sr(sT3)}, {sr(sH)}, 8"); I(f"s_lshr_b32 {sr(sT2)}, {sr(sJ8)}, 2"); I(f"s_lshl_b32 {sr(sT2)}, {sr(sT2)}, 7")
        I(f"s_add_u32 {sr(sT3)}, {sr(sT3)}, {sr(sT2)}")
        I(f"s_lshl_b32 {sr(sWM0)}, {sr(sV)}, 12"); I(f"s_add_u32 {sr(sWM0)}, {sr(sWM0)}, {W_BASE}")
        I(f"s_getreg_b32 {sr(sXcc)}, hwreg(HW_REG_XCC_ID, 0, 4)")
        I(f"s_and_b32 {sr(sXcc)}, {sr(sXcc)}, 7")
        I("s_waitcnt lgkmcnt(0)")
        I(f"s_add_u32 s8, s90, {sr(sKV)}"); I("s_addc_u32 s9, s91, 0"); I(f"s_mov_b32 s10, {KVN}"); I("s_mov_b32 s11, 0x20000")
        I(f"s_add_u32 s24, s94, {sr(sT3)}"); I("s_addc_u32 s25, s95, 0"); I(f"s_sub_u32 s26, {512*8192}, {sr(sT3)}"); I("s_mov_b32 s27, 0x20000")
        I(f"s_add_u32 s32, s32, {sr(sT3)}"); I("s_addc_u32 s33, s33, 0")
        I(f"s_mov_b32 {sr(sCnt)}, s26")
        I("s_mov_b32 s40, s98"); I("s_mov_b32 s41, s99"); I(f"s_mov_b32 s42, {WS_SRD_BYTES}"); I("s_mov_b32 s43, 0x20000")
        def clear_block(part='both'):
            lskip = self.newlab("NOCLR")
            I(f"s_cmp_lg_u32 {sr(sV)}, 3"); I(f"s_cbranch_scc1 {lskip}")
            I("v_mov_b32 v48, -1"); I("v_mov_b32 v49, -1"); I("v_mov_b32 v50, -1"); I("v_mov_b32 v51, -1")
            I(f"s_mul_i32 {sr(sT)}, {sr(sWG)}, {SLOT_BYTES//256}")
            for o in range(0, SLOT_BYTES // 256, 1024):
                if o and o % 4096 == 0: I(f"s_add_u32 {sr(sT)}, {sr(sT)}, 4096")
                I(f"buffer_store_dwordx4 v[48:51], {vr(vL16)}, s[40:43], {sr(sT)} offen offset:{o % 4096} sc1")
            I(f"s_lshl_b32 {sr(sT)}, {sr(sXcc)}, 3")
            I(f"s_lshl_b64 s[76:77], 1, {sr(sT)}")
            I("v_mov_b32 v48, s76"); I("v_mov_b32 v49, s77")
            I(f"s_lshr_b32 {sr(sT)}, {sr(sG)}, 1"); I(f"s_lshl_b32 {sr(sT)}, {sr(sT)}, 6")
            I(f"s_and_b32 s76, {sr(sG)}, 1"); I("s_lshl_b32 s76, s76, 3"); I(f"s_add_u32 {sr(sT)}, {sr(sT)}, s76")
            I(f"v_mov_b32 v50, {sr(sT)}")
            if part == "both":
                I("s_waitcnt vmcnt(0)")
                I("s_mov_b64 exec, 1")
                I(f"global_atomic_add_x2 v50, v[48:49], {dbgp}")
                I("s_mov_b64 exec, -1")
            self.label(lskip)
        def arrive_block(nyounger):
            lskip = self.newlab("NOARR")
            I(f"s_cmp_lg_u32 {sr(sV)}, 3"); I(f"s_cbranch_scc1 {lskip}")
            I(f"s_lshl_b32 {sr(sT)}, {sr(sXcc)}, 3")
            I(f"s_lshl_b64 s[76:77], 1, {sr(sT)}")
            I("v_mov_b32 v54, s76"); I("v_mov_b32 v55, s77")
            I(f"s_lshr_b32 {sr(sT)}, {sr(sG)}, 1"); I(f"s_lshl_b32 {sr(sT)}, {sr(sT)}, 6")
            I(f"s_and_b32 s76, {sr(sG)}, 1"); I("s_lshl_b32 s76, s76, 3"); I(f"s_add_u32 {sr(sT)}, {sr(sT)}, s76")
            I(f"v_mov_b32 v56, {sr(sT)}")
            I(f"s_waitcnt vmcnt({nyounger})")
            I("s_mov_b64 exec, 1")
            I(f"global_atomic_add_x2 v56, v[54:55], {dbgp}")
            I("s_mov_b64 exec, -1")
            self.label(lskip)
        dbgp = "s[54:55]"
        arr2 = self.cfg.get("arrive2", True)
        if not self.cfg.get("clear_late", False): clear_block("stores" if arr2 else "both")
        nq0 = len(self.vmq)
        I(f"v_mov_b32 v48, {COMMON + HOP_OFF}"); I("v_mov_b32 v49, 0")
        I(f"s_cmp_eq_u32 {sr(sV)}, 0"); I("s_cselect_b64 exec, 1, 0"); I("ds_write_b32 v48, v49"); I("s_mov_b64 exec, -1")
        self.issue(self.cfg.get("pro_a", 4))
        I("s_mov_b32 s44, s88"); I("s_mov_b32 s45, s89"); I("s_mov_b32 s46, 2048"); I("s_mov_b32 s47, 0x20000")
        I(f"v_lshrrev_b32 v52, 4, {vr(vLane)}"); I(f"v_and_b32 v53, 1, {vr(vLane)}")
        I("v_lshlrev_b32 v53, 10, v53"); I("v_lshl_add_u32 v52, v52, 4, v53")
        I(f"s_and_b32 {sr(sT)}, {sr(sJ8)}, 3"); I(f"s_lshl_b32 {sr(sT)}, {sr(sT)}, 8"); I(f"v_add_u32 v52, {sr(sT)}, v52")
        for i in range(16): I(f"v_mov_b32 v{24+i}, 0x3f803f80")
        I("s_mov_b32 exec_lo, 0x00030003"); I("s_mov_b32 exec_hi, 0x00030003")
        for k in range(4):
            self.vm("x0", f"buffer_load_dwordx4 {vr(24+4*k,4)}, v52, s[44:47], 0 offen offset:{64*k}")
        I("s_mov_b64 exec, -1")
        self.issue(self.cfg.get("pro_n", 12) - self.cfg.get("pro_a", 4))
        if self.cfg.get("clear_late", False): clear_block()
        if arr2 and not self.cfg.get("clear_late", False): arrive_block(len(self.vmq) - nq0)
        I(f"s_mov_b32 {sr(sWSlo)}, s98"); I(f"s_mov_b32 {sr(sWShi)}, s99")
        I(f"s_add_u32 s12, s92, {sr(sKV)}"); I("s_addc_u32 s13, s93, 0"); I(f"s_mov_b32 s14, {KVN}"); I("s_mov_b32 s15, 0x20000")
        I(f"s_add_u32 s20, s18, {sr(sKV)}"); I("s_addc_u32 s21, s19, 0"); I(f"s_mov_b32 s22, {KVN}"); I("s_mov_b32 s23, 0x20000")
        I(f"s_add_u32 s16, s16, {sr(sKV)}"); I("s_addc_u32 s17, s17, 0"); I(f"s_mov_b32 s18, {KVN}"); I("s_mov_b32 s19, 0x20000")
        I(f"s_lshl_b32 {sr(sT)}, {sr(sH)}, 17"); I(f"s_lshl_b32 {sr(sT2)}, {sr(sJ8)}, 7"); I(f"s_add_u32 {sr(sT)}, {sr(sT)}, {sr(sT2)}")
        I(f"s_add_u32 s28, s96, {sr(sT)}"); I("s_addc_u32 s29, s97, 0"); I(f"s_sub_u32 s30, {4096*1024}, {sr(sT)}"); I("s_mov_b32 s31, 0x20000")
        I(f"s_add_u32 s36, s34, {sr(sT)}"); I("s_addc_u32 s37, s35, 0"); I(f"s_sub_u32 s38, {4096*1024}, {sr(sT)}"); I("s_mov_b32 s39, 0x20000")
        I(f"s_mov_b32 s34, {sr(sCnt)}"); I("s_mov_b32 s35, 0x20000")
        I("s_mov_b32 s76, s52"); I("s_mov_b32 s77, s53"); I("s_mov_b32 s52, s54"); I("s_mov_b32 s53, s55"); I("s_mov_b32 s54, s76"); I("s_mov_b32 s55, s77")
        I("s_mov_b32 s51, 0x20000"); I("s_mov_b32 s48, s98"); I("s_mov_b32 s49, s99"); I("s_mov_b32 s50, 0")
        for (m, val) in ((mJ2, 0x00030003), (mI0, 0x11111111), (mJ04, 0x00110011), (mJ8, 0x00ff00ff), (mI1, 0x22222222)):
            I(f"s_mov_b32 {sr(m)}, {val:#x}"); I(f"s_mov_b32 {sr(m+1)}, {val:#x}")
        I(f"s_cmp_eq_u32 {sr(sV)}, 0"); I(f"s_cselect_b32 {sr(mStat)}, 3, 0"); I(f"s_mov_b32 {sr(mStat+1)}, 0")
        I(f"s_mov_b32 {sr(sC)}, {f2u(128**-0.5 * 1.4426950408889634):#x}")
        I(f"s_mov_b32 {sr(sL)}, 0"); I(f"s_mov_b32 {sr(sLay)}, 0"); I(f"s_mov_b32 {sr(sFast)}, 0")
        I(f"s_mov_b32 {sr(sWd)}, {W_T}"); I(f"s_mov_b32 {sr(sCsd)}, 512")
        I(f"s_lshl_b32 {sr(sWoB0)}, {sr(sV)}, 15")
        I(f"s_lshl_b32 {sr(sQs)}, {sr(sH)}, 12"); I(f"s_add_u32 {sr(sQs)}, {sr(sQs)}, {QS_OFF}")
        I(f"s_lshr_b32 {sr(sT)}, {sr(sJ8)}, 2"); I(f"s_lshl_b32 {sr(sT2)}, {sr(sT)}, 11")
        I(f"s_add_u32 {sr(sQpoll)}, {sr(sQs)}, {sr(sT2)}")
        I(f"s_lshl_b32 {sr(sStpoll)}, {sr(sH)}, 6"); I(f"s_add_u32 {sr(sStpoll)}, {sr(sStpoll)}, {ST_OFF}")
        I(f"s_and_b32 {sr(sT2)}, {sr(sJ8)}, 3"); I(f"s_lshl_b32 {sr(sT2)}, {sr(sT2)}, 4")
        I(f"s_add_u32 {sr(sStpub)}, {sr(sStpoll)}, {sr(sT2)}")
        I(f"s_lshl_b32 {sr(sT)}, {sr(sT)}, 3"); I(f"s_add_u32 {sr(sStpoll)}, {sr(sStpoll)}, {sr(sT)}")
        I(f"s_lshl_b32 {sr(sOs)}, {sr(sH)}, 11"); I(f"s_add_u32 {sr(sOs)}, {sr(sOs)}, {OS_OFF}")
        I(f"s_lshl_b32 {sr(sLpoll)}, {sr(sH)}, 5"); I(f"s_add_u32 {sr(sLpoll)}, {sr(sLpoll)}, {LSE_OFF}")
        I(f"s_lshl_b32 {sr(sT)}, {sr(sJ8)}, 2"); I(f"s_add_u32 {sr(sLpub)}, {sr(sLpoll)}, {sr(sT)}")
        I(f"s_lshl_b32 {sr(sYpoll)}, {sr(sR)}, 12"); I(f"s_add_u32 {sr(sYpoll)}, {sr(sYpoll)}, {YS_OFF}")
        I(f"s_lshl_b32 {sr(sT)}, {sr(sJ8)}, 2"); I(f"s_add_u32 {sr(sT)}, {sr(sT)}, {sr(sV)}"); I(f"s_lshl_b32 {sr(sT)}, {sr(sT)}, 12")
        I(f"s_lshl_b32 {sr(sT2)}, {sr(sH)}, 7"); I(f"s_add_u32 {sr(sT)}, {sr(sT)}, {sr(sT2)}"); I(f"s_add_u32 {sr(sYpub)}, {sr(sT)}, {YS_OFF}")
        I(f"s_lshl_b32 {sr(sXS)}, {sr(sG)}, 11"); I(f"s_add_u32 {sr(sXS)}, {sr(sXS)}, {XS_OFF}")
        I(f"v_lshlrev_b32 {vr(vL4)}, 2, {vr(vLane)}")
        I(f"v_lshrrev_b32 v44, 4, {vr(vLane)}")
        I(f"v_and_b32 v45, 15, {vr(vLane)}")
        I("v_lshlrev_b32 v46, 2, v44"); I("v_xor_b32 v46, v46, v45"); I("v_lshlrev_b32 v46, 4, v46")
        I(f"v_lshl_add_u32 {vr(vVswz)}, v44, 8, v46")
        I(f"v_bfe_u32 v46, {vr(vLane)}, 2, 2")
        I(f"v_bfe_u32 v47, {vr(vLane)}, 1, 1")
        I("v_lshl_add_u32 v47, v44, 1, v47")
        I("v_lshlrev_b32 v48, 2, v46"); I("v_xor_b32 v47, v47, v48"); I("v_lshlrev_b32 v47, 4, v47")
        I("v_lshl_add_u32 v47, v46, 8, v47")
        I(f"v_and_b32 v48, 1, {vr(vLane)}"); I("v_lshl_add_u32 v47, v48, 3, v47")
        I(f"v_add_u32 {vr(vTrLo)}, {sr(sWB)}, v47")
        I(f"v_xor_b32 {vr(vTrHi)}, 0x80, {vr(vTrLo)}")
        I("v_lshl_add_u32 v47, v44, 3, v46"); I("v_lshlrev_b32 v47, 7, v47")
        I(f"v_and_b32 v48, 3, {vr(vLane)}"); I("v_lshl_add_u32 v47, v48, 3, v47")
        I(f"s_lshl_b32 {sr(sT)}, {sr(sV)}, 5"); I(f"s_add_u32 {sr(sT)}, {sr(sT)}, {W_BASE}"); I(f"v_add_u32 {vr(vWRd)}, {sr(sT)}, v47")
        I("v_and_b32 v46, 1, v45"); I("v_lshlrev_b32 v46, 4, v46"); I("v_lshl_add_u32 v46, v44, 5, v46")
        I(f"s_and_b32 {sr(sT)}, {sr(sJ8)}, 3"); I(f"s_lshl_b32 {sr(sT)}, {sr(sT)}, 9"); I(f"v_add_u32 {vr(vXoff)}, {sr(sT)}, v46")
        I(f"v_lshlrev_b32 {vr(vSoff)}, 4, v48")
        I(f"v_lshrrev_b32 v46, 2, {vr(vLane)}"); I("v_lshlrev_b32 v46, 5, v46"); I(f"v_add_u32 {vr(vCsRd)}, {CSB}, v46")
        I("v_and_b32 v46, 7, v45"); I(f"v_lshlrev_b32 {vr(vLoff)}, 2, v46")
        I("v_lshlrev_b32 v46, 4, v46"); I(f"v_lshl_add_u32 {vr(vOoff)}, v44, 7, v46")
        I(f"v_lshrrev_b32 v46, 2, {vr(vLane)}"); I("v_lshlrev_b32 v46, 7, v46"); I("v_lshl_add_u32 v46, v48, 2, v46")
        I(f"s_lshl_b32 {sr(sT)}, {sr(sJ8)}, 4"); I(f"v_add_u32 {vr(vOpub)}, {sr(sT)}, v46")
        I(f"v_bfe_u32 v46, {vr(vLane)}, 2, 1"); I("v_lshlrev_b32 v47, 6, v46"); I(f"v_lshl_add_u32 {vr(vYpub)}, v44, 4, v47")
        I("v_lshlrev_b32 v47, 10, v46"); I("v_lshl_add_u32 v47, v48, 3, v47")
        I(f"s_lshl_b32 {sr(sT)}, {sr(sR)}, 5"); I(f"v_add_u32 v50, {sr(sT)}, v47")
        I("v_lshlrev_b32 v46, 4, v46")
        I("v_lshrrev_b32 v47, 1, v48"); I("v_lshl_add_u32 v46, v47, 5, v46")
        I("v_and_b32 v47, 1, v48"); I("v_lshl_add_u32 v46, v47, 3, v46")
        I(f"s_lshl_b32 {sr(sT)}, {sr(sR)}, 6"); I(f"v_add_u32 {vr(vXpub)}, {sr(sT)}, v46")
        I("v_lshlrev_b32 v46, 1, v45"); I("v_and_b32 v47, 1, v44"); I("v_add_u32 v46, v46, v47"); I("v_lshlrev_b32 v46, 10, v46")
        I("v_lshrrev_b32 v47, 1, v44"); I("v_lshl_add_u32 v46, v47, 6, v46")
        I(f"s_lshr_b32 {sr(sT)}, {sr(sJ8)}, 2"); I(f"s_lshl_b32 {sr(sT)}, {sr(sT)}, 3"); I(f"s_lshl_b32 {sr(sT2)}, {sr(sV)}, 1"); I(f"s_add_u32 {sr(sT)}, {sr(sT)}, {sr(sT2)}")
        I(f"s_lshl_b32 {sr(sT)}, {sr(sT)}, 2"); I(f"s_and_b32 {sr(sT2)}, {sr(sJ8)}, 3"); I(f"s_add_u32 {sr(sT)}, {sr(sT)}, {sr(sT2)}"); I(f"s_lshl_b32 {sr(sT)}, {sr(sT)}, 4")
        I(f"v_add_u32 {vr(vQpub)}, {sr(sT)}, v46")
        if self.profile:
            I(f"s_lshl_b32 {sr(sT)}, {sr(sWG)}, 2"); I(f"s_add_u32 {sr(sT)}, {sr(sT)}, {sr(sV)}"); I(f"s_lshl_b32 {sr(sT)}, {sr(sT)}, 10")
            I(f"s_add_u32 {sr(sT)}, {sr(sT)}, {PROF_OFF}"); I(f"v_add_u32 {vr(vStA)}, {sr(sT)}, {vr(vL4)}")
            I("s_memrealtime s[94:95]"); I("s_memtime s[96:97]"); I("s_waitcnt lgkmcnt(0)")
            I(f"v_mov_b32 {vr(vStD)}, s94"); I(f"v_writelane_b32 {vr(vStD)}, s96, 1")
            I("s_mov_b64 exec, 3")
            I(f"buffer_store_dword {vr(vStD)}, {vr(vStA)}, {sr(SRD['WS'],4)}, 0 offen offset:512")
            I("s_mov_b64 exec, -1")
        self.vm("xold", f"buffer_load_dwordx2 v[{vXold}:{vXold+1}], v50, s[44:47], 0 offen")

    def both_T(self, name, fn):
        self.I(f"s_bitcmp1_b32 {sr(sL)}, 0")
        self.I(f"s_cbranch_scc1 {name}_B")
        fn("A")
        self.I(f"s_branch {name}_E")
        self.label(f"{name}_B")
        fn("B")
        self.label(f"{name}_E")

    def chk(self, regs, ta, tb, mask="exec"):
        def f():
            I = self.I; a, b = vr(ta), vr(tb)
            R = list(regs)
            I(f"v_max3_u32 {a}, {vr(R[0])}, {vr(R[1])}, {vr(R[2])}"); R = R[3:]
            useb = False
            if len(R) >= 3:
                I(f"v_max3_u32 {b}, {vr(R[0])}, {vr(R[1])}, {vr(R[2])}"); R = R[3:]; useb = True
            t = [a, b]; k = 0
            while len(R) >= 2:
                I(f"v_max3_u32 {t[k]}, {t[k]}, {vr(R[0])}, {vr(R[1])}"); R = R[2:]
                if useb: k ^= 1
            if useb and R: I(f"v_max3_u32 {a}, {a}, {b}, {vr(R[0])}")
            elif useb: I(f"v_max_u32 {a}, {a}, {b}")
            elif R: I(f"v_max_u32 {a}, {a}, {vr(R[0])}")
            I(f"v_cmp_eq_u32 vcc, -1, {a}")
            I(f"s_and_b64 vcc, vcc, {mask}")
        return f

    def site(self, name, cond):
        self.I(f"s_cmp_{cond[0]}_u32 {sr(sL)}, {cond[1]}")
        self.I(f"s_cbranch_scc1 S_{name}")
        self.label(f"R_{name}")
    def block(self, label):
        self.cur = self.ool; self.ool.hists = [[]]
        self.label(label); self.I("s_nop 7")
    def jump(self, label):
        self.I("s_nop 7"); self.I(f"s_branch {label}")
    def backoff(self, name):
        n = self.cfg.get("dly" + name, 0)
        while n > 0:
            k = min(n, 16); self.I(f"s_nop {k-1}"); n -= k
    def hop(self, name, issue_fn, check_fn, spec_fn=None, shadow_fn=None, site=None):
        if site: self.site(name, site)
        if self.cfg.get("shadow_first" + name) and shadow_fn:
            shadow_fn(); shadow_fn = None
        self.backoff(name)
        issue_fn()
        if shadow_fn: shadow_fn()
        self.I("s_waitcnt vmcnt(0)")
        self.hop_tail(name, issue_fn, check_fn, spec_fn)
    def hop_tail(self, name, issue_fn, check_fn, spec_fn=None):
        self.label(f"C_{name}")
        if spec_fn: spec_fn()
        check_fn()
        self.I(f"s_cbranch_scc1 Y_{name}")
        self.block(f"Y_{name}")
        self.I(f"s_mov_b32 {sr(sCnt)}, 0")
        lp = self.newlab("HL"); dn = self.newlab("HD")
        self.label(lp)
        if self.cfg.get("rty" + name): self.I(f"s_sleep {self.cfg['rty' + name]}")
        issue_fn()
        self.I("s_waitcnt vmcnt(0)")
        check_fn()
        self.I(f"s_cbranch_scc0 {dn}")
        self.I(f"s_add_u32 {sr(sCnt)}, {sr(sCnt)}, 1")
        self.I(f"s_cmp_lt_u32 {sr(sCnt)}, {self.cfg.get('spin', 40000)}")
        self.I(f"s_cbranch_scc1 {lp}")
        self.jump(f"K_{name}")
        self.label(dn)
        self.jump(f"{'C' if spec_fn else 'K'}_{name}")
        self.cur = self.main
        self.label(f"K_{name}")
    def pub2(self, name, text_fn):
        self.I(f"s_cmp_lg_u32 {sr(sFast)}, 0")
        self.I(f"s_cbranch_scc1 L_PF{name}")
        self.I(text_fn("sc1"))
        self.I(f"s_branch L_PE{name}")
        self.label(f"L_PF{name}")
        self.I(text_fn(""))
        self.label(f"L_PE{name}")

    X, W, DQ, DS = 24, 40, 56, 60
    RAW, ST, CS, Q = 24, 32, 34, 76
    O_, LS, DY, W2 = 24, 40, 48, 56
    Y = 56
    VT = 44
    def wq_reads(self):
        for k in range(4):
            for t in range(2):
                self.I(f"ds_read_b64_tr_b16 {vr(self.W+4*k+2*t,2)}, {vr(vWRd)} offset:{WQ_IMG + k*4096 + t*512}")
    def wo_reads(self):
        for k in range(4):
            for t in range(2):
                self.I(f"ds_read_b64_tr_b16 {vr(self.W2+4*k+2*t,2)}, {vr(vWRd)} offset:{WO_IMG + k*4096 + t*512}")
    def prefill(self):
        for i in range(16): self.I(f"v_mov_b32 {vr(self.X+i)}, 0x3f803f80")
    def d_issue(self):
        I = self.I
        I(f"s_mov_b64 exec, {sr(mJ2,2)}")
        for k in range(4): I(f"buffer_load_dwordx4 {vr(self.X+4*k,4)}, {vr(vXoff)}, {sr(SRD['XSRC'],4)}, 0 offen offset:{128*k} sc1")
        I("s_mov_b64 exec, -1")
    def d_check(self): self.chk(range(self.X, self.X+16), 69, 70)()
    def a_issue(self):
        I = self.I
        for e in range(2): I(f"buffer_load_dwordx4 {vr(self.RAW+4*e,4)}, {vr(vL16)}, {sr(SRD['WS'],4)}, {sr(sQpoll)} offen offset:{1024*e} sc1")
        I(f"buffer_load_dwordx2 {vr(self.ST,2)}, {vr(vSoff)}, {sr(SRD['WS'],4)}, {sr(sStpoll)} offen sc1")
    def a_check(self): self.chk(list(range(self.RAW, self.RAW+10)), 69, 70)()
    def b_issue(self):
        I = self.I
        I(f"s_mov_b64 exec, {sr(mJ8,2)}")
        for k in range(4): I(f"buffer_load_dwordx4 {vr(self.O_+4*k,4)}, {vr(vOoff)}, {sr(SRD['WS'],4)}, {sr(sOs)} offen offset:{512*k} sc1")
        I(f"buffer_load_dword {vr(self.LS)}, {vr(vLoff)}, {sr(SRD['WS'],4)}, {sr(sLpoll)} offen sc1")
        I("s_mov_b64 exec, -1")
    def b_check(self): self.chk(list(range(self.O_, self.O_+16)) + [self.LS], 46, 47, mask=sr(mJ8,2))()
    def c_issue(self):
        for i in range(4):
            self.I(f"buffer_load_dwordx4 {vr(self.Y+4*i,4)}, {vr(vL16)}, {sr(SRD['WS'],4)}, {sr(sYpoll)} offen offset:{1024*i} sc1")
    def c_check(self): self.chk(range(self.Y, self.Y+16), 72, 73)()
    def bookkeeping(self):
        I = self.I
        I(f"s_add_u32 {sr(sT)}, {sr(sLay)}, {sr(sXS)}")
        I(f"s_add_u32 s44, {sr(sWSlo)}, {sr(sT)}"); I(f"s_addc_u32 s45, {sr(sWShi)}, 0")
        I(f"s_cmp_eq_u32 {sr(sL)}, 3")
        I(f"s_cselect_b32 s48, {sr(sOUT)}, s44"); I(f"s_cselect_b32 s49, {sr(sOUT+1)}, s45")
        I("s_cselect_b64 vcc, -1, 0")
        I(f"s_cselect_b32 {sr(sT)}, {sr(sG)}, 0")
        I(f"s_cmp_eq_u32 {sr(sT)}, 0")
        I("s_cselect_b32 s50, 2048, 0")
        I(f"v_bfe_u32 v79, {vr(vLane)}, 2, 1"); I("v_lshlrev_b32 v79, 10, v79")
        I(f"v_and_b32 v78, 3, {vr(vLane)}"); I("v_lshl_add_u32 v79, v78, 3, v79")
        I(f"s_lshl_b32 {sr(sT)}, {sr(sR)}, 5"); I(f"v_add_u32 v79, {sr(sT)}, v79")
        I(f"v_cndmask_b32 v79, {vr(vXpub)}, v79, vcc")
    def advance(self):
        I = self.I
        for s_ in (sLay, sQs, sQpoll, sOs, sLpub, sStpoll, sStpub, sLpoll, sYpub):
            I(f"s_add_u32 {sr(s_)}, {sr(s_)}, {LAYER_STRIDE}")
        I(f"v_add_u32 {vr(vWRd)}, {sr(sWd)}, {vr(vWRd)}"); I(f"s_sub_u32 {sr(sWd)}, 0, {sr(sWd)}")
        I(f"v_add_u32 {vr(vCsRd)}, {sr(sCsd)}, {vr(vCsRd)}"); I(f"s_sub_u32 {sr(sCsd)}, 0, {sr(sCsd)}")
    def vt_reads(self, Tt, first):
        VT = self.VT; out = []
        for n in range(5):
            out.append(f"ds_read_b64_tr_b16 {vr(VT+4*n,2)}, {vr(vTrLo)} offset:{VL_OFF[Tt] + (first+n)*1024}")
            out.append(f"ds_read_b64_tr_b16 {vr(VT+4*n+2,2)}, {vr(vTrHi)} offset:{VL_OFF[Tt] + (first+n)*1024}")
        return out

    def mainline(self):
        I = self.I
        X, W, DQ, DS = self.X, self.W, self.DQ, self.DS
        RAW, ST, CS, Q = self.RAW, self.ST, self.CS, self.Q
        O_, LS, DY, W2, Y = self.O_, self.LS, self.DY, self.W2, self.Y
        self.label("L_LOOP")
        self.stamp("start")
        def d_spec():
            I("s_waitcnt lgkmcnt(0)")
            for k in range(4):
                c = "0" if k == 0 else vr(DQ, 4)
                I(f"v_mfma_f32_16x16x32_bf16 {vr(DQ,4)}, {vr(W+4*k,4)}, {vr(X+4*k,4)}, {c}")
            for k in range(4):
                c = "0" if k == 0 else vr(DS, 4)
                I(f"v_mfma_f32_16x16x32_bf16 {vr(DS,4)}, {vr(X+4*k,4)}, {vr(X+4*k,4)}, {c}")
        self.hop("D", self.d_issue, self.d_check, d_spec)
        self.stamp("Dok")
        I(f"v_cmp_eq_u32 vcc, 1, {vr(vLane)}")
        I(f"v_lshlrev_b32 v64, 3, {vr(vLane)}")
        I(f"s_mov_b64 exec, {sr(mJ2,2)}")
        self.pub2("q", lambda fl: f"buffer_store_dwordx4 {vr(DQ,4)}, {vr(vQpub)}, {sr(SRD['WS'],4)}, {sr(sQs)} offen {fl}")
        I(f"s_mov_b64 exec, {sr(mStat,2)}")
        I(f"v_cndmask_b32 {vr(DS)}, {vr(DS)}, {vr(DS+1)}, vcc")
        I(f"v_mov_b32 {vr(DS+1)}, {vr(DS+2)}")
        self.pub2("s", lambda fl: f"buffer_store_dwordx2 v[{DS}:{DS+1}], v64, {sr(SRD['WS'],4)}, {sr(sStpub)} offen {fl}")
        I("s_mov_b64 exec, -1")
        self.stamp("Qpub")
        self.site("A0", ("lt", 2))
        def a_shadow():
            I(f"ds_read_b128 {vr(CS,4)}, {vr(vCsRd)}"); I(f"ds_read_b128 {vr(CS+4,4)}, {vr(vCsRd)} offset:16")
        self.hop("A", self.a_issue, self.a_check, shadow_fn=a_shadow)
        self.stamp("Aok")
        qs = lambda r, p: f"v_add_f32_dpp {vr(r)}, {vr(r)}, {vr(r)} quad_perm:{p} {DPP}"
        I(qs(ST+1, "[1,0,3,2]")); I(qs(ST, "[1,0,3,2]"))
        for i in range(2): I(qs(RAW+i, "[1,0,3,2]"))
        I(qs(ST+1, "[2,3,0,1]")); I(qs(ST, "[2,3,0,1]"))
        for i in range(2, 4): I(qs(RAW+i, "[1,0,3,2]"))
        I(f"v_mul_f32 {vr(ST+1)}, {f2u(1/512):#x}, {vr(ST+1)}")
        I(f"v_mul_f32 {vr(ST)}, {f2u(1/512):#x}, {vr(ST)}")
        for i in range(4, 6): I(qs(RAW+i, "[1,0,3,2]"))
        I(f"v_fma_f32 {vr(ST)}, -{vr(ST+1)}, {vr(ST+1)}, {vr(ST)}")
        I(qs(RAW+6, "[1,0,3,2]"))
        I(f"v_max_f32 {vr(ST)}, 0, {vr(ST)}")
        I(qs(RAW+7, "[1,0,3,2]"))
        I(f"v_add_f32 {vr(ST)}, {f2u(1e-5):#x}, {vr(ST)}")
        I(qs(RAW, "[2,3,0,1]"))
        I(f"v_rsq_f32 {vr(ST)}, {vr(ST)}")
        for i in range(1, 8): I(qs(RAW+i, "[2,3,0,1]"))
        I("s_waitcnt lgkmcnt(0)")
        for i in range(8): I(f"v_fma_f32 {vr(RAW+i)}, -{vr(ST+1)}, {vr(CS+i)}, {vr(RAW+i)}")
        for i in range(8): I(f"v_mul_f32 {vr(RAW+i)}, {vr(RAW+i)}, {vr(ST)}")
        for i in range(4): I(f"v_cvt_pk_bf16_f32 {vr(Q+i)}, {vr(RAW+2*i)}, {vr(RAW+2*i+1)}")
        self.site("Q1", ("eq", 1))
        self.label("L_QK")
        self.stamp("Qok")
        T = None
        S = 24
        VT = self.VT
        P0, P1 = 40, 42
        M0, M1, TM, TR, LP = 25, 33, 29, 30, 31
        def softmax_ops(Sa, Sb, M, P, row, t1, t2, t3):
            ops = [f"v_permlane32_swap_b32 {vr(Sa)}, {vr(Sb)}",
                   f"v_add_f32 {vr(Sa)}, {vr(Sa)}, {vr(Sb)}",
                   f"v_max_f32_dpp {vr(M)}, {vr(Sa)}, {vr(Sa)} row_ror:8 {DPP}"]
            for rr in (4, 2, 1): ops.append(f"v_max_f32_dpp {vr(M)}, {vr(M)}, {vr(M)} row_ror:{rr} {DPP}")
            ops += [f"v_mov_b32 {vr(t1)}, {vr(M)}", f"v_permlane16_swap_b32 {vr(M)}, {vr(t1)}", f"v_max_f32 {vr(M)}, {vr(M)}, {vr(t1)}",
                    f"v_mov_b32 {vr(t1)}, {vr(M)}", f"v_permlane32_swap_b32 {vr(M)}, {vr(t1)}", f"v_max_f32 {vr(M)}, {vr(M)}, {vr(t1)}",
                    f"v_mul_f32 {vr(M)}, {sr(sC)}, {vr(M)}",
                    f"v_fma_f32 {vr(Sa)}, {vr(Sa)}, {sr(sC)}, -{vr(M)}",
                    f"v_exp_f32 {vr(Sa)}, {vr(Sa)}",
                    f"v_mov_b32_dpp {vr(t1)}, {vr(Sa)} quad_perm:[1,1,3,3] {DPP}",
                    f"v_cvt_pk_bf16_f32 {vr(t1)}, {vr(Sa)}, {vr(t1)}",
                    f"v_mov_b32_dpp {vr(t2)}, {vr(t1)} quad_perm:[2,2,2,2] {DPP}"]
            if row == 0:
                ops += [f"v_cndmask_b32 {vr(P)}, 0, {vr(t1)}, {sr(mI0,2)}", f"v_cndmask_b32 {vr(P+1)}, 0, {vr(t2)}, {sr(mI0,2)}"]
            else:
                ops += [f"v_mov_b32_dpp {vr(t3)}, {vr(t1)} quad_perm:[0,0,0,0] {DPP}",
                        f"v_cndmask_b32 {vr(P)}, 0, {vr(t3)}, {sr(mI1,2)}", f"v_cndmask_b32 {vr(P+1)}, 0, {vr(t2)}, {sr(mI1,2)}"]
            return ops
        vt_reads = self.vt_reads
        def qk_block(Tt):
            kb = KBASE[Tt]
            def half(tiles, fill):
                for cc in range(8):
                    for u in range(2):
                        for tl in tiles:
                            c = "0" if (cc == 0 and u == 0) else vr(S+4*tl, 4)
                            I(f"v_mfma_f32_4x4x4_16b_bf16 {vr(S+4*tl,4)}, {vr(Q+2*u,2)}, {ar(kb+32*tl+4*cc+2*u,2)}, {c} cbsz:3 abid:{cc}")
                            self.slot(fill)
            f0 = vt_reads(Tt, 0)
            half((0, 1), f0)
            f0 += softmax_ops(24, 28, 25, P0, 0, 26, 27, None)
            half((2, 3), f0)
            for x in f0: I(x)
        self.both_T("QK", qk_block)
        self.stamp("SM")
        self.site("PV", ("lt", 2))
        self.stamp("Vok")
        OL, OH = 64, 68
        F0, F1, MW, LW = 26, 27, 28, 29
        def pv_block(Tt):
            def src(n): return VBASE[Tt] + 4 * n if n < NVREG else VT + 4 * ((n - NVREG) % 5)
            def mm(n, first, fill):
                J, b = n >> 4, n & 15
                Pp = P0 if J == 0 else P1
                c = "0" if first else vr(OL, 4)
                I(f"v_mfma_f32_4x4x4_16b_bf16 {vr(OL,4)}, {vr(Pp,2)}, {vr(src(n),2)}, {c} cbsz:4 abid:{b}")
                self.slot(fill)
                c = "0" if first else vr(OH, 4)
                I(f"v_mfma_f32_4x4x4_16b_bf16 {vr(OH,4)}, {vr(Pp,2)}, {vr(src(n)+2,2)}, {c} cbsz:4 abid:{b}")
                self.slot(fill)
            f1 = softmax_ops(32, 36, 33, P1, 1, 34, 35, 37)
            for n in range(16): mm(n, n == 0, f1)
            for x in f1: I(x)
            f2 = [f"v_max_f32 {vr(MW)}, v25, v33", f"v_sub_f32 {vr(F0)}, v25, {vr(MW)}", f"v_sub_f32 {vr(F1)}, v33, {vr(MW)}",
                  f"v_exp_f32 {vr(F0)}, {vr(F0)}", f"v_exp_f32 {vr(F1)}, {vr(F1)}",
                  f"v_mul_f32 {vr(LW)}, {vr(F0)}, v24", f"v_fmac_f32 {vr(LW)}, {vr(F1)}, v32"]
            f3 = []
            for rr in (8, 4, 2, 1): f3.append(f"v_add_f32_dpp {vr(LW)}, {vr(LW)}, {vr(LW)} row_ror:{rr} {DPP}")
            f3 += [f"v_mov_b32 v30, {vr(LW)}", f"v_permlane16_swap_b32 {vr(LW)}, v30", f"v_add_f32 {vr(LW)}, {vr(LW)}, v30",
                   f"v_mov_b32 v30, {vr(LW)}", f"v_permlane32_swap_b32 {vr(LW)}, v30", f"v_add_f32 {vr(LW)}, {vr(LW)}, v30"]
            I("s_waitcnt lgkmcnt(0)")
            f2 += f3[:2]; f3 = f3[2:]
            for n in range(22, 27): mm(n, False, f2)
            rd = vt_reads(Tt, 5)
            f4 = rd + f2
            for n in range(16, 22): mm(n, False, f4)
            nrd_left = len([x for x in f4 if x.startswith("ds_read")])
            rest = []
            for x in f4:
                if x.startswith("ds_read"): I(x)
                else: rest.append(x)
            f5 = rest + f3
            for n in range(27, 32):
                I(f"s_waitcnt lgkmcnt({0 if self.profile else 2*(31-n)})")
                mm(n, False, f5)
            for x in f5: I(x)
        self.both_T("PV", pv_block)
        I(f"s_lshl_b32 {sr(sT)}, {sr(sV)}, 9"); I(f"s_add_u32 {sr(sT)}, {sr(sT)}, {OB}"); I(f"v_add_u32 v40, {sr(sT)}, {vr(vL4)}")
        I(f"s_lshl_b32 {sr(sT)}, {sr(sV)}, 3"); I(f"s_add_u32 {sr(sT)}, {sr(sT)}, {MB}"); I(f"v_mov_b32 v41, {sr(sT)}")
        I("s_mov_b64 exec, 1")
        I(f"ds_write_b64 v41, v[{MW}:{MW+1}]")
        I("s_mov_b64 exec, -1")
        I(f"v_mul_f32 v30, {vr(F0)}, {vr(OL)}"); I(f"v_mul_f32 v31, {vr(F0)}, {vr(OH)}")
        I(f"v_fmac_f32 v30, {vr(F1)}, {vr(OL+1)}"); I(f"v_fmac_f32 v31, {vr(F1)}, {vr(OH+1)}")
        I("ds_write_b32 v40, v30"); I("ds_write_b32 v40, v31 offset:256")
        I(f"v_lshlrev_b32 v42, 3, {vr(vLane)}"); I(f"v_add_u32 v42, {OB}, v42"); I(f"v_mov_b32 v43, {MB}")
        self.stamp("PV")
        I("s_waitcnt lgkmcnt(0)")
        I("s_barrier")
        self.stamp("Obar")
        self.wo_reads()
        I(f"s_cmp_lg_u32 {sr(sV)}, 0"); I("s_cbranch_scc1 " + ("L_CBN" if self.cfg.get("slpB") else "L_CB"))
        I("ds_read_b128 v[24:27], v43"); I("ds_read_b128 v[28:31], v43 offset:16")
        for w in range(4): I(f"ds_read_b64 v[{32+2*w}:{33+2*w}], v42 offset:{512*w}")
        I(f"s_waitcnt lgkmcnt({0 if self.profile else 4})")
        I("v_max3_f32 v44, v24, v26, v28"); I("v_max_f32 v44, v44, v30")
        I("v_sub_f32 v24, v24, v44"); I("v_sub_f32 v26, v26, v44"); I("v_sub_f32 v28, v28, v44"); I("v_sub_f32 v30, v30, v44")
        I("v_exp_f32 v24, v24"); I("v_exp_f32 v26, v26"); I("v_exp_f32 v28, v28"); I("v_exp_f32 v30, v30")
        I("v_mul_f32 v45, v24, v25"); I("v_fmac_f32 v45, v26, v27"); I("v_fmac_f32 v45, v28, v29"); I("v_fmac_f32 v45, v30, v31")
        I("s_waitcnt lgkmcnt(0)")
        I("v_rcp_f32 v46, v45")
        I("v_mul_f32 v48, v24, v32"); I("v_mul_f32 v49, v24, v33")
        I("v_fmac_f32 v48, v26, v34"); I("v_fmac_f32 v49, v26, v35")
        I("v_fmac_f32 v48, v28, v36"); I("v_fmac_f32 v49, v28, v37")
        I("v_fmac_f32 v48, v30, v38"); I("v_fmac_f32 v49, v30, v39")
        I("v_log_f32 v47, v45")
        I("v_mul_f32 v48, v48, v46"); I("v_mul_f32 v49, v49, v46")
        I("v_cvt_pk_bf16_f32 v48, v48, v49")
        I("v_add_f32 v47, v47, v44")
        I("v_mov_b32 v50, 0")
        I(f"s_cmp_lg_u32 {sr(sFast)}, 0"); I("s_cbranch_scc1 L_CBF")
        I(f"buffer_store_dword v48, {vr(vOpub)}, {sr(SRD['WS'],4)}, {sr(sOs)} offen sc1")
        I("s_mov_b64 exec, 1")
        I(f"buffer_store_dword v47, v50, {sr(SRD['WS'],4)}, {sr(sLpub)} offen sc1")
        I("s_branch L_CBE")
        self.label("L_CBF")
        I(f"buffer_store_dword v48, {vr(vOpub)}, {sr(SRD['WS'],4)}, {sr(sOs)} offen")
        I("s_mov_b64 exec, 1")
        I(f"buffer_store_dword v47, v50, {sr(SRD['WS'],4)}, {sr(sLpub)} offen")
        self.label("L_CBE")
        I("s_mov_b64 exec, -1")
        self.label("L_CB")
        if self.cfg.get("slpB"):
            I("s_branch L_CBX")
            self.label("L_CBN")
            I(f"s_sleep {self.cfg['slpB']}")
            self.label("L_CBX")
        self.stamp("Opub")
        def b_spec():
            I("s_waitcnt lgkmcnt(0)")
            for k in range(4):
                c = "0" if k == 0 else vr(DY, 4)
                I(f"v_mfma_f32_16x16x32_bf16 {vr(DY,4)}, {vr(W2+4*k,4)}, {vr(O_+4*k,4)}, {c}")
        self.hop("B", self.b_issue, self.b_check, b_spec, shadow_fn=self.bookkeeping, site=("eq", 0))
        self.stamp("Bok")
        I(f"v_mov_b32_dpp v41, {vr(LS)} quad_perm:[1,0,3,2] {DPP}")
        I(f"v_max_f32 v41, v41, {vr(LS)}")
        I(f"v_mov_b32_dpp v42, v41 quad_perm:[2,3,0,1] {DPP}")
        I("v_max_f32 v41, v41, v42")
        I(f"v_sub_f32 v41, {vr(LS)}, v41")
        I("v_exp_f32 v41, v41")
        I(f"v_add_f32_dpp v42, v41, v41 quad_perm:[1,0,3,2] {DPP}")
        I(f"v_add_f32_dpp v42, v42, v42 quad_perm:[2,3,0,1] {DPP}")
        I("v_rcp_f32 v42, v42")
        I("v_mul_f32 v41, v41, v42")
        for i in range(4): I(f"v_mul_f32 {vr(DY+i)}, {vr(DY+i)}, v41")
        for i in range(4): I(f"v_add_f32_dpp {vr(DY+i)}, {vr(DY+i)}, {vr(DY+i)} quad_perm:[1,0,3,2] {DPP}")
        for i in range(4): I(f"v_add_f32_dpp {vr(DY+i)}, {vr(DY+i)}, {vr(DY+i)} quad_perm:[2,3,0,1] {DPP}")
        I(f"s_mov_b64 exec, {sr(mJ04,2)}")
        I(f"buffer_store_dwordx4 {vr(DY,4)}, {vr(vYpub)}, {sr(SRD['WS'],4)}, {sr(sYpub)} offen sc1")
        I("s_mov_b64 exec, -1")
        self.stamp("Ypub")
        self.site("YL", ("eq", 0))
        if not self.cfg.get("c_late"):
            I(f"s_cmp_lg_u32 {sr(sV)}, 0"); I("s_cbranch_scc1 L_C0")
            self.c_issue()
            self.label("L_C0")
        self.advance()
        self.wq_reads()
        self.prefill()
        I(f"s_cmp_lg_u32 {sr(sV)}, 0"); I("s_cbranch_scc1 L_CXN")
        if self.cfg.get("c_late"):
            self.backoff("C")
            self.c_issue()
        I("s_waitcnt vmcnt(0)")
        self.hop_tail("C", self.c_issue, self.c_check)
        self.stamp("Cok")
        Tm = 72
        for i in range(4): I(f"v_add_f32 {vr(Y+i)}, {vr(Y+i)}, {vr(Y+4+i)}")
        for i in range(4): I(f"v_add_f32 {vr(Y+8+i)}, {vr(Y+8+i)}, {vr(Y+12+i)}")
        for i in range(4): I(f"v_add_f32 {vr(Y+i)}, {vr(Y+i)}, {vr(Y+8+i)}")
        for i in range(4): I(f"v_add_f32_dpp {vr(Y+i)}, {vr(Y+i)}, {vr(Y+i)} row_ror:8 {DPP}")
        for i in range(4): I(f"v_mov_b32 v{Tm+i}, {vr(Y+i)}")
        for i in range(4): I(f"v_permlane16_swap_b32 {vr(Y+i)}, v{Tm+i}")
        for i in range(4): I(f"v_add_f32 {vr(Y+i)}, {vr(Y+i)}, v{Tm+i}")
        for i in range(4): I(f"v_mov_b32 v{Tm+i}, {vr(Y+i)}")
        for i in range(4): I(f"v_permlane32_swap_b32 {vr(Y+i)}, v{Tm+i}")
        for i in range(4): I(f"v_add_f32 {vr(Y+i)}, {vr(Y+i)}, v{Tm+i}")
        I(f"v_cvt_pk_bf16_f32 v60, {vr(Y)}, {vr(Y+1)}"); I(f"v_cvt_pk_bf16_f32 v61, {vr(Y+2)}, {vr(Y+3)}")
        I("v_lshlrev_b32 v62, 16, v60"); I("v_and_b32 v63, 0xffff0000, v60"); I("v_lshlrev_b32 v64, 16, v61"); I("v_and_b32 v65, 0xffff0000, v61")
        for i in range(4): I(f"v_add_f32 v{62+i}, v{62+i}, {vr(vXold+i)}")
        I("v_cvt_pk_bf16_f32 v60, v62, v63"); I("v_cvt_pk_bf16_f32 v61, v64, v65")
        I("s_mov_b64 exec, 0xff")
        self.pub2("x", lambda fl: f"buffer_store_dwordx2 v[60:61], v79, {sr(SRD['XDST'],4)}, 0 offen {fl}")
        I("s_mov_b64 exec, -1")
        I(f"v_lshlrev_b32 {vr(vXold)}, 16, v60"); I(f"v_and_b32 {vr(vXold+1)}, 0xffff0000, v60")
        I(f"v_lshlrev_b32 {vr(vXold+2)}, 16, v61"); I(f"v_and_b32 {vr(vXold+3)}, 0xffff0000, v61")
        self.stamp("Xpub")
        self.site("X1", ("eq", 0))
        if self.cfg.get("slpD"):
            I("s_branch L_CX")
            self.label("L_CXN")
            I(f"s_cmp_eq_u32 {sr(sL)}, 3"); I("s_cbranch_scc1 L_CX")
            I(f"s_sleep {self.cfg['slpD']}")
        else:
            self.label("L_CXN")
        self.label("L_CX")
        I(f"s_add_u32 {sr(sYpoll)}, {sr(sYpoll)}, {LAYER_STRIDE}")
        self.flush_stamps()
        I(f"s_add_u32 {sr(sL)}, {sr(sL)}, 1")
        I(f"s_cmp_lt_u32 {sr(sL)}, 4")
        I("s_cbranch_scc1 L_LOOP")

    def build(self):
        self.build_items()
        self.prologue()
        self.I("s_branch S_START")
        st0 = self.state()
        self.cur = self.main
        self.mainline()
        if self.profile:
            self.I("s_memrealtime s[94:95]"); self.I("s_memtime s[96:97]"); self.I("s_waitcnt lgkmcnt(0)")
            self.I(f"v_mov_b32 {vr(vStD)}, s94"); self.I(f"v_writelane_b32 {vr(vStD)}, s96, 1")
            self.I("s_mov_b64 exec, 3")
            self.I(f"buffer_store_dword {vr(vStD)}, {vr(vStA)}, {sr(SRD['WS'],4)}, 0 offen offset:768")
            self.I("s_mov_b64 exec, -1")
        self.label("L_END")
        self.I("s_endpgm")
        self.set_state(st0)
        (programs_rot if self.cfg.get('plan', 'rot') == 'rot' else programs)(self)
        hdr = [f"; @launch grid=(256,1,1) block=(256,1,1) lds={LDS_BYTES}", '.amdgcn_target "amdgcn-amd-amdhsa--gfx950"',
               ".text", f".globl {KNAME}", ".p2align 8", f".type {KNAME},@function", f"{KNAME}:"]
        tail = ['.section .rodata,"a"', ".p2align 6", f".amdhsa_kernel {KNAME}",
                "  .amdhsa_next_free_vgpr 512", "  .amdhsa_next_free_sgpr 102", "  .amdhsa_accum_offset 256",
                "  .amdhsa_group_segment_fixed_size 0", "  .amdhsa_kernarg_size 104", "  .amdhsa_user_sgpr_count 2",
                "  .amdhsa_user_sgpr_kernarg_segment_ptr 1", "  .amdhsa_system_sgpr_workgroup_id_x 1",
                "  .amdhsa_float_denorm_mode_32 3", ".end_amdhsa_kernel"]
        return "\n".join(hdr + self.main.lines + self.ool.lines + tail) + "\n"

BCQ = COMMON + 3200
def startup_check(G, skip_role=False):
    I = G.I
    lo = G.newlab("SCO"); lp = G.newlab("SCL"); dn = G.newlab("SCD")
    if not skip_role:
        I(f"s_cmp_lg_u32 {sr(sV)}, 0"); I(f"s_cbranch_scc1 {lo}")
        I(f"v_lshrrev_b32 v72, 1, {vr(vLane)}"); I("v_lshlrev_b32 v72, 6, v72")
        I(f"v_and_b32 v73, 1, {vr(vLane)}"); I("v_lshl_add_u32 v72, v73, 3, v72")
    I(f"s_mov_b32 {sr(sCnt)}, 0")
    if skip_role:
        I("v_sad_u8 v73, v74, 0, 0"); I("v_sad_u8 v73, v75, 0, v73")
        I("v_cmp_ne_u32 vcc, 32, v73"); I("s_and_b64 vcc, vcc, 0xff")
        I(f"s_cbranch_scc0 {dn}")
    G.label(lp)
    I("s_mov_b64 exec, 0xff")
    I(f"global_load_dwordx2 v[74:75], v72, {sr(sDBG,2)} sc1")
    I("s_mov_b64 exec, -1")
    I("s_waitcnt vmcnt(0)")
    I("v_sad_u8 v73, v74, 0, 0"); I("v_sad_u8 v73, v75, 0, v73")
    I("v_cmp_ne_u32 vcc, 32, v73"); I("s_and_b64 vcc, vcc, 0xff")
    I(f"s_cbranch_scc0 {dn}")
    I(f"s_add_u32 {sr(sCnt)}, {sr(sCnt)}, 1")
    I(f"s_cmp_lt_u32 {sr(sCnt)}, {G.cfg.get('spin', 40000)}")
    I(f"s_cbranch_scc1 {lp}")
    G.label(dn)
    I(f"v_readlane_b32 {sr(sT2)}, v74, {sr(sG)}")
    I(f"v_readlane_b32 {sr(sT3)}, v75, {sr(sG)}")
    I(f"s_lshl_b32 {sr(sT)}, {sr(sXcc)}, 3")
    I(f"s_lshr_b64 s[{sT2}:{sT3}], s[{sT2}:{sT3}], {sr(sT)}")
    I(f"s_and_b32 {sr(sT2)}, {sr(sT2)}, 0xff")
    I(f"s_cmp_eq_u32 {sr(sT2)}, 32")
    I(f"s_cselect_b32 {sr(sT2)}, {0 if G.cfg.get('force_slow') else 1}, 0")
    I(f"v_mov_b32 v72, {COMMON + FLG_OFF}"); I(f"v_mov_b32 v73, {sr(sT2)}")
    I("ds_write_b32 v72, v73"); I("s_waitcnt lgkmcnt(0)")
    G.label(lo)

def arrive(G):
    I = G.I
    assert "clear" not in G.vmq
    l = G.newlab("ARR")
    I(f"s_cmp_lg_u32 {sr(sV)}, 3"); I(f"s_cbranch_scc1 {l}")
    I(f"s_lshl_b32 {sr(sT)}, {sr(sXcc)}, 3")
    I(f"s_lshl_b64 s[76:77], 1, {sr(sT)}")
    I("v_mov_b32 v72, s76"); I("v_mov_b32 v73, s77")
    I(f"s_lshr_b32 {sr(sT)}, {sr(sG)}, 1"); I(f"s_lshl_b32 {sr(sT)}, {sr(sT)}, 6")
    I(f"s_and_b32 s76, {sr(sG)}, 1"); I("s_lshl_b32 s76, s76, 3"); I(f"s_add_u32 {sr(sT)}, {sr(sT)}, s76")
    I(f"v_mov_b32 v74, {sr(sT)}")
    I("s_mov_b64 exec, 1")
    I(f"global_atomic_add_x2 v74, v[72:73], {sr(sDBG,2)}")
    I("s_mov_b64 exec, -1")
    G.label(l)

def read_flag(G):
    I = G.I
    I(f"v_mov_b32 v72, {COMMON + FLG_OFF}"); I("ds_read_b32 v73, v72"); I("s_waitcnt lgkmcnt(0)")
    I(f"v_readfirstlane_b32 {sr(sFast)}, v73")

def colsum_publish(G):
    I = G.I
    I(f"v_and_b32 v72, 0x7ff, {vr(vQpub)}")
    I(f"s_sub_u32 {sr(sT)}, {sr(sQs)}, {QS_OFF}"); I(f"s_lshr_b32 {sr(sT2)}, {sr(sH)}, 0")
    I(f"s_lshl_b32 {sr(sT2)}, {sr(sH)}, 11"); I(f"s_sub_u32 {sr(sT)}, {sr(sT)}, {sr(sT2)}"); I(f"s_add_u32 {sr(sT)}, {sr(sT)}, {CS_OFF}")
    I("s_mov_b32 exec_lo, 0x00040004"); I("s_mov_b32 exec_hi, 0x00040004")
    G.vm("cspub", f"buffer_store_dwordx4 v[56:59], v72, {sr(SRD['WS'],4)}, {sr(sT)} offen sc1")
    I("s_mov_b64 exec, -1")

def cs_soff(G):
    I = G.I
    I(f"s_sub_u32 {sr(sT)}, {sr(sQs)}, {QS_OFF}"); I(f"s_lshl_b32 {sr(sT2)}, {sr(sH)}, 11"); I(f"s_sub_u32 {sr(sT)}, {sr(sT)}, {sr(sT2)}"); I(f"s_add_u32 {sr(sT)}, {sr(sT)}, {CS_OFF}")
def cs_issue(G, track):
    cs_soff(G)
    for e in range(2):
        t = f"buffer_load_dwordx4 {vr(44+4*e,4)}, {vr(vL16)}, {sr(SRD['WS'],4)}, {sr(sT)} offen offset:{1024*e} sc1"
        G.vm("pollA", t) if track else G.I(t)
def colsum_finish(G):
    I = G.I
    lp = G.newlab("CSL"); dn = G.newlab("CSD")
    I(f"s_mov_b32 {sr(sCnt)}, 0")
    G.label(lp)
    G.chk(range(44, 52), 52, 53)()
    I(f"s_cbranch_scc0 {dn}")
    cs_issue(G, False)
    I("s_waitcnt vmcnt(0)")
    I(f"s_add_u32 {sr(sCnt)}, {sr(sCnt)}, 1"); I(f"s_cmp_lt_u32 {sr(sCnt)}, {G.cfg.get('spin', 40000)}"); I(f"s_cbranch_scc1 {lp}")
    G.label(dn)
    for i in range(8): I(f"v_add_f32_dpp {vr(44+i)}, {vr(44+i)}, {vr(44+i)} quad_perm:[1,0,3,2] {DPP}")
    for i in range(8): I(f"v_add_f32_dpp {vr(44+i)}, {vr(44+i)}, {vr(44+i)} quad_perm:[2,3,0,1] {DPP}")
    I("s_waitcnt lgkmcnt(0)")
    I(f"s_mov_b64 exec, {sr(mI0,2)}")
    I(f"ds_write_b128 {vr(vCsRd)}, v[44:47]"); I(f"ds_write_b128 {vr(vCsRd)}, v[48:51] offset:16")
    I("s_mov_b64 exec, -1")
    for i in range(8): I(f"v_mov_b32 {vr(34+i)}, {vr(44+i)}")
    I("s_waitcnt lgkmcnt(0)")

BC, BC2 = OB, COMMON + 3136

def poll_loop(G, iss, chk, name=None):
    I = G.I
    lp = G.newlab("PL"); dn = G.newlab("PD")
    I(f"s_mov_b32 {sr(sCnt)}, 0")
    first, each = G.cfg.get("p1" + name, [0, 0]) if name else (0, 0)
    if first: I(f"s_sleep {first}")
    G.label(lp)
    if each: I(f"s_sleep {each}")
    iss()
    I("s_waitcnt vmcnt(0)")
    chk()
    I(f"s_cbranch_scc0 {dn}")
    I(f"s_add_u32 {sr(sCnt)}, {sr(sCnt)}, 1"); I(f"s_cmp_lt_u32 {sr(sCnt)}, {G.cfg.get('spin', 40000)}"); I(f"s_cbranch_scc1 {lp}")
    G.label(dn)
    G.vmq = []

def set_flag(G, n):
    I = G.I
    I("s_waitcnt lgkmcnt(0)")
    I(f"v_mov_b32 v72, {COMMON + HOP_OFF}"); I(f"v_mov_b32 v73, {n}")
    I("s_mov_b64 exec, 1"); I("ds_write_b32 v72, v73"); I("s_mov_b64 exec, -1")

def flag_check(G, n):
    I = G.I
    I(f"v_mov_b32 v72, {COMMON + HOP_OFF}"); I("ds_read_b32 v73, v72"); I("s_waitcnt lgkmcnt(0)")
    I(f"v_readfirstlane_b32 {sr(sT)}, v73"); I(f"s_cmp_lt_u32 {sr(sT)}, {n}")

def s_wait(G, n, steps, chunk, depth):
    I = G.I
    rest = [G.newlab("SW") for _ in range(steps + 1)]
    chunks = []; first = None
    for k in range(steps):
        G.wait_out(max(depth - chunk, 0))
        if first is None: first = list(G.vmq)
        chunks.append(G.issue(chunk))
        flag_check(G, n)
        I(f"s_cbranch_scc0 {rest[k+1]}")
    lp = G.newlab("SWL"); dn = G.newlab("SWD")
    I(f"s_mov_b32 {sr(sCnt)}, 0")
    G.label(lp)
    flag_check(G, n)
    I(f"s_cbranch_scc0 {dn}")
    I(f"s_add_u32 {sr(sCnt)}, {sr(sCnt)}, 1"); I(f"s_cmp_lt_u32 {sr(sCnt)}, {4 * G.cfg.get('spin', 40000)}"); I(f"s_cbranch_scc1 {lp}")
    I(f"s_branch {dn}")
    save = G.state()
    seen = list(G.vmq)
    for k in range(1, steps):
        G.label(rest[k])
        for it in chunks[k]: G.emit_item(it)
    G.label(rest[steps])
    G.label(dn)
    G.set_state(save)
    allc = [it for ch in chunks for it in ch]
    G.vmq = (first + allc) if chunks else seen


def programs(G):
    c = G.cfg; I = G.I
    dA = c.get("dA", 24); dS = c.get("dS", 10); ch = c.get("ch", 2)
    allW = lambda m, T: all(G.landed(("W", m, T, k)) for k in range(4))
    G.block("S_START")
    G.bg_until(lambda: allW("q", "A"), depth=dA, allow=())
    G.issue(max(c.get("d0", 32) - len(G.vmq), 0))
    startup_check(G)
    I("s_barrier")
    read_flag(G)
    G.need("x0"); G.need("xold")
    I(f"v_and_b32 {vr(vXold+3)}, 0xffff0000, {vr(vXold+1)}"); I(f"v_lshlrev_b32 {vr(vXold+2)}, 16, {vr(vXold+1)}")
    I(f"v_and_b32 {vr(vXold+1)}, 0xffff0000, {vr(vXold)}"); I(f"v_lshlrev_b32 {vr(vXold)}, 16, {vr(vXold)}")
    G.wq_reads()
    G.jump("C_D")
    G.block("S_A0")
    I(f"s_cmp_eq_u32 {sr(sL)}, 0"); I("s_cbranch_scc0 S_A0_1")
    colsum_publish(G)
    G.bg_until(lambda: G.kdone["A"] == 4, depth=dA)
    cs_issue(G, True)
    n0 = len(G.vmq)
    G.a_issue(); G.vmq += ["pollA"] * 3
    G.issue(c.get("aA_after", 8))
    G.need("pollA")
    I("s_waitcnt lgkmcnt(0)")
    colsum_finish(G)
    G.jump("C_A")
    G.block("S_PV")
    I(f"s_cmp_eq_u32 {sr(sL)}, 0"); I("s_cbranch_scc0 S_PV_1")
    I("s_waitcnt lgkmcnt(0)")
    lastA = max(G.items.index(("V", "A", 31)), G.items.index(("W", "q", "B", 3)), G.items.index(("W", "o", "A", 3)))
    G.bg_until(lambda: G.next_item > lastA, depth=dA)
    G.bg_until(lambda: G.vdone["A"] == NVREG and G.landed(("V", "A", 31)) and allW("o", "A") and allW("q", "B"), depth=dS, chunk=ch)
    for x in G.vt_reads("A", 0): I(x)
    G.jump("R_PV")
    common = G.state()
    ws = {}
    def seg(n):
        tgt = min(G.next_item + n, len(G.items))
        G.bg_until(lambda: G.next_item >= tgt or not G.can_issue(G.items[G.next_item]) and G.kdone["B"] == 4, depth=dS, chunk=ch)
    def transition():
        G.flush_stamps()
        G.advance()
        I(f"s_add_u32 {sr(sYpoll)}, {sr(sYpoll)}, {LAYER_STRIDE}")
        I(f"s_add_u32 {sr(sL)}, {sr(sL)}, 1")
    def finish(have_q):
        G.bg_until(lambda: G.kdone["B"] == 4 and G.next_item == len(G.items), depth=c.get("dF", 12), chunk=c.get("chF", 4))
        if not have_q:
            lp = G.newlab("QW"); dn = G.newlab("QD")
            I(f"s_mov_b32 {sr(sCnt)}, 0")
            G.label(lp)
            flag_check(G, 1)
            I(f"s_cbranch_scc0 {dn}")
            I(f"s_add_u32 {sr(sCnt)}, {sr(sCnt)}, 1"); I(f"s_cmp_lt_u32 {sr(sCnt)}, {8 * c.get('spin', 40000)}"); I(f"s_cbranch_scc1 {lp}")
            G.label(dn)
            I(f"v_lshrrev_b32 v68, 2, {vr(vLane)}"); I("v_lshlrev_b32 v68, 4, v68"); I(f"v_add_u32 v68, {BCQ}, v68")
            I("ds_read_b128 v[76:79], v68")
            I("s_waitcnt lgkmcnt(0)")
        G.jump("L_QK")
    G.block("S_B")
    I(f"s_cmp_eq_u32 {sr(sV)}, 1"); I("s_cbranch_scc1 P_W1")
    I(f"s_cmp_eq_u32 {sr(sV)}, 2"); I("s_cbranch_scc1 P_W2")
    I(f"s_cmp_eq_u32 {sr(sV)}, 3"); I("s_cbranch_scc1 P_W3")
    G.set_state(common)
    seg(c.get("n0", 8))
    G.bookkeeping()
    G.advance()
    I("s_waitcnt lgkmcnt(0)")
    poll_loop(G, G.c_issue, G.c_check)
    G.jump("K_C")
    G.block("S_X1")
    G.flush_stamps()
    I(f"s_add_u32 {sr(sYpoll)}, {sr(sYpoll)}, {LAYER_STRIDE}")
    I(f"s_add_u32 {sr(sL)}, {sr(sL)}, 1")
    finish(False)
    ws[0] = G.state()
    G.block("P_W1")
    G.set_state(common)
    poll_loop(G, G.b_issue, G.b_check)
    I(f"s_mov_b32 {sr(sK)}, 0")
    G.jump("C_B")
    G.block("S_YL")
    I(f"s_add_u32 {sr(sK)}, {sr(sK)}, 1")
    I(f"s_cmp_eq_u32 {sr(sK)}, 3"); I(f"s_cselect_b32 {sr(sT)}, -3, 1")
    I(f"s_lshl_b32 {sr(sT2)}, {sr(sT)}, 12"); I(f"s_add_u32 {sr(sYpub)}, {sr(sYpub)}, {sr(sT2)}")
    I(f"s_lshl_b32 {sr(sT2)}, {sr(sT)}, 5"); I(f"v_add_u32 {vr(vWRd)}, {sr(sT2)}, {vr(vWRd)}")
    I(f"s_cmp_eq_u32 {sr(sK)}, 4"); I("s_cbranch_scc1 P_W1B")
    G.wo_reads()
    G.jump("C_B")
    G.label("P_W1B")
    G.bookkeeping()
    transition()
    finish(False)
    ws[1] = G.state()
    G.block("P_W2")
    G.set_state(common)
    seg(c.get("n2", 20))
    G.bookkeeping()
    transition()
    G.prefill()
    G.wq_reads()
    poll_loop(G, G.d_issue, G.d_check)
    I(f"s_mov_b32 {sr(sK)}, 0")
    I(f"s_mov_b32 {sr(mStat)}, 3")
    G.jump("C_D")
    G.block("S_A0_1")
    colsum_publish(G)
    I(f"s_mov_b32 {sr(mStat)}, 0")
    I(f"s_add_u32 {sr(sK)}, {sr(sK)}, 1")
    I(f"s_cmp_eq_u32 {sr(sK)}, 2"); I(f"s_cselect_b32 {sr(sT)}, -3, 1")
    I(f"s_lshl_b32 {sr(sT2)}, {sr(sT)}, 7"); I(f"v_add_u32 {vr(vQpub)}, {sr(sT2)}, {vr(vQpub)}")
    I(f"s_lshl_b32 {sr(sT2)}, {sr(sT)}, 5"); I(f"v_add_u32 {vr(vWRd)}, {sr(sT2)}, {vr(vWRd)}")
    I(f"s_cmp_eq_u32 {sr(sK)}, 4"); I("s_cbranch_scc1 P_W2B")
    G.wq_reads()
    G.jump("C_D")
    G.label("P_W2B")
    G.vmq = []
    finish(False)
    ws[2] = G.state()
    G.block("P_W3")
    G.set_state(common)
    seg(c.get("n3", 30))
    G.bookkeeping()
    transition()
    def iss3():
        cs_issue(G, False); G.a_issue()
    poll_loop(G, iss3, G.chk(list(range(24, 34)) + list(range(44, 52)), 69, 70))
    colsum_finish(G)
    G.jump("C_A")
    G.block("S_Q1")
    I(f"v_lshrrev_b32 v68, 2, {vr(vLane)}"); I("v_lshlrev_b32 v68, 4, v68"); I(f"v_add_u32 v68, {BCQ}, v68")
    I(f"s_mov_b64 exec, {sr(mI0,2)}")
    I("ds_write_b128 v68, v[76:79]")
    I("s_mov_b64 exec, -1")
    set_flag(G, 1)
    finish(True)
    ws[3] = G.state()
    G.block("S_PV_1")
    I("s_waitcnt lgkmcnt(0)")
    labs = [G.newlab("PV1") for _ in range(4)]
    for w in (1, 2, 3):
        I(f"s_cmp_eq_u32 {sr(sV)}, {w}"); I(f"s_cbranch_scc1 {labs[w]}")
    for w in range(4):
        G.label(labs[w])
        G.set_state(ws[w])
        G.bg_until(lambda: G.vdone["B"] == NVREG and not G.vmq, depth=16)
        assert G.next_item == len(G.items) and G.kdone == {"A": 4, "B": 4} and G.vdone == {"A": NVREG, "B": NVREG}
        for x in G.vt_reads("B", 0): I(x)
        G.jump("R_PV")


def programs_rot(G):
    c = G.cfg; I = G.I
    dA = c.get("dA", 24); dS = c.get("dS", 10); ch = c.get("ch", 2); d1 = c.get("d1", 16)
    w_after = c.get("w_after", False)
    allW = lambda m, T: all(G.landed(("W", m, T, k)) for k in range(4))
    BC, BC2 = OB, COMMON + 3136
    G.block("S_START")
    G.bg_until(lambda: allW("q", "A"), depth=dA, allow=())
    G.issue(max(c.get("d0", 32) - len(G.vmq), 0))
    startup_check(G)
    I("s_barrier")
    read_flag(G)
    G.need("x0"); G.need("xold")
    I(f"v_and_b32 {vr(vXold+3)}, 0xffff0000, {vr(vXold+1)}"); I(f"v_lshlrev_b32 {vr(vXold+2)}, 16, {vr(vXold+1)}")
    I(f"v_and_b32 {vr(vXold+1)}, 0xffff0000, {vr(vXold)}"); I(f"v_lshlrev_b32 {vr(vXold)}, 16, {vr(vXold)}")
    G.wq_reads()
    G.jump("C_D")
    G.block("S_A0")
    I(f"s_cmp_eq_u32 {sr(sL)}, 0"); I("s_cbranch_scc0 S_A0_1")
    colsum_publish(G)
    G.bg_until(lambda: G.kdone["A"] == 4, depth=dA)
    cs_issue(G, True)
    G.a_issue(); G.vmq += ["pollA"] * 3
    G.bg_until(lambda: G.vdone["A"] >= c.get("vA_pre", 15) and "pollA" not in G.vmq, depth=dA)
    I("s_waitcnt lgkmcnt(0)")
    colsum_finish(G)
    G.jump("C_A")
    G.block("S_PV")
    I(f"s_cmp_eq_u32 {sr(sL)}, 0"); I("s_cbranch_scc0 S_PV_1")
    I("s_waitcnt lgkmcnt(0)")
    lastA = max(G.items.index(("V", "A", 31)), G.items.index(("W", "q", "B", 3)), G.items.index(("W", "o", "A", 3)))
    G.bg_until(lambda: G.next_item > lastA, depth=dA)
    if w_after:
        G.bg_until(lambda: G.vdone["A"] == NVREG and G.landed(("V", "A", 31)), depth=max(dS, 10), chunk=ch)
    else:
        G.bg_until(lambda: G.vdone["A"] == NVREG and G.landed(("V", "A", 31)) and allW("o", "A") and allW("q", "B"), depth=dS, chunk=ch)
    for x in G.vt_reads("A", 0): I(x)
    G.jump("R_PV")
    def s_relayout(limit_item):
        doneK, doneV = [], []
        while True:
            t = G.kdone["B"]
            if t < 4 and G.items.index(("K", "B", 8*t+7)) < limit_item and all(G.landed(("K", "B", 8*t+i)) for i in range(8)):
                G.k_relayout("B", t); doneK.append(t); continue
            n0 = G.vdone["B"]; grp = list(range(n0, min(n0 + 3, NVREG)))
            if grp and G.items.index(("V", "B", grp[-1])) < limit_item and all(G.landed(("V", "B", n)) for n in grp):
                G.v_relayout("B", grp); doneV.append(grp); continue
            break
        return doneK, doneV
    def pay(d):
        keep = G.state()
        lds_items = any(it[0] == "V" and it[1] == "B" and it[2] >= NVREG for it in d["items"])
        if not lds_items:
            for it in d["items"]: G.emit_item(it)
        for t in d["K"]:
            G.kdone["B"] = t; G.k_relayout("B", t)
        for grp in d["V"]:
            G.vdone["B"] = grp[0]; G.v_relayout("B", grp)
        if lds_items:
            G.kdone = dict(keep[2]); G.kdone["B"] = 4
            for it in d["items"]: G.emit_item(it)
        G.set_state(keep)
        I(f"s_waitcnt vmcnt({min(len(G.vmq), 63)})")
    def s_part(n, pre, steps):
        start = G.next_item; dK, dV = [], []
        for _ in range(pre):
            G.wait_out(max(dS - ch, 0)); G.issue(ch)
            a, b = s_relayout(start); dK += a; dV += b
        if n: s_wait(G, n, steps, ch, dS)
        return dict(items=G.items[start:G.next_item], K=dK, V=dV)
    G.block("S_B")
    I(f"s_cmp_eq_u32 {sr(sV)}, 1"); I("s_cbranch_scc1 P_B")
    dB = s_part(1, c.get("preB", 0), c.get("nB", 5))
    G.need(("W", "q", "B", 3))
    G.label("J_B")
    I(f"v_add_u32 v46, {BC}, {vr(vOoff)}"); I(f"v_add_u32 v47, {BC2}, {vr(vLoff)}")
    I("s_waitcnt lgkmcnt(0)")
    I(f"s_mov_b64 exec, {sr(mJ8,2)}")
    for k in range(4): I(f"ds_read_b128 {vr(24+4*k,4)}, v46 offset:{512*k}")
    I("ds_read_b32 v40, v47")
    I("s_mov_b64 exec, -1")
    I("s_waitcnt lgkmcnt(0)")
    I("s_barrier")
    if w_after: G.wo_reads()
    G.bookkeeping()
    G.jump("C_B")
    stB = G.state()
    G.block("P_B")
    def issB():
        I(f"buffer_load_dwordx4 v[24:27], {vr(vL16)}, {sr(SRD['WS'],4)}, {sr(sOs)} offen sc1")
        I(f"buffer_load_dwordx4 v[28:31], {vr(vL16)}, {sr(SRD['WS'],4)}, {sr(sOs)} offen offset:1024 sc1")
        I(f"buffer_load_dword v32, {vr(vLoff)}, {sr(SRD['WS'],4)}, {sr(sLpoll)} offen sc1")
    poll_loop(G, issB, G.chk(range(24, 33), 46, 47), 'B')
    I(f"v_add_u32 v46, {BC}, {vr(vL16)}"); I(f"v_add_u32 v47, {BC2}, {vr(vLoff)}")
    I("ds_write_b128 v46, v[24:27]"); I("ds_write_b128 v46, v[28:31] offset:1024"); I("ds_write_b32 v47, v32")
    set_flag(G, 1)
    G.jump("J_B")
    G.set_state(stB)
    G.block("S_YL")
    I(f"s_cmp_eq_u32 {sr(sV)}, 0"); I("s_cbranch_scc1 P_C")
    I(f"s_cmp_eq_u32 {sr(sV)}, 1"); I("s_cbranch_scc1 D_B")
    G.label("J_C")
    G.advance()
    dC = s_part(None, c.get("preC", 5), 0)
    G.cst_afterC = G.state()
    G.wq_reads(); G.prefill()
    G.flush_stamps()
    I(f"s_add_u32 {sr(sYpoll)}, {sr(sYpoll)}, {LAYER_STRIDE}"); I(f"s_add_u32 {sr(sL)}, {sr(sL)}, 1")
    I(f"s_cmp_eq_u32 {sr(sV)}, 2"); I("s_cbranch_scc1 P_D")
    G.label("J_DS")
    dD = s_part(2, c.get("preD", 3), c.get("nD", 5))
    G.label("J_D")
    I(f"s_and_b32 {sr(sT)}, {sr(sJ8)}, 3"); I(f"s_lshl_b32 {sr(sT)}, {sr(sT)}, 9"); I(f"s_sub_u32 {sr(sT)}, {BC}, {sr(sT)}")
    I(f"v_add_u32 v68, {sr(sT)}, {vr(vXoff)}")
    I("s_waitcnt lgkmcnt(0)")
    I(f"s_mov_b64 exec, {sr(mJ2,2)}")
    for k in range(4): I(f"ds_read_b128 {vr(24+4*k,4)}, v68 offset:{128*k}")
    I("s_mov_b64 exec, -1")
    I("s_waitcnt lgkmcnt(0)")
    I("s_barrier")
    G.jump("C_D")
    stD = G.state()
    G.block("D_B")
    G.set_state(stB); pay(dB); G.jump("J_C")
    G.block("P_C")
    G.advance()
    I("s_waitcnt lgkmcnt(0)")
    poll_loop(G, G.c_issue, G.c_check, 'C')
    G.jump("K_C")
    G.block("S_X1")
    G.flush_stamps()
    I(f"s_add_u32 {sr(sYpoll)}, {sr(sYpoll)}, {LAYER_STRIDE}"); I(f"s_add_u32 {sr(sL)}, {sr(sL)}, 1")
    G.wq_reads(); G.prefill()
    keep = G.state()
    G.set_state(after_C(G, stB, dC))
    if c.get("w0_late", True):
        assert not any(it[0] == "V" and it[1] == "B" and it[2] >= NVREG for it in dC["items"])
        for it in dC["items"]: G.emit_item(it)
        lp = G.newlab("W0L"); dn = G.newlab("W0D")
        I(f"s_mov_b32 {sr(sCnt)}, 0")
        G.label(lp)
        flag_check(G, 2)
        I(f"s_cbranch_scc0 {dn}")
        I(f"s_add_u32 {sr(sCnt)}, {sr(sCnt)}, 1"); I(f"s_cmp_lt_u32 {sr(sCnt)}, {8 * c.get('spin', 40000)}"); I(f"s_cbranch_scc1 {lp}")
        G.label(dn)
        G.jump("J_D")
    else:
        pay(dC); G.jump("J_DS")
    G.block("P_D")
    def issD():
        I(f"s_and_b32 {sr(sT)}, {sr(sJ8)}, 3"); I(f"s_lshl_b32 {sr(sT)}, {sr(sT)}, 9")
        I("s_mov_b32 exec_hi, 0")
        I(f"buffer_load_dwordx4 v[64:67], {vr(vL16)}, {sr(SRD['XSRC'],4)}, {sr(sT)} offen sc1")
        I("s_mov_b64 exec, -1")
    I("s_mov_b32 s76, -1"); I("s_mov_b32 s77, 0")
    poll_loop(G, issD, G.chk(range(64, 68), 69, 70, mask="s[76:77]"), "D")
    I(f"v_add_u32 v68, {BC}, {vr(vL16)}")
    I("ds_write_b128 v68, v[64:67]")
    set_flag(G, 2)
    G.jump("J_D")
    G.set_state(stD)
    G.block("S_A0_1")
    colsum_publish(G)
    G.vmq = [x for x in G.vmq if x != "cspub"]
    I(f"s_cmp_eq_u32 {sr(sV)}, 3"); I("s_cbranch_scc1 P_A")
    I(f"s_cmp_eq_u32 {sr(sV)}, 2"); I("s_cbranch_scc1 D_D")
    if c.get("w0_late", True):
        I(f"s_cmp_eq_u32 {sr(sV)}, 0"); I("s_cbranch_scc1 D_0")
    G.label("J_A")
    dA_ = s_part(3, c.get("preA", 1), c.get("nA", 5))
    I(f"v_lshrrev_b32 v68, 2, {vr(vLane)}"); I("v_lshlrev_b32 v68, 4, v68"); I(f"v_add_u32 v68, {BCQ}, v68")
    I("ds_read_b128 v[76:79], v68")
    I("s_waitcnt lgkmcnt(0)")
    stA = G.state()
    G.label("J_F")
    G.bg_until(lambda: G.kdone["B"] == 4, depth=d1)
    G.jump("L_QK")
    stF = G.state()
    G.block("D_D")
    G.set_state(stD); G.vmq = [x for x in G.vmq if x != "cspub"]; pay(dD); G.jump("J_A")
    if c.get("w0_late", True):
        G.block("D_0")
        G.set_state(stD); G.vmq = [x for x in G.vmq if x != "cspub"]
        if not any(it[0] == "V" and it[1] == "B" and it[2] >= NVREG for it in dD["items"]):
            keep = G.state()
            for it in dD["items"]: G.emit_item(it)
            G.set_state(keep)
            I(f"s_waitcnt vmcnt({len(dD['items'])})")
            pay(dict(items=[], K=dC["K"] + dD["K"], V=dC["V"] + dD["V"]))
        else:
            I("s_waitcnt vmcnt(0)")
            pay(dict(items=[], K=dC["K"], V=dC["V"]))
            pay(dD)
        G.jump("J_A")
    G.block("P_A")
    def iss3():
        cs_issue(G, False); G.a_issue()
    poll_loop(G, iss3, G.chk(list(range(24, 34)) + list(range(44, 52)), 69, 70), 'A')
    colsum_finish(G)
    G.jump("C_A")
    G.block("S_Q1")
    I(f"v_lshrrev_b32 v68, 2, {vr(vLane)}"); I("v_lshlrev_b32 v68, 4, v68"); I(f"v_add_u32 v68, {BCQ}, v68")
    I(f"s_mov_b64 exec, {sr(mI0,2)}")
    I("ds_write_b128 v68, v[76:79]")
    I("s_mov_b64 exec, -1")
    set_flag(G, 3)
    G.set_state(stA); pay(dA_); G.jump("J_F")
    G.set_state(stF)
    G.block("S_PV_1")
    I("s_waitcnt lgkmcnt(0)")
    G.bg_until(lambda: G.vdone["B"] == NVREG and G.next_item == len(G.items) and not G.vmq, depth=d1)
    assert G.kdone == {"A": 4, "B": 4} and G.vdone == {"A": NVREG, "B": NVREG}
    for x in G.vt_reads("B", 0): I(x)
    G.jump("R_PV")

def after_C(G, stB, dC):
    return G.cst_afterC

def generate(cfg):
    G = Gen(cfg)
    return G.build(), G

if __name__ == "__main__":
    cfg = json.loads(sys.argv[2]) if len(sys.argv) > 2 else {}
    txt, G = generate(cfg)
    open(sys.argv[1], "w").write(txt)
    if cfg.get("profile"): json.dump(cfg.get("stamps", []), open(sys.argv[1] + ".stamps.json", "w"))
    print("lines", txt.count("\n"), "bytes", len(txt))
```
